```python
import torch

def _softmax(x, axis=-1):
    return torch.softmax(x, dim=axis)
def _gelu(x):
    return torch.nn.functional.gelu(x, approximate="tanh")
def _silu(x):
    return torch.nn.functional.silu(x)
def _sigmoid(x):
    return torch.sigmoid(x)
def _layernorm(x, axis=-1, eps=1e-5):
    m = x.mean(dim=axis, keepdim=True)
    v = x.var(dim=axis, keepdim=True, unbiased=False)
    return (x - m) / torch.sqrt(v + eps)
def _scatter_add(tgt, idx, src, axis=0):
    return tgt.clone().index_add_(axis, idx, src)
def _segment_sum(src, seg, n):
    out = torch.zeros((n,) + src.shape[1:], dtype=src.dtype)
    return out.index_add_(0, seg, src)
def _pad(x, pw):
    flat = tuple(v for pair in reversed(pw) for v in pair)
    return torch.nn.functional.pad(x, flat)

kernel_name = 'gated_mix__softmax_full_mha__glu_gated_bilinear__prompt'

def setup_inputs():

    _w = (lambda a: (lambda t: t.to(torch.bfloat16) if t.is_floating_point() else t)(torch.as_tensor(a)))
    def _A_setup():
        B, S, D = 1, 2048, 512
        return {
            "x": _w((lambda *s: torch.randn(*s, dtype=torch.bfloat16) * 0.05)(B, S, D)),
            "wqkv": _w((lambda *s: torch.randn(*s, dtype=torch.bfloat16) * 0.8)(D, 3 * D)),
            "wo": _w((lambda *s: torch.randn(*s, dtype=torch.bfloat16) * 0.05)(D, D)),
        }
    _A_in = _A_setup()

    def _B_setup():
        B, S, D, F = 1, 2048, 512, 1792
        return {
            "x": _w((lambda *s: torch.randn(*s, dtype=torch.bfloat16) * 0.05)(B, S, D)),
            "w_gate": _w((lambda *s: torch.randn(*s, dtype=torch.bfloat16) * 1.6)(D, F) * (D ** -0.5)),
            "w_up": _w((lambda *s: torch.randn(*s, dtype=torch.bfloat16) * 1.6)(D, F) * (D ** -0.5)),
            "w_down": _w((lambda *s: torch.randn(*s, dtype=torch.bfloat16) * 1.6)(F, D) * (F ** -0.5)),
        }
    _B_in = _B_setup()

    return {
        "A_x": _A_in["x"],
        "A_wqkv": _A_in["wqkv"],
        "A_wo": _A_in["wo"],
        "B_x": _B_in["x"],
        "B_w_gate": _B_in["w_gate"],
        "B_w_up": _B_in["w_up"],
        "B_w_down": _B_in["w_down"],
        "gate_w": _w((lambda *s: torch.randn(*s, dtype=torch.bfloat16) * 0.05)(512) * 16.0),
    }

def reference(A_x, A_wqkv, A_wo, B_x, B_w_gate, B_w_up, B_w_down, gate_w):
    def _A_ref(x, wqkv, wo):
        B, S, D = x.shape
        H = 32; Dh = D // H
        qkv = (lambda x, *d: x.permute(*d))((x @ wqkv).reshape(B, S, 3, H, Dh), 2, 0, 3, 1, 4)
        q, k, v = qkv[0], qkv[1], qkv[2]
        scale = Dh ** -0.5
        scores = torch.einsum("bhqd,bhkd->bhqk", q, k) * scale
        p = _softmax(scores, axis=-1)
        o = torch.einsum("bhqk,bhkd->bhqd", p, v)
        return (lambda x, *d: x.permute(*d))(o, 0, 2, 1, 3).reshape(B, S, D) @ wo

    def _B_ref(x, w_gate, w_up, w_down):
        g = torch.einsum("bsd,df->bsf", x, w_gate)
        u = torch.einsum("bsd,df->bsf", x, w_up)
        h = g * u
        return torch.einsum("bsf,fd->bsd", h, w_down)

    x = A_x
    g = _sigmoid((x * gate_w).sum(-1, keepdims=True))
    a = _A_ref(x, A_wqkv, A_wo)
    b = _B_ref(x, B_w_gate, B_w_up, B_w_down)
    return g * a + (1 - g) * b
```

```python
class Asm:
    def __init__(self):
        self.lines = []
        self.uid = 0
    def __call__(self, s, *rest):
        for x in (s,) + rest:
            for ln in x.split("\n"):
                ln = ln.rstrip()
                if not ln.strip():
                    continue
                st = ln.strip()
                if st.endswith(":") or st.startswith("."):
                    self.lines.append(st)
                else:
                    self.lines.append("    " + st)
    def c(self, s):
        self.lines.append("    ; " + s)
    def label(self, name):
        self.lines.append(name + ":")
    def newlabel(self, p="L"):
        self.uid += 1
        return f"{p}_{self.uid}"
    def text(self):
        return "\n".join(self.lines) + "\n"

def vr(b, n=1):
    return f"v{b}" if n == 1 else f"v[{b}:{b+n-1}]"
def sr(b, n=1):
    return f"s{b}" if n == 1 else f"s[{b}:{b+n-1}]"
def mfma(d, a, b, c=None):
    cs = vr(d, 16) if c is None else (c if isinstance(c, str) else vr(c, 16))
    return f"v_mfma_f32_32x32x16_bf16 {vr(d,16)}, {vr(a,4)}, {vr(b,4)}, {cs}"
```

```python
from asmlib import *
from roles import *

ATT_LDS = 65536
def role_attn(a, s_b, end_label, st_flags=""):
    SWS = 28
    s_w, s_head, s_qb, s_qw, s_kh = 44, 45, 46, 47, 48
    s_kv, s_l, s_q, s_cnt = 49, 50, 51, 52
    sEX = 54
    wave_id(a, s_w, 1)
    a(f"s_and_b32 s{s_head}, s{s_b}, 7", f"s_lshl_b32 s{s_head}, s{s_head}, 2",
      f"s_bfe_u32 s53, s{s_b}, 0x20003", f"s_add_u32 s{s_head}, s{s_head}, s53",
      f"s_lshr_b32 s{s_qb}, s{s_b}, 5",
      f"s_and_b32 s{s_qw}, s{s_w}, 3", f"s_lshr_b32 s{s_kh}, s{s_w}, 2",
      f"s_mov_b32 s{sEX}, 0xffff", f"s_mov_b32 s{sEX+1}, 0xffff")
    vL16, vKA, vVA = 1, 2, 3
    Q = 4
    K = 12
    V = 16
    P = 32
    C = 40
    S = 56
    O = 88
    T0 = 120
    a(f"v_lshlrev_b32 v{vL16}, 4, v0")
    a(f"s_lshl_b32 s{s_kv}, s{s_head}, 17", f"s_add_u32 s{s_kv}, s{s_kv}, {WS_KV:#x}",
      f"s_lshl_b32 s{s_q}, s{s_head}, 6", f"s_lshl_b32 s53, s{s_qb}, 3", f"s_add_u32 s{s_q}, s{s_q}, s53",
      f"s_lshl_b32 s53, s{s_qw}, 1", f"s_add_u32 s{s_q}, s{s_q}, s53", f"s_lshl_b32 s{s_q}, s{s_q}, 10")
    if WS_QF: a(f"s_add_u32 s{s_q}, s{s_q}, {WS_QF:#x}")
    a("s_waitcnt lgkmcnt(0)")
    srd(a, SWS, S_WS, WS_SIZE)
    a(f"buffer_load_dwordx4 {vr(Q,4)}, v{vL16}, s[{SWS}:{SWS+3}], s{s_q} offen",
      f"buffer_load_dwordx4 {vr(Q+4,4)}, v{vL16}, s[{SWS}:{SWS+3}], s{s_q} offen offset:1024",
      f"buffer_load_dwordx4 {vr(K,4)}, v{vL16}, s[{SWS}:{SWS+3}], s{s_kv} offen")
    s_src = 56
    a(f"s_lshl_b32 s{s_src}, s{s_kh}, 16", f"s_add_u32 s{s_src}, s{s_src}, s{s_kv}",
      f"s_lshl_b32 s53, s{s_qw}, 11", f"s_add_u32 s{s_src}, s{s_src}, s53",
      f"s_lshl_b32 s{s_l}, s{s_kh}, 15", f"s_add_u32 s{s_l}, s{s_l}, s53")
    def issue_chunk(slot):
        a(f"s_add_u32 m0, s{s_l}, {slot*8192}", "s_nop 0",
          f"buffer_load_dwordx4 v{vL16}, s[{SWS}:{SWS+3}], s{s_src} offen lds",
          f"buffer_load_dwordx4 v{vL16}, s[{SWS}:{SWS+3}], s{s_src} offen offset:1024 lds",
          f"s_add_u32 s{s_src}, s{s_src}, 8192")
    for c in range(3): issue_chunk(c)
    a(f"s_lshl_b32 s53, s{s_kh}, 15", f"v_add_u32 v{vKA}, s53, v{vL16}",
      f"v_lshrrev_b32 v{T0}, 5, v0", f"v_lshlrev_b32 v{T0}, 8, v{T0}", f"v_and_b32 v{T0+1}, 15, v0",
      f"v_lshl_add_u32 v{T0}, v{T0+1}, 4, v{T0}", f"v_add_u32 v{vVA}, s53, v{T0}")
    for r in range(16): a(f"v_mov_b32 v{V+r}, 0x3f803f80")
    for r in range(32): a(f"v_mov_b32 v{O+r}, 0")
    a("s_waitcnt vmcnt(6)")
    a(mfma(S, K, Q, "0"), mfma(S+16, K, Q+4, "0"), "s_nop 7", "s_nop 7")
    for t in range(2):
        b = S + 16*t; m = T0 + t
        a(f"v_max3_f32 v{m}, v{b}, v{b+1}, v{b+2}")
        for r in range(3, 15, 2): a(f"v_max3_f32 v{m}, v{m}, v{b+r}, v{b+r+1}")
        a(f"v_max_f32 v{m}, v{m}, v{b+15}")
        a(f"v_mov_b32 v{T0+2}, v{m}", "s_nop 1", f"v_permlane32_swap_b32 v{m}, v{T0+2}", "s_nop 1", f"v_max_f32 v{m}, v{m}, v{T0+2}")
    a(f"v_min_f32 v{T0}, v{T0}, v{T0+1}")
    for r in range(16): a(f"v_sub_f32 v{C+r}, 0, v{T0}")
    def rd(it, vbuf):
        off = (it % 16) * 2048
        a(f"ds_read_b128 {vr(K,4)}, v{vKA} offset:{off}",
          f"s_mov_b64 exec, s[{sEX}:{sEX+1}]",
          f"ds_read_b128 {vr(V+8*vbuf,4)}, v{vVA} offset:{off+1024}",
          f"ds_read_b128 {vr(V+8*vbuf+4,4)}, v{vVA} offset:{off+1536}",
          "s_mov_b64 exec, -1")
    a("s_waitcnt vmcnt(4)", "s_barrier")
    rd(0, 0)
    a("s_waitcnt lgkmcnt(0)")
    a(mfma(S, K, Q, C))
    a(f"s_mov_b32 s{s_cnt}, 0")
    a("s_nop 7", "s_nop 3")
    def phase(Sb, Ob, vb, first, mid, pend):
        e = lambda r: f"v_exp_f32 v{Sb+r}, v{Sb+r}"
        c = lambda k: f"v_cvt_pk_bf16_f32 v{P+k}, v{Sb+2*k}, v{Sb+2*k+1}"
        for l in first: a(l)
        a(e(0), e(1))
        if pend: a(pend)
        a(e(2), e(3), c(0))
        mid()
        a(e(4), e(5), c(1), e(6), e(7), c(2), e(8), e(9), c(3), e(10), e(11))
        a(mfma(Ob, V+8*vb, P))
        a(c(4), e(12), e(13), c(5), e(14), e(15), c(6), c(7))
        return mfma(Ob, V+8*vb+4, P+4)
    Lloop = a.newlabel("ATT_loop")
    Lskip_pend = a.newlabel("ATT_entry")
    for r in range(4): a(f"v_mov_b32 v{P+4+r}, 0")
    a(".p2align 6")
    a.label(Lloop)
    pend = mfma(O+16, V+8*1+4, P+4)
    for it in range(16):
        vb = it % 2
        def midA(it=it, vb=vb):
            if it % 4 == 3:
                slot_next = ((it // 4) + 1) % 4
                Lno = a.newlabel("ATT_nodma")
                if it == 15:
                    a("s_waitcnt vmcnt(2)")
                    a("s_barrier")
                    a(f"s_cmp_lg_u32 s{s_cnt}, 0", f"s_cbranch_scc1 {Lno}")
                    issue_chunk((it//4 + 3) % 4)
                    a.label(Lno)
                elif it == 3:
                    a("s_waitcnt vmcnt(2)", "s_barrier")
                    issue_chunk((it//4 + 3) % 4)
                else:
                    Lp2 = a.newlabel("ATT_p2")
                    a(f"s_cmp_lg_u32 s{s_cnt}, 0", f"s_cbranch_scc1 {Lp2}")
                    a("s_waitcnt vmcnt(2)", "s_barrier")
                    issue_chunk((it//4 + 3) % 4)
                    a(f"s_branch {Lno}")
                    a.label(Lp2)
                    a(f"s_waitcnt vmcnt({2 if it == 7 else 0})", "s_barrier")
                    a.label(Lno)
            rd(it + 1, 1 - vb)
        pend = phase(S, O, vb, [mfma(S+16, K, Q+4, C)], midA, pend)
        pend = phase(S+16, O+16, vb, ["s_waitcnt lgkmcnt(0)", mfma(S, K, Q, C)], lambda: None, pend)
    a(f"s_add_u32 s{s_cnt}, s{s_cnt}, 1", f"s_cmp_lt_u32 s{s_cnt}, 2", f"s_cbranch_scc1 {Lloop}")
    a("s_nop 1", pend)
    a("s_barrier")
    Lk1 = a.newlabel("ATT_k1"); Lj = a.newlabel("ATT_j")
    a(f"s_lshl_b32 s53, s{s_w}, 12", f"v_add_u32 v{vKA}, s53, v{vL16}",
      f"s_xor_b32 s53, s53, 0x4000", f"v_add_u32 v{vVA}, s53, v{vL16}", "s_nop 7", "s_nop 3")
    a(f"s_cmp_eq_u32 s{s_kh}, 1", f"s_cbranch_scc1 {Lk1}")
    for j in range(3): a(f"ds_write_b128 v{vKA}, {vr(O+16+4*j,4)} offset:{1024*j}")
    a(f"s_branch {Lj}")
    a.label(Lk1)
    for j in range(3): a(f"ds_write_b128 v{vKA}, {vr(O+4*j,4)} offset:{1024*j}")
    a("s_nop 1")
    for j in range(9): a(f"v_mov_b32 v{O+j}, v{O+16+j}")
    for j in range(4): a(f"v_mov_b32 v{Q+j}, v{Q+4+j}")
    a.label(Lj)
    a("s_waitcnt lgkmcnt(0)", "s_barrier")
    for j in range(3): a(f"ds_read_b128 {vr(S+4*j,4)}, v{vVA} offset:{1024*j}")
    a("s_waitcnt lgkmcnt(0)")
    for j in range(9): a(f"v_add_f32 v{O+j}, v{O+j}, v{S+j}")
    Lfb = a.newlabel("ATT_fallback"); Lfin = a.newlabel("ATT_fin")
    a(f"v_max3_f32 v{T0}, |v{O}|, |v{O+1}|, |v{O+2}|", f"v_max3_f32 v{T0}, v{T0}, |v{O+3}|, |v{O+4}|",
      f"v_max3_f32 v{T0}, v{T0}, |v{O+5}|, |v{O+6}|", f"v_max_f32 v{T0}, v{T0}, |v{O+7}|")
    a(f"v_add_f32 v{T0+1}, v{O}, v{O+1}")
    for j in range(2, 8): a(f"v_add_f32 v{T0+1}, v{T0+1}, v{O+j}")
    a(f"s_mov_b32 s53, 0x5d800000",
      f"v_cmp_nlt_f32 vcc, v{O+8}, s53" .replace(f"v{O+8}, s53", f"v{O+8}, s53"),
      f"s_mov_b32 s53, 0x7e800000",
      f"v_cmp_nlt_f32 s[58:59], v{T0}, s53",
      f"v_cmp_u_f32 s[60:61], v{T0+1}, v{T0+1}",
      "s_or_b64 vcc, vcc, s[58:59]", "s_or_b64 vcc, vcc, s[60:61]",
      f"s_cbranch_vccnz {Lfb}")
    a.label(Lfin)
    a(f"v_rcp_f32 v{T0}, v{O+8}", "s_nop 0")
    for j in range(8): a(f"v_mul_f32 v{O+j}, v{O+j}, v{T0}")
    for j in range(4): a(f"v_cvt_pk_bf16_f32 v{P+j}, v{O+2*j}, v{O+2*j+1}")
    a(f"s_lshl_b32 s53, s{s_qb}, 3", f"s_lshl_b32 s57, s{s_qw}, 1", "s_add_u32 s53, s53, s57", f"s_add_u32 s53, s53, s{s_kh}",
      "s_lshl_b32 s53, s53, 5", f"s_add_u32 s53, s53, s{s_head}", "s_lshl_b32 s53, s53, 10", f"s_add_u32 s53, s53, {WS_OF:#x}",
      f"buffer_store_dwordx4 {vr(P,4)}, v{vL16}, s[{SWS}:{SWS+3}], s53 offen{st_flags}")
    a(f"s_branch {end_label}")
    a.label(Lfb)
    L1 = a.newlabel("ATT_fb1"); L2 = a.newlabel("ATT_fb2")
    a(f"v_mov_b32 v{T0}, 0xff800000", f"s_mov_b32 s57, s{s_kv}", f"s_mov_b32 s{s_cnt}, 0")
    a.label(L1)
    a(f"buffer_load_dwordx4 {vr(K,4)}, v{vL16}, s[{SWS}:{SWS+3}], s57 offen", "s_waitcnt vmcnt(0)",
      mfma(S, K, Q, "0"), "s_nop 7", "s_nop 7")
    for r in range(0, 16, 2): a(f"v_max3_f32 v{T0}, v{T0}, v{S+r}, v{S+r+1}")
    a("s_add_u32 s57, s57, 2048", f"s_add_u32 s{s_cnt}, s{s_cnt}, 1", f"s_cmp_lt_u32 s{s_cnt}, 64", f"s_cbranch_scc1 {L1}")
    a(f"v_mov_b32 v{T0+2}, v{T0}", "s_nop 1", f"v_permlane32_swap_b32 v{T0}, v{T0+2}", "s_nop 1", f"v_max_f32 v{T0}, v{T0}, v{T0+2}")
    for r in range(16): a(f"v_sub_f32 v{C+r}, 0, v{T0}", f"v_mov_b32 v{O+r}, 0")
    a(f"v_lshrrev_b32 v{T0}, 5, v0", f"v_lshlrev_b32 v{T0}, 8, v{T0}", f"v_and_b32 v{T0+1}, 15, v0",
      f"v_lshl_add_u32 v{vVA}, v{T0+1}, 4, v{T0}")
    a(f"s_mov_b32 s57, s{s_kv}", f"s_mov_b32 s{s_cnt}, 0")
    a.label(L2)
    a(f"buffer_load_dwordx4 {vr(K,4)}, v{vL16}, s[{SWS}:{SWS+3}], s57 offen",
      f"s_mov_b64 exec, s[{sEX}:{sEX+1}]",
      f"buffer_load_dwordx4 {vr(V,4)}, v{vVA}, s[{SWS}:{SWS+3}], s57 offen offset:1024",
      f"buffer_load_dwordx4 {vr(V+4,4)}, v{vVA}, s[{SWS}:{SWS+3}], s57 offen offset:1536",
      "s_mov_b64 exec, -1", "s_waitcnt vmcnt(0)",
      mfma(S, K, Q, C), "s_nop 7", "s_nop 7")
    for r in range(16): a(f"v_exp_f32 v{S+r}, v{S+r}")
    a("s_nop 0")
    for k in range(8): a(f"v_cvt_pk_bf16_f32 v{P+k}, v{S+2*k}, v{S+2*k+1}")
    a("s_nop 1", mfma(O, V, P), mfma(O, V+4, P+4), "s_nop 7", "s_nop 7")
    a("s_add_u32 s57, s57, 2048", f"s_add_u32 s{s_cnt}, s{s_cnt}, 1", f"s_cmp_lt_u32 s{s_cnt}, 64", f"s_cbranch_scc1 {L2}")
    a(f"s_branch {Lfin}")
```

```python
from asmlib import *

WS_QF = 0x000000
WS_KV = 0x200000
WS_OF = 0x600000
WS_HF = 0x800000
WS_BB = 0xF00000
WS_GG = 0x1100000
WS_SIZE = 0x1102000
QSCALE = 0x3EB8AA3B
LOG2E = 0x3FB8AA3B

S_X, S_WQKV, S_WO, S_WG, S_WU, S_WD, S_GW, S_OUT, S_DBG, S_WS = 4, 6, 8, 12, 14, 16, 18, 20, 22, 24

def load_kernargs(a):
    a("s_load_dwordx16 s[4:19], s[0:1], 0",
      "s_load_dwordx4 s[20:23], s[0:1], 64",
      "s_load_dwordx2 s[24:25], s[0:1], 80")

def srd(a, d, p, nbytes):
    a(f"s_mov_b32 s{d}, s{p}", f"s_and_b32 s{d+1}, s{p+1}, 0xffff",
      f"s_mov_b32 s{d+2}, {hex(nbytes)}", f"s_mov_b32 s{d+3}, 0x00020000")

def wave_id(a, sdst, vtmp):
    a(f"v_lshrrev_b32 v{vtmp}, 6, v0", "s_nop 0", f"v_readfirstlane_b32 s{sdst}, v{vtmp}", "v_and_b32 v0, 63, v0")

def dma(a, voff, srd_, soff, m0expr, imm=0, flags=""):
    for l in m0expr: a(l)
    o = f" offset:{imm}" if imm else ""
    a(f"buffer_load_dwordx4 v{voff}, s[{srd_}:{srd_+3}], {soff} offen{o}{flags} lds")

def role_qkv(a, s_b, NS, end_label):
    T = 8
    SX, SW, SWS, SGW = 28, 32, 36, 40
    s_w, s_ct, s_rt = 44, 45, 46
    L_load = a.newlabel("QKV_load")
    wave_id(a, s_w, 1)
    a(f"s_and_b32 s{s_ct}, s{s_b}, 7", f"s_lshr_b32 s{s_rt}, s{s_b}, 3")
    a("s_waitcnt lgkmcnt(0)")
    srd(a, SWS, S_WS, WS_SIZE)
    a(f"s_cmp_ge_u32 s{s_w}, 4", f"s_cbranch_scc1 {L_load}")
    vXA, vWA, vT = 2, 6, 7
    XF, WF, ACC = 12, 20, 44
    s_rb, s_ch = 47, 48
    a(f"s_and_b32 s{s_rb}, s{s_w}, 1", f"s_lshr_b32 s{s_ch}, s{s_w}, 1")
    a(f"v_and_b32 v7, 31, v0", f"v_lshrrev_b32 v8, 5, v0",
      f"v_bfe_u32 v9, v0, 1, 3",
      f"v_xor_b32 v9, v9, v8",
      f"s_lshl_b32 s49, s{s_rb}, 12",
      f"v_lshlrev_b32 v10, 7, v7", f"v_add_u32 v10, s49, v10")
    for s in range(4):
        a(f"v_xor_b32 v11, {2*s}, v9", f"v_lshl_add_u32 v{vXA+s}, v11, 4, v10")
    a(f"v_bfe_u32 v9, v0, 2, 2",
      f"v_lshl_add_u32 v10, v8, 3, v9",
      f"v_lshlrev_b32 v10, 7, v10",
      f"v_lshrrev_b32 v9, 1, v9",
      f"v_xor_b32 v9, s{s_ch}, v9",
      f"v_lshl_add_u32 v10, v9, 6, v10",
      f"v_bfe_u32 v9, v0, 4, 1",
      f"v_lshl_add_u32 v10, v9, 5, v10",
      f"v_and_b32 v9, 3, v0",
      f"v_lshl_add_u32 v{vWA}, v9, 3, v10")
    def reads(n):
        s = n % 4; p = n % 2
        a(f"ds_read_b128 {vr(XF+4*p,4)}, v{vXA+s}")
        for mat in range(3):
            for t in range(2):
                a(f"ds_read_b64_tr_b16 {vr(WF+12*p+4*mat+2*t,2)}, v{vWA} offset:{8192+mat*8192+s*2048+t*512}")
    def mf(n):
        p = n % 2
        for mat in range(3):
            c = "0" if n == 0 else None
            if mat < 2: a(mfma(ACC+16*mat, WF+12*p+4*mat, XF+4*p, c))
            else:       a(mfma(ACC+16*mat, XF+4*p, WF+12*p+4*mat, c))
    cur_slot = 0
    for n in range(4*T):
        st = n // 4
        if n % 4 == 0:
            if n > 0: a("s_waitcnt lgkmcnt(0)")
            a("s_barrier")
            slot = st % NS
            if slot != cur_slot:
                d = (slot - cur_slot) * 32768
                for r in list(range(vXA, vXA+4)) + [vWA]:
                    a(f"v_add_u32 v{r}, {d & 0xffffffff:#x}, v{r}")
                cur_slot = slot
            reads(n)
            if n > 0: mf(n-1)
        else:
            reads(n)
            a("s_waitcnt lgkmcnt(7)")
            mf(n-1)
    a("s_waitcnt lgkmcnt(0)")
    mf(4*T-1)
    a(f"s_lshl_b32 s49, s{s_ct}, 2", f"s_lshl_b32 s50, s{s_ch}, 1", "s_add_u32 s49, s49, s50",
      f"s_lshl_b32 s50, s{s_rt}, 1", f"s_add_u32 s50, s50, s{s_rb}",
      "s_lshl_b32 s49, s49, 6", "s_add_u32 s49, s49, s50",
      "s_lshl_b32 s51, s49, 10", f"s_add_u32 s51, s51, {WS_QF:#x}" if WS_QF else "s_nop 0",
      "s_lshl_b32 s52, s49, 11", f"s_add_u32 s52, s52, {WS_KV:#x}",
      "s_add_u32 s53, s51, 0x10000", "s_add_u32 s54, s52, 0x20000",
      f"s_mov_b32 s55, {QSCALE:#x}")
    a("v_lshlrev_b32 v2, 4, v0")
    a("v_bfe_u32 v9, v0, 4, 1", "v_lshlrev_b32 v3, 17, v9", "v_lshl_add_u32 v3, v8, 8, v3",
      "v_and_b32 v9, 15, v0", "v_lshl_add_u32 v3, v9, 4, v3")
    a("s_nop 7")
    P = 12
    for r in range(16): a(f"v_mul_f32 v{ACC+r}, s55, v{ACC+r}")
    for blk in range(3):
        for half in range(2):
            d = P + (blk*2+half)*4
            for j in range(4):
                r = ACC + 16*blk + 8*half + 2*j
                a(f"v_cvt_pk_bf16_f32 v{d+j}, v{r}, v{r+1}")
            if blk == 0: a(f"buffer_store_dwordx4 {vr(d,4)}, v2, s[{SWS}:{SWS+3}], s{51 if half==0 else 53} offen")
            elif blk == 1: a(f"buffer_store_dwordx4 {vr(d,4)}, v2, s[{SWS}:{SWS+3}], s{52 if half==0 else 54} offen")
            else: a(f"buffer_store_dwordx4 {vr(d,4)}, v3, s[{SWS}:{SWS+3}], s52 offen offset:{1024+512*half}")
    a(f"s_branch {end_label}")
    a.label(L_load)
    srd(a, SX, S_X, 2048*1024)
    srd(a, SW, S_WQKV, 512*3072)
    srd(a, SGW, S_GW, 1024)
    s_lw, sG, sL, sX = 47, 48, 49, 50
    a(f"s_sub_u32 s{s_lw}, s{s_w}, 4")
    a("v_lshlrev_b32 v2, 4, v0",
      f"s_lshl_b32 s51, s{s_b}, 3", f"s_lshl_b32 s52, s{s_lw}, 1", "s_add_u32 s51, s51, s52",
      "s_lshl_b32 s52, s51, 10",
      f"buffer_load_dwordx4 v[8:11], v2, s[{SGW}:{SGW+3}], 0 offen",
      f"buffer_load_dwordx4 v[12:15], v2, s[{SX}:{SX+3}], s52 offen",
      f"buffer_load_dwordx4 v[16:19], v2, s[{SX}:{SX+3}], s52 offen offset:1024")
    a("v_lshrrev_b32 v3, 3, v0", "v_mul_u32_u24 v4, 3072, v3",
      "v_bfe_u32 v5, v0, 4, 1", "v_lshlrev_b32 v5, 2, v5", "v_and_b32 v6, 7, v0", "v_xor_b32 v5, v5, v6",
      "v_lshl_add_u32 v4, v5, 4, v4")
    a("v_bfe_u32 v5, v0, 4, 2", "v_xor_b32 v5, v5, v6", "v_lshlrev_b32 v3, 10, v3",
      "v_lshl_add_u32 v6, v5, 4, v3",
      "v_xor_b32 v7, 64, v6")
    a(f"s_mul_i32 s{sG}, s{s_lw}, {2*8*3072}", f"s_lshl_b32 s53, s{s_ct}, 7", f"s_add_u32 s{sG}, s{sG}, s53",
      f"s_lshl_b32 s{sL}, s{s_lw}, 11",
      f"s_lshl_b32 s{sX}, s{s_rt}, 16", f"s_lshl_b32 s53, s{s_lw}, 14", f"s_add_u32 s{sX}, s{sX}, s53")
    def issue(st):
        slot = st % NS
        for jj in range(2):
            a(f"s_add_u32 s53, s{sX}, {jj*8192 + st*128}")
            dma(a, 6+jj, SX, "s53", [f"s_add_u32 m0, s{sL}, {slot*32768 + jj*1024}", "s_nop 0"])
            for mat in range(3):
                a(f"s_add_u32 s53, s{sG}, {st*196608 + jj*24576 + mat*1024}")
                dma(a, 4, SW, "s53", [f"s_add_u32 m0, s{sL}, {slot*32768 + 8192 + mat*8192 + jj*1024}", "s_nop 0"])
    for st in range(min(NS, T)): issue(st)
    issued = min(NS, T)
    a(f"s_waitcnt vmcnt({8*issued})")
    a("s_mov_b32 s56, 0xffff0000")
    for j in range(4):
        a(f"v_lshlrev_b32 v{20+2*j}, 16, v{8+j}", f"v_and_b32 v{21+2*j}, s56, v{8+j}")
    for row in range(2):
        xb = 12 + 4*row; acc = 30 + row
        for j in range(4):
            a(f"v_lshlrev_b32 v28, 16, v{xb+j}", f"v_and_b32 v29, s56, v{xb+j}",
              f"v_mul_f32 v28, v28, v{20+2*j}", f"v_mul_f32 v29, v29, v{21+2*j}",
              "v_cvt_pk_bf16_f32 v28, v28, v29",
              "v_and_b32 v29, s56, v28", "v_lshlrev_b32 v28, 16, v28")
            if j == 0: a(f"v_add_f32 v{acc}, v28, v29")
            else: a(f"v_add_f32 v{acc}, v{acc}, v28", f"v_add_f32 v{acc}, v{acc}, v29")
        for sh in (8, 4, 2, 1):
            a("s_nop 1", f"v_add_f32_dpp v{acc}, v{acc}, v{acc} row_ror:{sh} row_mask:0xf bank_mask:0xf")
        a("s_nop 1")
        for q in range(4): a(f"v_readlane_b32 s{58+q}, v{acc}, {16*q}")
        a("s_nop 1", f"v_mov_b32 v{acc}, s58", f"v_add_f32 v{acc}, s59, v{acc}", f"v_add_f32 v{acc}, s60, v{acc}", f"v_add_f32 v{acc}, s61, v{acc}")
        a(f"v_cvt_pk_bf16_f32 v{acc}, v{acc}, v{acc}", f"v_lshlrev_b32 v{acc}, 16, v{acc}",
          f"v_mul_f32 v{acc}, {(LOG2E | 0x80000000):#x}, v{acc}", f"v_exp_f32 v{acc}, v{acc}", "s_nop 0",
          f"v_add_f32 v{acc}, 1.0, v{acc}", f"v_rcp_f32 v{acc}, v{acc}", "s_nop 0",
          f"v_cvt_pk_bf16_f32 v{acc}, v{acc}, v{acc}", f"v_lshlrev_b32 v{acc}, 16, v{acc}")
    for st in range(T):
        a(f"s_waitcnt vmcnt({8*(issued-st-1)})", "s_barrier")
        if st >= 1 and issued < T:
            issue(issued); issued += 1
    a("s_lshl_b32 s51, s51, 2", f"s_add_u32 s51, s51, {WS_GG:#x}", "v_mov_b32 v2, 0",
      "s_mov_b64 exec, 1",
      f"buffer_store_dwordx2 v[30:31], v2, s[{SWS}:{SWS+3}], s51 offen",
      "s_mov_b64 exec, -1")
    a(f"s_branch {end_label}")

UP_STAGE = 22784
UP_LDS = 3*UP_STAGE + 1024
def role_up(a, s_b, end_label, st_flags=""):
    T = 16; NS = 3
    SX, SG, SU, SWS = 28, 32, 36, 40
    s_w, s_rt, s_ft = 44, 45, 46
    wave_id(a, s_w, 1)
    a(f"s_and_b32 s47, s{s_b}, 7", f"s_lshr_b32 s48, s{s_b}, 3",
      f"s_lshl_b32 s{s_rt}, s47, 1", "s_and_b32 s47, s48, 1", f"s_add_u32 s{s_rt}, s{s_rt}, s47",
      f"s_lshr_b32 s{s_ft}, s48, 1")
    a("s_waitcnt lgkmcnt(0)")
    srd(a, SX, S_X, 2048*1024); srd(a, SG, S_WG, 512*3584); srd(a, SU, S_WU, 512*3584); srd(a, SWS, S_WS, WS_SIZE)
    vXO, vWO, vXA, vWA = 2, 3, 4, 6
    a("v_lshrrev_b32 v7, 2, v0", "v_lshlrev_b32 v7, 10, v7", "v_and_b32 v8, 3, v0", "v_bfe_u32 v9, v0, 4, 2",
      "v_xor_b32 v8, v8, v9", f"v_lshl_add_u32 v{vXO}, v8, 4, v7")
    a(f"s_lshl_b32 s47, s{s_w}, 6", "v_add_u32 v7, s47, v0",
      "v_mul_u32_u24 v8, 4682, v7", "v_lshrrev_b32 v8, 16, v8",
      "v_mul_u32_u24 v9, 14, v8", "v_sub_u32 v9, v7, v9",
      "v_mul_u32_u24 v8, 3584, v8", f"v_lshl_add_u32 v{vWO}, v9, 4, v8")
    s_xo, s_wo, s_lx, s_lg, s_lu = 47, 48, 49, 50, 51
    a(f"s_lshl_b32 s{s_xo}, s{s_rt}, 17", f"s_lshl_b32 s52, s{s_w}, 14", f"s_add_u32 s{s_xo}, s{s_xo}, s52",
      f"s_mul_i32 s{s_wo}, s{s_ft}, 224",
      f"s_lshl_b32 s{s_lx}, s{s_w}, 10",
      f"s_add_u32 s{s_lg}, s{s_lx}, 8192", f"s_add_u32 s{s_lu}, s{s_lx}, {8192+7296}")
    Lw7 = a.newlabel("UP_w7");
    a(f"s_mov_b32 s53, {UP_STAGE}", f"s_cmp_lg_u32 s{s_w}, 7", f"s_cbranch_scc1 {Lw7}",
      f"v_mov_b32 v{vWO}, 0x7ff00000", f"s_mov_b32 s{s_lg}, {3*UP_STAGE}", f"s_mov_b32 s{s_lu}, {3*UP_STAGE}", "s_mov_b32 s53, 0")
    a.label(Lw7)
    a(f"s_mov_b32 s54, s{s_lg}", "s_add_u32 s55, s54, s53", "s_add_u32 s56, s55, s53",
      f"s_mov_b32 s57, s{s_lu}", "s_add_u32 s58, s57, s53", "s_add_u32 s59, s58, s53")
    def issue(st):
        slot = st % NS
        a(f"s_add_u32 s52, s{s_xo}, {st*64}")
        dma(a, vXO, SX, "s52", [f"s_add_u32 m0, s{s_lx}, {slot*UP_STAGE}", f"s_add_u32 s60, s{s_wo}, {st*32*3584}"])
        dma(a, vWO, SG, "s60", [f"s_mov_b32 m0, s{54+slot}", "s_nop 0"])
        dma(a, vWO, SU, "s60", [f"s_mov_b32 m0, s{57+slot}", "s_nop 0"])
    issue(0); issue(1)
    s_rb, s_fh = 61, 62
    a(f"s_and_b32 s{s_rb}, s{s_w}, 3", f"s_lshr_b32 s{s_fh}, s{s_w}, 2")
    a("v_and_b32 v7, 31, v0", "v_lshrrev_b32 v8, 5, v0", "v_bfe_u32 v9, v0, 2, 2", "v_xor_b32 v9, v9, v8",
      f"s_lshl_b32 s52, s{s_rb}, 11", "v_lshlrev_b32 v10, 6, v7", "v_add_u32 v10, s52, v10",
      f"v_lshl_add_u32 v{vXA}, v9, 4, v10", f"v_xor_b32 v{vXA+1}, 32, v{vXA}")
    a("v_bfe_u32 v9, v0, 2, 2", "v_lshl_add_u32 v9, v8, 3, v9", "v_mul_u32_u24 v10, 224, v9",
      "v_bfe_u32 v9, v0, 4, 1", "v_mul_u32_u24 v9, 7296, v9", "v_add_u32 v10, v10, v9",
      "v_and_b32 v9, 3, v0", "v_lshl_add_u32 v10, v9, 3, v10",
      f"s_lshl_b32 s52, s{s_fh}, 7", f"v_add_u32 v{vWA}, s52, v10")
    XF, WF, ACC = 8, 16, 48
    L3 = a.newlabel("UP_3blk")
    a(f"s_cmp_eq_u32 s{s_fh}, 1", f"s_cbranch_scc1 {L3}")
    for nb in (4, 3):
        if nb == 3: a.label(L3)
        def reads(n):
            st = n // 2; s = n % 2; p = n % 2; base = (st % NS) * UP_STAGE
            a(f"ds_read_b128 {vr(XF+4*p,4)}, v{vXA+s} offset:{base}")
            for fb in range(nb):
                for t in range(2):
                    a(f"ds_read_b64_tr_b16 {vr(WF+16*p+4*fb+2*t,2)}, v{vWA} offset:{base+8192+(16*s+4*t)*224+fb*32}")
        def mf(n):
            p = n % 2
            for fb in range(nb):
                a(mfma(ACC+16*fb, WF+16*p+4*fb, XF+4*p, "0" if n == 0 else None))
        issued = 2
        for n in range(2*T):
            st = n // 2
            if n % 2 == 0:
                a(f"s_waitcnt vmcnt({3*(issued-st-1)}) lgkmcnt(0)", "s_barrier")
                reads(n)
                if issued < T:
                    issue(issued); issued += 1
                if n > 0: mf(n-1)
            else:
                reads(n)
                a(f"s_waitcnt lgkmcnt({1+2*nb})")
                mf(n-1)
        a("s_waitcnt lgkmcnt(0)")
        mf(2*T-1)
        a(f"s_lshl_b32 s52, s{s_rt}, 2", f"s_add_u32 s52, s52, s{s_rb}", "s_mul_i32 s52, s52, 112",
          f"s_mul_i32 s53, s{s_ft}, 7", "s_add_u32 s52, s52, s53", f"s_lshl_b32 s53, s{s_fh}, 2", "s_add_u32 s52, s52, s53",
          "s_lshl_b32 s52, s52, 10", f"s_add_u32 s52, s52, {WS_HF:#x}",
          "v_lshlrev_b32 v2, 4, v0", "s_nop 7")
        for fb in range(nb):
            A = ACC + 16*fb
            for j in range(8): a(f"v_mul_f32 v{A+j}, v{A+j}, v{A+8+j}")
            for j in range(4): a(f"v_cvt_pk_bf16_f32 v{A+8+j}, v{A+2*j}, v{A+2*j+1}")
            a(f"buffer_store_dwordx4 {vr(A+8,4)}, v2, s[{SWS}:{SWS+3}], s52 offen offset:{fb*1024}{st_flags}")
        a(f"s_branch {end_label}")

def role_g64(a, s_b, end_label, kind):
    down = kind == "down"
    NK = 14 if down else 4
    XB = 112 if down else 32
    D = 4
    SW, SWS, SO = 28, 32, 36
    s_w, s_rt, s_ct = 44, 45, 46
    wave_id(a, s_w, 1)
    a(f"s_and_b32 s47, s{s_b}, 7", f"s_lshr_b32 s48, s{s_b}, 3",
      f"s_lshl_b32 s{s_rt}, s47, 2", "s_and_b32 s47, s48, 3", f"s_add_u32 s{s_rt}, s{s_rt}, s47",
      f"s_lshr_b32 s{s_ct}, s48, 2")
    a("s_waitcnt lgkmcnt(0)")
    if down: srd(a, SW, S_WD, 1792*1024)
    else: srd(a, SW, S_WO, 512*1024)
    srd(a, SWS, S_WS, WS_SIZE)
    if not down: srd(a, SO, S_OUT, 2048*1024)
    vL16, vWO, vWA = 2, 3, 4
    a(f"v_lshlrev_b32 v{vL16}, 4, v0")
    a("v_lshrrev_b32 v7, 3, v0", "v_lshlrev_b32 v7, 10, v7", "v_bfe_u32 v8, v0, 4, 1", "v_lshlrev_b32 v8, 2, v8",
      "v_and_b32 v9, 7, v0", "v_xor_b32 v8, v8, v9", f"v_lshl_add_u32 v{vWO}, v8, 4, v7")
    s_x0, s_x1, s_wo, s_l = 47, 48, 49, 50
    base = WS_HF if down else WS_OF
    a(f"s_lshl_b32 s51, s{s_rt}, 1", f"s_mul_i32 s51, s51, {XB}", f"s_mul_i32 s52, s{s_w}, {NK}", "s_add_u32 s51, s51, s52",
      f"s_lshl_b32 s{s_x0}, s51, 10", f"s_add_u32 s{s_x0}, s{s_x0}, {base:#x}", f"s_add_u32 s{s_x1}, s{s_x0}, {XB*1024}",
      f"s_lshl_b32 s{s_wo}, s52, 14", f"s_lshl_b32 s51, s{s_ct}, 7", f"s_add_u32 s{s_wo}, s{s_wo}, s51",
      f"s_lshl_b32 s{s_l}, s{s_w}, 13")
    XF, WF, ACC = 8, 40, 56
    def issue(n):
        slot = n % D
        a(f"s_add_u32 s51, s{s_wo}, {n*16384}")
        dma(a, vWO, SW, "s51", [f"s_add_u32 m0, s{s_l}, {slot*2048}", f"s_add_u32 s52, s51, 8192"])
        dma(a, vWO, SW, "s52", [f"s_add_u32 m0, s{s_l}, {slot*2048+1024}", f"s_add_u32 s51, s{s_x0}, {n*1024}"])
        a(f"buffer_load_dwordx4 {vr(XF+8*slot,4)}, v{vL16}, s[{SWS}:{SWS+3}], s51 offen",
          f"s_add_u32 s52, s{s_x1}, {n*1024}",
          f"buffer_load_dwordx4 {vr(XF+8*slot+4,4)}, v{vL16}, s[{SWS}:{SWS+3}], s52 offen")
    npre = min(D, NK)
    for n in range(npre): issue(n)
    vRA, vGO = 6, 7
    a("v_lshrrev_b32 v120, 5, v0", "v_bfe_u32 v121, v0, 2, 2", "v_lshl_add_u32 v122, v120, 2, v121", "v_lshlrev_b32 v122, 7, v122",
      "v_lshrrev_b32 v121, 1, v121", "v_lshl_add_u32 v122, v121, 6, v122",
      "v_bfe_u32 v121, v0, 4, 1", "v_lshl_add_u32 v122, v121, 5, v122",
      "v_and_b32 v121, 3, v0", "v_lshl_add_u32 v122, v121, 3, v122",
      f"v_add_u32 v{vWA}, s{s_l}, v122", f"v_xor_b32 v{vWA+1}, 64, v{vWA}")
    def reads(n):
        slot = n % D; p = n % 2
        for cb in range(2):
            for t in range(2):
                a(f"ds_read_b64_tr_b16 {vr(WF+8*p+4*cb+2*t,2)}, v{vWA+cb} offset:{slot*2048+t*1024}")
    def mf(n):
        slot = n % D; p = n % 2
        for i in range(2):
            for cb in range(2):
                a(mfma(ACC+16*(2*i+cb), WF+8*p+4*cb, XF+8*slot+4*i, "0" if n == 0 else None))
    issued = npre
    for n in range(NK):
        a(f"s_waitcnt vmcnt({4*(issued-n-1)})")
        reads(n)
        if n > 0:
            a("s_waitcnt lgkmcnt(4)")
            mf(n-1)
            if issued < NK:
                issue(issued); issued += 1
    a("s_waitcnt lgkmcnt(0)")
    mf(NK-1)
    a("v_and_b32 v120, 31, v0", "v_lshrrev_b32 v121, 5, v0", "v_and_b32 v122, 15, v0", "v_xor_b32 v121, v121, v122",
      "v_lshlrev_b32 v120, 8, v120", "v_lshl_add_u32 v120, v121, 4, v120", f"v_add_u32 v{vWA}, s{s_l}, v120")
    a("v_lshrrev_b32 v120, 4, v0", f"s_lshl_b32 s51, s{s_w}, 2", "v_add_u32 v120, s51, v120",
      "v_and_b32 v121, 15, v120", "v_xor_b32 v121, v121, v122",
      "v_lshlrev_b32 v123, 8, v120", f"v_lshl_add_u32 v{vRA}, v121, 4, v123")
    a("v_lshlrev_b32 v123, 10, v120", f"v_lshl_add_u32 v{vGO}, v122, 3, v123",
      f"s_lshl_b32 s51, s{s_rt}, 16", f"s_lshl_b32 s52, s{s_ct}, 7", "s_add_u32 s51, s51, s52",
      f"s_add_u32 s53, s51, {WS_BB:#x}")
    if not down:
        a("v_lshlrev_b32 v123, 2, v120", f"s_lshl_b32 s54, s{s_rt}, 8", f"s_add_u32 s54, s54, {WS_GG:#x}",
          "s_add_u32 s55, s53, 32768",
          f"buffer_load_dwordx2 v[124:125], v{vGO}, s[{SWS}:{SWS+3}], s53 offen",
          f"buffer_load_dwordx2 v[126:127], v{vGO}, s[{SWS}:{SWS+3}], s55 offen",
          f"buffer_load_dword v122, v123, s[{SWS}:{SWS+3}], s54 offen",
          f"buffer_load_dword v123, v123, s[{SWS}:{SWS+3}], s54 offen offset:128",
          "s_mov_b32 s56, 0xffff0000")
    a("s_nop 7")
    R = 8
    for i in range(2):
        if i == 1: a("s_barrier")
        for cb in range(2):
            for q in range(4):
                k = (cb*8 + 2*q) * 16
                if k: a(f"v_xor_b32 v120, {k}, v{vWA}")
                a(f"ds_write_b128 v{120 if k else vWA}, {vr(ACC+16*(2*i+cb)+4*q,4)}")
        a("s_waitcnt lgkmcnt(0)", "s_barrier")
        for w in range(8): a(f"ds_read_b128 {vr(R+4*w,4)}, v{vRA} offset:{w*8192}")
        for w in range(1, 8):
            a(f"s_waitcnt lgkmcnt({7-w})")
            for j in range(4): a(f"v_add_f32 v{R+j}, v{R+j}, v{R+4*w+j}")
        if down:
            a(f"v_cvt_pk_bf16_f32 v{40+2*i}, v{R}, v{R+1}", f"v_cvt_pk_bf16_f32 v{41+2*i}, v{R+2}, v{R+3}")
            if i == 1: a("s_add_u32 s53, s53, 32768")
            a(f"buffer_store_dwordx2 {vr(40+2*i,2)}, v{vGO}, s[{SWS}:{SWS+3}], s53 offen")
        else:
            g = 122 + i; b = 124 + 2*i
            if i == 0: a("s_waitcnt vmcnt(0)")
            a(f"v_cvt_pk_bf16_f32 v40, v{R}, v{R+1}", f"v_cvt_pk_bf16_f32 v41, v{R+2}, v{R+3}",
              f"v_sub_f32 v42, 1.0, v{g}", "v_cvt_pk_bf16_f32 v42, v42, v42", "v_lshlrev_b32 v42, 16, v42")
            for j in range(2):
                a(f"v_lshlrev_b32 v44, 16, v{40+j}", f"v_and_b32 v45, s56, v{40+j}",
                  f"v_lshlrev_b32 v46, 16, v{b+j}", f"v_and_b32 v47, s56, v{b+j}",
                  f"v_mul_f32 v44, v44, v{g}", f"v_mul_f32 v45, v45, v{g}",
                  "v_mul_f32 v46, v46, v42", "v_mul_f32 v47, v47, v42",
                  "v_cvt_pk_bf16_f32 v44, v44, v45", "v_cvt_pk_bf16_f32 v46, v46, v47",
                  "v_and_b32 v45, s56, v44", "v_lshlrev_b32 v44, 16, v44",
                  "v_and_b32 v47, s56, v46", "v_lshlrev_b32 v46, 16, v46",
                  "v_add_f32 v44, v44, v46", "v_add_f32 v45, v45, v47",
                  f"v_cvt_pk_bf16_f32 v{48+2*i+j}, v44, v45")
            if i == 1: a("s_add_u32 s51, s51, 32768")
            a(f"buffer_store_dwordx2 {vr(48+2*i,2)}, v{vGO}, s[{SO}:{SO+3}], s51 offen")
    a(f"s_branch {end_label}")
```

```python
import sys
from asmlib import *
from roles import *
from attn import *

HEADER = open("gated_mix__softmax_full_mha__glu_gated_bilinear__prompt.s.ref").read().split("; Override launch")[0]

def kernel(a, name, nwg, body, vgpr, sgpr=96):
    a(".text", f".globl {name}", ".p2align 8", f".type {name},@function")
    a.label(name)
    end = f"{name}_end"
    a(f"s_cmp_ge_u32 s2, {nwg}", f"s_cbranch_scc1 {end}")
    load_kernargs(a)
    body(end)
    a.label(end)
    a("s_endpgm")
    return f""".section .rodata,"a"
.p2align 6
.amdhsa_kernel {name}
  .amdhsa_next_free_vgpr {vgpr}
  .amdhsa_next_free_sgpr {sgpr}
  .amdhsa_accum_offset {(vgpr+3)//4*4}
  .amdhsa_group_segment_fixed_size 0
  .amdhsa_kernarg_size 88
  .amdhsa_user_sgpr_count 2
  .amdhsa_user_sgpr_kernarg_segment_ptr 1
  .amdhsa_system_sgpr_workgroup_id_x 1
.end_amdhsa_kernel
"""

def two_roles(a, r0, r1):
    def body(end):
        L = a.newlabel("ROLE1")
        a("s_cmp_ge_u32 s2, 256", f"s_cbranch_scc1 {L}")
        r0(end)
        a.label(L)
        a("s_sub_u32 s2, s2, 256")
        r1(end)
    return body

def build(mode):
    a = Asm()
    a('.amdgcn_target "amdgcn-amd-amdhsa--gfx950"')
    launches = []; descs = []
    def K(name, nwg, body, lds, vgpr=128):
        descs.append(kernel(a, name, nwg, body, vgpr))
        launches.append(f"; @launch kernel={name} grid=({nwg},1,1) block=(512,1,1) lds={lds}")
    if mode == "sep":
        K("qkv_kernel", 256, lambda e: role_qkv(a, 2, 4, e), 4*32768)
        K("up_kernel", 256, lambda e: role_up(a, 2, e), UP_LDS)
        K("attn_kernel", 256, lambda e: role_attn(a, 2, e), ATT_LDS)
        K("down_kernel", 256, lambda e: role_g64(a, 2, e, "down"), 65536)
        K("out_kernel", 256, lambda e: role_g64(a, 2, e, "out"), 65536)
    elif mode == "X":
        K("k1_kernel", 512, two_roles(a, lambda e: role_qkv(a, 2, 2, e), lambda e: role_up(a, 2, e)), UP_LDS)
        K("k2_kernel", 512, two_roles(a, lambda e: role_attn(a, 2, e), lambda e: role_g64(a, 2, e, "down")), 65536)
        K("out_kernel", 256, lambda e: role_g64(a, 2, e, "out"), 65536)
    return HEADER + "\n".join(launches) + "\n" + a.text() + "".join(descs)

if __name__ == "__main__":
    mode = sys.argv[1]; out = sys.argv[2]
    open(out, "w").write(build(mode))
```

```python
class Asm:
    def __init__(self):
        self.lines = []
        self.uid = 0
    def __call__(self, s, *rest):
        for x in (s,) + rest:
            for ln in x.split("\n"):
                ln = ln.rstrip()
                if not ln.strip():
                    continue
                st = ln.strip()
                if st.endswith(":") or st.startswith("."):
                    self.lines.append(st)
                else:
                    self.lines.append("    " + st)
    def c(self, s):
        self.lines.append("    ; " + s)
    def label(self, name):
        self.lines.append(name + ":")
    def newlabel(self, p="L"):
        self.uid += 1
        return f"{p}_{self.uid}"
    prof = False
    def stamp(self, i):
        if self.prof == 2:
            self(f"s_memrealtime s[{64+2*i}:{65+2*i}]")
        elif self.prof:
            self(f"s_memtime s[{64+2*i}:{65+2*i}]")
    def text(self):
        return "\n".join(self.lines) + "\n"

def vr(b, n=1):
    return f"v{b}" if n == 1 else f"v[{b}:{b+n-1}]"
def sr(b, n=1):
    return f"s{b}" if n == 1 else f"s[{b}:{b+n-1}]"
def mfma(d, a, b, c=None):
    cs = vr(d, 16) if c is None else (c if isinstance(c, str) else vr(c, 16))
    return f"v_mfma_f32_32x32x16_bf16 {vr(d,16)}, {vr(a,4)}, {vr(b,4)}, {cs}"
```

```python
import sys
from asmlib import *

NAME = "gated_mix__softmax_full_mha__glu_gated_bilinear__prompt_kernel"
HEADER = open("gated_mix__softmax_full_mha__glu_gated_bilinear__prompt.s.ref").read().split("; Override launch")[0]

WS_QF = 0x000000
WS_KV = 0x200000
WS_OF = 0x600000
WS_HF = 0x800000
WS_GG = 0xF00000
WS_FQ = 0xF04000
WS_FO = 0xF05000
WS_FH = 0xF07000
WS_EP = 0xF08000
WS_SIZE = 0xF09000
WS_PROF = 0x1800000
QSCALE = 0x3EB8AA3B
LOG2E = 0x3FB8AA3B
LDS_BYTES = 81920

S_X, S_WQKV, S_WO, S_WG, S_WU, S_WD, S_GW, S_OUT, S_DBG, S_WS = 4, 6, 8, 12, 14, 16, 18, 20, 22, 24
S_TAG = 26
S_B = 27
SWS = 28
S_W = 44
SC = " sc1"

OPT = dict(prefetch=1, prio=0, prio_b=1, pace=1, sleep_q=4, sleep_o=4)

def srd(a, d, p, nbytes):
    a(f"s_mov_b32 s{d}, s{p}", f"s_and_b32 s{d+1}, s{p+1}, 0xffff",
      f"s_mov_b32 s{d+2}, {hex(nbytes)}", f"s_mov_b32 s{d+3}, 0x00020000")

def dma(a, voff, srd_, soff, pre, imm=0, flags=""):
    for l in pre: a(l)
    o = f" offset:{imm}" if imm else ""
    a(f"buffer_load_dwordx4 v{voff}, s[{srd_}:{srd_+3}], {soff} offen{o}{flags} lds")

def poll(a, s_base, nl, vt, st, sleep=4):
    L = a.newlabel("POLL"); Ld = a.newlabel("POLLD")
    a(f"v_lshlrev_b32 v{vt}, 2, v0", f"s_mov_b32 s{st}, 0x80000")
    if nl < 64: a(f"s_mov_b64 exec, {hex((1 << nl) - 1)}")
    a.label(L)
    a(f"buffer_load_dword v{vt+1}, v{vt}, s[{SWS}:{SWS+3}], s{s_base} offen sc1",
      "s_waitcnt vmcnt(0)",
      f"v_cmp_ne_u32 vcc, s{S_TAG}, v{vt+1}",
      f"s_cbranch_vccz {Ld}",
      f"s_sleep {sleep}",
      f"s_sub_u32 s{st}, s{st}, 1",
      f"s_cbranch_scc0 {L}")
    a.label(Ld)
    if nl < 64: a("s_mov_b64 exec, -1")

def set_flag(a, s_off, vt):
    a(f"v_mov_b32 v{vt}, 0", f"v_mov_b32 v{vt+1}, s{S_TAG}", "s_mov_b64 exec, 1",
      f"buffer_store_dword v{vt+1}, v{vt}, s[{SWS}:{SWS+3}], s{s_off} offen sc1", "s_mov_b64 exec, -1")

def get_tag(a, vt, sd, updater=None):
    srd(a, sd, S_DBG, 256)
    a(f"v_mov_b32 v{vt}, 0", f"s_mov_b32 s{S_TAG}, {WS_EP:#x}",
      f"buffer_load_dword v{vt+1}, v{vt}, s[{SWS}:{SWS+3}], s{S_TAG} offen sc1", "s_waitcnt vmcnt(0)",
      f"buffer_load_dword v{vt+2}, v{vt}, s[{sd}:{sd+3}], 0 offen sc1",
      f"v_readfirstlane_b32 s{S_TAG}, v{vt+1}", "s_waitcnt vmcnt(0)",
      f"v_readfirstlane_b32 s43, v{vt+2}",
      f"s_mul_i32 s{S_TAG}, s{S_TAG}, 1664525", f"s_add_u32 s{S_TAG}, s{S_TAG}, 1013904223", f"s_or_b32 s{S_TAG}, s{S_TAG}, 1",
      "s_cmp_lg_u32 s43, 0", f"s_cselect_b32 s{S_TAG}, s43, s{S_TAG}")
    if updater:
        L = a.newlabel("NOUPD")
        a(f"s_lshl_b32 s43, s{S_B}, 3", f"s_add_u32 s43, s43, s{S_W}", f"s_cmp_lg_u32 s43, {updater}", f"s_cbranch_scc1 {L}",
          f"v_mov_b32 v{vt+1}, s{S_TAG}", f"s_mov_b32 s43, {WS_EP:#x}", "s_mov_b64 exec, 1",
          f"buffer_store_dword v{vt+1}, v{vt}, s[{sd}:{sd+3}], 0 offen sc1", "s_waitcnt vmcnt(0)",
          f"buffer_store_dword v{vt+1}, v{vt}, s[{SWS}:{SWS+3}], s43 offen sc1", "s_mov_b64 exec, -1")
        a.label(L)

def tag_stage(a, stage, vt, sd):
    if stage == 0:
        srd(a, sd, S_DBG, 256)
        a(f"v_mov_b32 v{vt}, 0", f"s_mov_b32 s{S_TAG}, {WS_EP:#x}",
          f"buffer_load_dword v{vt+1}, v{vt}, s[{SWS}:{SWS+3}], s{S_TAG} offen sc1")
    elif stage == 1:
        a("s_waitcnt vmcnt(0)", f"buffer_load_dword v{vt+2}, v{vt}, s[{sd}:{sd+3}], 0 offen sc1")
    else:
        a("s_waitcnt vmcnt(0)", f"v_readfirstlane_b32 s{S_TAG}, v{vt+1}", f"v_readfirstlane_b32 s43, v{vt+2}", "s_nop 3",
          f"s_mul_i32 s{S_TAG}, s{S_TAG}, 1664525", f"s_add_u32 s{S_TAG}, s{S_TAG}, 1013904223", f"s_or_b32 s{S_TAG}, s{S_TAG}, 1",
          "s_cmp_lg_u32 s43, 0", f"s_cselect_b32 s{S_TAG}, s43, s{S_TAG}")

def wg_poll(a, s_base, nl, vt, st, sleep=4):
    L = a.newlabel("NOPOLL")
    a(f"s_cmp_lg_u32 s{S_W}, 0", f"s_cbranch_scc1 {L}")
    poll(a, s_base, nl, vt, st, sleep)
    a.label(L)
    a("s_barrier")

def phase_qkv(a):
    NU = 16; NW = 4; NX = 3
    WU = 12288; XB = 49152
    SX, SW = 32, 36
    s_ct, s_rt = 45, 46
    L_load = a.newlabel("QKV_load"); L_end = a.newlabel("QKV_end")
    a(f"s_and_b32 s47, s{S_B}, 7", f"s_lshr_b32 s48, s{S_B}, 3",
      f"s_and_b32 s{s_rt}, s47, 3", f"s_lshl_b32 s{s_rt}, s{s_rt}, 3", "s_and_b32 s49, s48, 7", f"s_add_u32 s{s_rt}, s{s_rt}, s49",
      f"s_lshr_b32 s{s_ct}, s47, 2", f"s_lshl_b32 s{s_ct}, s{s_ct}, 2", "s_lshr_b32 s49, s48, 3", f"s_add_u32 s{s_ct}, s{s_ct}, s49")
    a(f"s_cmp_ge_u32 s{S_W}, 4", f"s_cbranch_scc1 {L_load}")
    vXA, vWA = 2, 6
    XF, WF, ACC = 12, 20, 44
    vEP = 92
    s_rb, s_ch = 47, 48
    a(f"s_and_b32 s{s_rb}, s{S_W}, 1", f"s_lshr_b32 s{s_ch}, s{S_W}, 1")
    a("v_and_b32 v7, 31, v0", "v_lshrrev_b32 v8, 5, v0", "v_bfe_u32 v9, v0, 1, 3", "v_xor_b32 v9, v9, v8",
      f"s_lshl_b32 s49, s{s_rb}, 12", f"s_add_u32 s49, s49, {XB}",
      "v_lshlrev_b32 v10, 7, v7", "v_add_u32 v10, s49, v10")
    for s in range(4):
        a(f"v_xor_b32 v11, {2*s}, v9", f"v_lshl_add_u32 v{vXA+s}, v11, 4, v10")
    a("v_bfe_u32 v9, v0, 2, 2", "v_lshl_add_u32 v10, v8, 3, v9", "v_lshlrev_b32 v10, 7, v10",
      "v_lshrrev_b32 v9, 1, v9", f"v_xor_b32 v9, s{s_ch}, v9", "v_lshl_add_u32 v10, v9, 6, v10",
      "v_bfe_u32 v9, v0, 4, 1", "v_lshl_add_u32 v10, v9, 5, v10",
      "v_and_b32 v9, 3, v0", f"v_lshl_add_u32 v{vWA}, v9, 3, v10")
    tag_stage(a, 0, vEP, 32)
    def reads(n):
        u = n // 2; s = n % 2; p = n % 2; s4 = n % 4; xs = (n // 4) % NX
        a(f"ds_read_b128 {vr(XF+4*p,4)}, v{vXA+s4} offset:{xs*8192}")
        for mat in range(3):
            for t in range(2):
                a(f"ds_read_b64_tr_b16 {vr(WF+12*p+4*mat+2*t,2)}, v{vWA} offset:{(u%NW)*WU+mat*4096+s*2048+t*512}")
    def mf(n):
        p = n % 2
        for mat in range(3):
            c = "0" if n == 0 else None
            if mat < 2: a(mfma(ACC+16*mat, WF+12*p+4*mat, XF+4*p, c))
            else:       a(mfma(ACC+16*mat, XF+4*p, WF+12*p+4*mat, c))
    for n in range(2*NU):
        if n % 2 == 0:
            if n > 0: a("s_waitcnt lgkmcnt(0)")
            a("s_barrier")
            if n == 0: a.stamp(1)
            reads(n)
            if n > 0: mf(n-1)
            if n == 8: tag_stage(a, 1, vEP, 32)
            if n == 24: tag_stage(a, 2, vEP, 32)
        else:
            reads(n)
            a("s_waitcnt lgkmcnt(7)")
            mf(n-1)
    a("s_waitcnt lgkmcnt(0)")
    mf(2*NU-1)
    a.stamp(2)
    a(f"s_lshl_b32 s49, s{s_ct}, 1", f"s_add_u32 s49, s49, s{s_ch}",
      f"s_lshl_b32 s50, s{s_rt}, 1", f"s_add_u32 s50, s50, s{s_rb}",
      "s_lshl_b32 s56, s49, 6", "s_add_u32 s56, s56, s50", "s_lshl_b32 s56, s56, 2", f"s_add_u32 s56, s56, {WS_FQ:#x}",
      "s_lshl_b32 s49, s49, 7", "s_add_u32 s49, s49, s50",
      "s_lshl_b32 s51, s49, 10",
      "s_lshl_b32 s52, s49, 11", f"s_add_u32 s52, s52, {WS_KV:#x}",
      "s_add_u32 s53, s51, 0x10000", "s_add_u32 s54, s52, 0x20000",
      f"s_mov_b32 s55, {QSCALE:#x}")
    a("v_lshlrev_b32 v2, 4, v0")
    a("v_bfe_u32 v9, v0, 4, 1", "v_lshlrev_b32 v3, 17, v9", "v_lshl_add_u32 v3, v8, 8, v3",
      "v_and_b32 v9, 15, v0", "v_lshl_add_u32 v3, v9, 4, v3")
    P = 12
    for blk in (1, 2, 0):
        if blk == 0:
            for r in range(16): a(f"v_mul_f32 v{ACC+r}, s55, v{ACC+r}")
        for half in range(2):
            d = P + (blk*2+half)*4
            for j in range(4):
                r = ACC + 16*blk + 8*half + 2*j
                a(f"v_cvt_pk_bf16_f32 v{d+j}, v{r}, v{r+1}")
            if blk == 0: a(f"buffer_store_dwordx4 {vr(d,4)}, v2, s[{SWS}:{SWS+3}], s{51 if half==0 else 53} offen{SC}")
            elif blk == 1: a(f"buffer_store_dwordx4 {vr(d,4)}, v2, s[{SWS}:{SWS+3}], s{52 if half==0 else 54} offen{SC}")
            else: a(f"buffer_store_dwordx4 {vr(d,4)}, v3, s[{SWS}:{SWS+3}], s52 offen offset:{1024+512*half}{SC}")
    a("s_waitcnt vmcnt(0)")
    set_flag(a, 56, 4)
    a.stamp(3)
    a(f"s_branch {L_end}")
    a.label(L_load)
    srd(a, SX, S_X, 2048*1024)
    srd(a, SW, S_WQKV, 512*3072)
    s_lw, sG, sL, sX, sLX = 47, 48, 49, 50, 51
    a(f"s_sub_u32 s{s_lw}, s{S_W}, 4")
    a("v_lshrrev_b32 v3, 3, v0", "v_mul_u32_u24 v4, 3072, v3",
      "v_bfe_u32 v5, v0, 4, 1", "v_lshlrev_b32 v5, 2, v5", "v_and_b32 v6, 7, v0", "v_xor_b32 v5, v5, v6",
      "v_lshl_add_u32 v4, v5, 4, v4")
    a("v_bfe_u32 v5, v0, 4, 2", "v_xor_b32 v5, v5, v6", "v_lshlrev_b32 v3, 10, v3",
      "v_lshl_add_u32 v6, v5, 4, v3", "v_xor_b32 v7, 64, v6")
    a(f"s_mul_i32 s{sG}, s{s_lw}, {8*3072}", f"s_lshl_b32 s53, s{s_ct}, 7", f"s_add_u32 s{sG}, s{sG}, s53",
      f"s_lshl_b32 s{sL}, s{s_lw}, 10", f"s_lshl_b32 s{sLX}, s{s_lw}, 11",
      f"s_lshl_b32 s{sX}, s{s_rt}, 16", f"s_lshl_b32 s53, s{s_lw}, 14", f"s_add_u32 s{sX}, s{sX}, s53")
    cnt = []
    def issue(g):
        n = 0
        if g % 2 == 0:
            j = g // 2
            for jj in range(2):
                dma(a, 6+jj, SX, "s53", [f"s_add_u32 m0, s{sLX}, {XB + (j%NX)*8192 + jj*1024}", f"s_add_u32 s53, s{sX}, {jj*8192 + j*128}"]); n += 1
        for mat in range(3):
            dma(a, 4, SW, "s53", [f"s_add_u32 m0, s{sL}, {(g%NW)*WU + mat*4096}", f"s_add_u32 s53, s{sG}, {g*32*3072 + mat*1024}"]); n += 1
        cnt.append(n)
    for g in range(NW): issue(g)
    for u in range(NU):
        a(f"s_waitcnt vmcnt({sum(cnt[u+1:])})", "s_barrier")
        if u >= 1 and len(cnt) < NU: issue(len(cnt))
    get_tag(a, 8, 32)
    a.label(L_end)

def phase_up(a):
    T = 16; NS = 3; GU = 16384; XB = 3*GU
    SX, SG, SU = 32, 36, 40
    s_rt, s_ft = 45, 46
    L_skip = a.newlabel("UP_skip")
    a(f"s_and_b32 s47, s{S_B}, 7", f"s_lshr_b32 s48, s{S_B}, 3", "s_cmp_ge_u32 s48, 28", f"s_cbranch_scc1 {L_skip}",
      f"s_and_b32 s{s_rt}, s47, 3", f"s_lshl_b32 s{s_rt}, s{s_rt}, 2", "s_and_b32 s49, s48, 3", f"s_add_u32 s{s_rt}, s{s_rt}, s49",
      f"s_lshr_b32 s{s_ft}, s47, 2", f"s_mul_i32 s{s_ft}, s{s_ft}, 7", "s_lshr_b32 s49, s48, 2", f"s_add_u32 s{s_ft}, s{s_ft}, s49")
    srd(a, SX, S_X, 2048*1024); srd(a, SG, S_WG, 512*3584); srd(a, SU, S_WU, 512*3584)
    vXO, vGO, vUO, vXA, vWA = 2, 4, 5, 6, 10
    a("v_lshrrev_b32 v12, 3, v0", "v_and_b32 v13, 7, v0", "v_bfe_u32 v14, v0, 4, 2", "v_xor_b32 v14, v14, v13",
      "v_lshlrev_b32 v12, 10, v12", f"v_lshl_add_u32 v{vXO}, v14, 4, v12", f"v_xor_b32 v{vXO+1}, 64, v{vXO}")
    a("v_lshrrev_b32 v12, 4, v0", "v_and_b32 v13, 15, v0", "v_lshlrev_b32 v14, 1, v12", "v_xor_b32 v13, v13, v14",
      "v_mul_u32_u24 v12, 3584, v12", f"v_lshl_add_u32 v{vGO}, v13, 4, v12",
      "v_xor_b32 v13, 8, v13", f"v_lshl_add_u32 v{vUO}, v13, 4, v12")
    s_xo, s_wo, s_lx, s_lg = 47, 48, 49, 50
    a(f"s_lshl_b32 s{s_xo}, s{s_rt}, 17", f"s_lshl_b32 s52, s{S_W}, 14", f"s_add_u32 s{s_xo}, s{s_xo}, s52",
      f"s_lshl_b32 s{s_wo}, s{s_ft}, 8", f"s_mul_i32 s52, s{S_W}, {4*3584}", f"s_add_u32 s{s_wo}, s{s_wo}, s52",
      f"s_lshl_b32 s{s_lx}, s{S_W}, 11", f"s_lshl_b32 s{s_lg}, s{S_W}, 10")
    cnt = []
    def issue(g):
        n = 0
        if g % 2 == 0:
            j = g // 2
            for jj in range(2):
                dma(a, vXO+jj, SX, "s52", [f"s_add_u32 m0, s{s_lx}, {XB + (j%2)*16384 + jj*1024}", f"s_add_u32 s52, s{s_xo}, {jj*8192 + j*128}"]); n += 1
        dma(a, vGO, SG, "s52", [f"s_add_u32 m0, s{s_lg}, {(g%NS)*GU}", f"s_add_u32 s52, s{s_wo}, {g*32*3584}"])
        dma(a, vUO, SU, "s52", [f"s_add_u32 m0, s{s_lg}, {(g%NS)*GU + 8192}", "s_nop 0"])
        cnt.append(n + 2)
    a("s_barrier")
    issue(0); issue(1)
    s_rp, s_fp = 53, 54
    a(f"s_and_b32 s{s_rp}, s{S_W}, 1", f"s_lshr_b32 s{s_fp}, s{S_W}, 1")
    a("v_and_b32 v12, 31, v0", "v_lshrrev_b32 v13, 5, v0", "v_bfe_u32 v14, v0, 1, 3", "v_xor_b32 v14, v14, v13",
      f"s_lshl_b32 s52, s{s_rp}, 13", f"s_add_u32 s52, s52, {XB}", "v_lshlrev_b32 v12, 7, v12", "v_add_u32 v12, s52, v12")
    for s in range(4):
        a(f"v_xor_b32 v15, {2*s}, v14", f"v_lshl_add_u32 v{vXA+s}, v15, 4, v12")
    a("v_bfe_u32 v14, v0, 2, 2", "v_lshl_add_u32 v12, v13, 3, v14", "v_lshlrev_b32 v12, 8, v12",
      "v_bfe_u32 v15, v0, 4, 1", "v_lshl_add_u32 v12, v15, 13, v12",
      "v_and_b32 v13, 3, v0", "v_lshl_add_u32 v12, v13, 3, v12",
      "v_bfe_u32 v14, v0, 2, 3",
      f"s_lshl_b32 s52, s{s_fp}, 1", "v_xor_b32 v14, s52, v14",
      f"v_lshl_add_u32 v{vWA}, v14, 5, v12", f"v_xor_b32 v{vWA+1}, 32, v{vWA}")
    XF, WF, ACC = 16, 32, 48
    if OPT["prio_b"]: a(f"s_setprio {OPT['prio_b']}")
    def rx(n, i):
        p = n % 2; s4 = n % 4; xs = (n // 4) % 2
        a(f"ds_read_b128 {vr(XF+8*p+4*i,4)}, v{vXA+s4} offset:{xs*16384 + i*4096}")
    def rw(n, f):
        g = n // 2; s = n % 2; p = n % 2
        for t in range(2):
            a(f"ds_read_b64_tr_b16 {vr(WF+8*p+4*f+2*t,2)}, v{vWA+f} offset:{(g%NS)*GU+(16*s+4*t)*256}")
    def m1(n, i, f):
        p = n % 2
        a(mfma(ACC+16*(2*i+f), WF+8*p+4*f, XF+8*p+4*i, "0" if n == 0 else None))
    if OPT["pace"] == 0:
        for n in range(2*T):
            g = n // 2
            if n % 2 == 0: a(f"s_waitcnt vmcnt({sum(cnt[g+1:])}) lgkmcnt(0)", "s_barrier")
            rx(n, 0); rx(n, 1); rw(n, 0); rw(n, 1)
            if n % 2 == 0:
                if len(cnt) < T: issue(len(cnt))
            else: a("s_waitcnt lgkmcnt(6)")
            if n > 0:
                for i in range(2):
                    for f in range(2): m1(n-1, i, f)
        a("s_waitcnt lgkmcnt(0)")
        for i in range(2):
            for f in range(2): m1(2*T-1, i, f)
    else:
        for n in range(2*T):
            g = n // 2
            if n % 2 == 0: a(f"s_waitcnt vmcnt({sum(cnt[g+1:])})", "s_barrier")
            rx(n, 0); rw(n, 0)
            if n % 2 == 0 and len(cnt) < T: issue(len(cnt))
            if n > 0: m1(n-1, 1, 0)
            a("s_waitcnt lgkmcnt(0)"); m1(n, 0, 0)
            rw(n, 1); a("s_waitcnt lgkmcnt(0)"); m1(n, 0, 1)
            rx(n, 1); a("s_waitcnt lgkmcnt(0)"); m1(n, 1, 1)
        m1(2*T-1, 1, 0)
        a("s_nop 7")
    a(f"s_lshl_b32 s52, s{s_rt}, 1", f"s_add_u32 s52, s52, s{s_rp}", "s_mul_i32 s52, s52, 224",
      f"s_lshl_b32 s55, s{s_ft}, 3", "s_add_u32 s52, s52, s55", f"s_lshl_b32 s55, s{s_fp}, 1", "s_add_u32 s52, s52, s55",
      "s_lshl_b32 s52, s52, 10", f"s_add_u32 s52, s52, {WS_HF:#x}", f"s_add_u32 s55, s52, {112*1024}",
      f"s_lshl_b32 s56, s{s_rt}, 5", f"s_add_u32 s56, s56, s{s_ft}", "s_lshl_b32 s56, s56, 2", f"s_add_u32 s56, s56, {WS_FH:#x}",
      "v_lshlrev_b32 v2, 4, v0")
    for i in range(2):
        for f in range(2):
            A = ACC + 16*(2*i+f)
            for j in range(0, 8, 2): a(f"v_pk_mul_f32 {vr(A+j,2)}, {vr(A+j,2)}, {vr(A+8+j,2)}")
            for j in range(4): a(f"v_cvt_pk_bf16_f32 v{A+8+j}, v{A+2*j}, v{A+2*j+1}")
            a(f"buffer_store_dwordx4 {vr(A+8,4)}, v2, s[{SWS}:{SWS+3}], s{52 if i==0 else 55} offen offset:{f*1024}{SC}")
    a("s_waitcnt vmcnt(0)", "s_barrier")
    Lnf = a.newlabel("UP_nf"); Lj = a.newlabel("UP_j")
    a(f"s_cmp_lg_u32 s{S_W}, 0", f"s_cbranch_scc1 {Lj}")
    set_flag(a, 56, 4)
    a(f"s_branch {Lj}")
    a.label(L_skip)
    a("s_barrier")
    a.label(Lj)

def phase_down_out(a):
    NK = 14; D = 4
    SW, SO = 32, 36
    s_rt, s_ct = 45, 46
    a(f"s_and_b32 s47, s{S_B}, 7", f"s_lshr_b32 s48, s{S_B}, 3",
      f"s_lshl_b32 s{s_rt}, s47, 2", "s_and_b32 s47, s48, 3", f"s_add_u32 s{s_rt}, s{s_rt}, s47",
      f"s_lshr_b32 s{s_ct}, s48, 2")
    srd(a, SW, S_WD, 1792*1024)
    if OPT["prio_b"]: a(f"s_setprio {OPT['prio_b']}")
    vL16, vWO, vWA = 2, 3, 4
    a(f"v_lshlrev_b32 v{vL16}, 4, v0")
    a("v_lshrrev_b32 v7, 3, v0", "v_lshlrev_b32 v7, 10, v7", "v_bfe_u32 v8, v0, 4, 1", "v_lshlrev_b32 v8, 2, v8",
      "v_and_b32 v9, 7, v0", "v_xor_b32 v8, v8, v9", f"v_lshl_add_u32 v{vWO}, v8, 4, v7")
    s_x0, s_x1, s_wo, s_l = 47, 48, 49, 50
    a(f"s_mul_i32 s51, s{s_rt}, 224", f"s_mul_i32 s52, s{S_W}, {NK}", "s_add_u32 s51, s51, s52",
      f"s_lshl_b32 s{s_x0}, s51, 10", f"s_add_u32 s{s_x0}, s{s_x0}, {WS_HF:#x}", f"s_add_u32 s{s_x1}, s{s_x0}, {112*1024}",
      f"s_lshl_b32 s{s_wo}, s52, 14", f"s_lshl_b32 s51, s{s_ct}, 7", f"s_add_u32 s{s_wo}, s{s_wo}, s51",
      f"s_lshl_b32 s{s_l}, s{S_W}, 13")
    XF, WF, ACC = 8, 40, 56
    def issue_w(n):
        slot = n % D
        dma(a, vWO, SW, "s51", [f"s_add_u32 m0, s{s_l}, {slot*2048}", f"s_add_u32 s51, s{s_wo}, {n*16384}"])
        dma(a, vWO, SW, "s52", [f"s_add_u32 m0, s{s_l}, {slot*2048+1024}", f"s_add_u32 s52, s51, 8192"])
    def issue_x(n):
        slot = n % D
        a(f"s_add_u32 s51, s{s_x0}, {n*1024}", f"s_add_u32 s52, s{s_x1}, {n*1024}",
          f"buffer_load_dwordx4 {vr(XF+8*slot,4)}, v{vL16}, s[{SWS}:{SWS+3}], s51 offen{SC}",
          f"buffer_load_dwordx4 {vr(XF+8*slot+4,4)}, v{vL16}, s[{SWS}:{SWS+3}], s52 offen{SC}")
    for n in range(D): issue_w(n)
    a("v_lshrrev_b32 v120, 5, v0", "v_bfe_u32 v121, v0, 2, 2", "v_lshl_add_u32 v122, v120, 2, v121", "v_lshlrev_b32 v122, 7, v122",
      "v_lshrrev_b32 v121, 1, v121", "v_lshl_add_u32 v122, v121, 6, v122",
      "v_bfe_u32 v121, v0, 4, 1", "v_lshl_add_u32 v122, v121, 5, v122",
      "v_and_b32 v121, 3, v0", "v_lshl_add_u32 v6, v121, 3, v122",
      f"v_add_u32 v{vWA}, s{s_l}, v6", f"v_xor_b32 v{vWA+1}, 64, v{vWA}")
    a(f"s_lshr_b32 s53, s{s_rt}, 1", "s_lshl_b32 s53, s53, 7", f"s_add_u32 s53, s53, {WS_FH:#x}")
    a.stamp(0)
    wg_poll(a, 53, 14, 120, 54)
    for n in range(D): issue_x(n)
    def reads(n):
        slot = n % D; p = n % 2
        for cb in range(2):
            for t in range(2):
                a(f"ds_read_b64_tr_b16 {vr(WF+8*p+4*cb+2*t,2)}, v{vWA+cb} offset:{slot*2048+t*1024}")
    def mf(n):
        slot = n % D; p = n % 2
        for i in range(2):
            for cb in range(2):
                a(mfma(ACC+16*(2*i+cb), WF+8*p+4*cb, XF+8*slot+4*i, "0" if n == 0 else None))
    cnt = [2]*D
    if OPT["pace"] == 0:
        for n in range(NK):
            a(f"s_waitcnt vmcnt({sum(cnt[n+1:])})")
            reads(n)
            if n > 0:
                a("s_waitcnt lgkmcnt(4)")
                mf(n-1)
                if len(cnt) < NK:
                    issue_w(len(cnt)); issue_x(len(cnt)); cnt.append(4)
        a("s_waitcnt lgkmcnt(0)")
        mf(NK-1)
    else:
        for n in range(NK):
            slot = n % D
            a(f"s_waitcnt vmcnt({sum(cnt[n+1:])})")
            for cb in range(2):
                for t in range(2):
                    a(f"ds_read_b64_tr_b16 {vr(WF+4*cb+2*t,2)}, v{vWA+cb} offset:{slot*2048+t*1024}")
                a("s_waitcnt lgkmcnt(0)")
                for i in range(2):
                    a(mfma(ACC+16*(2*i+cb), WF+4*cb, XF+8*slot+4*i, "0" if n == 0 else None))
            if len(cnt) < NK:
                issue_w(len(cnt)); issue_x(len(cnt)); cnt.append(4)
    s_i, s_kq = 53, 54
    vRA = 7
    a(f"s_and_b32 s{s_i}, s{S_W}, 1", f"s_lshr_b32 s{s_kq}, s{S_W}, 1")
    a("v_and_b32 v120, 31, v0", "v_lshrrev_b32 v121, 5, v0", "v_and_b32 v122, 15, v0", "v_xor_b32 v121, v121, v122",
      "v_lshlrev_b32 v120, 8, v120", "v_lshl_add_u32 v120, v121, 4, v120", f"v_add_u32 v{vWA}, s{s_l}, v120",
      f"s_lshl_b32 s51, s{s_kq}, 6", f"v_xor_b32 v{vRA}, s51, v120", f"v_xor_b32 v{vWA+1}, 32, v{vRA}")
    a("s_nop 7")
    R = 8; Bq = 124
    for i in range(2):
        if i == 1: a("s_barrier")
        for cb in range(2):
            for q in range(4):
                k = (cb*8 + 2*q) * 16
                if k: a(f"v_xor_b32 v120, {k}, v{vWA}")
                a(f"ds_write_b128 v{120 if k else vWA}, {vr(ACC+16*(2*i+cb)+4*q,4)}")
        a("s_waitcnt lgkmcnt(0)", "s_barrier")
        Ls = a.newlabel("DN_skip")
        a(f"s_cmp_lg_u32 s{s_i}, {i}", f"s_cbranch_scc1 {Ls}")
        for h in range(2):
            ad = vRA if h == 0 else vWA+1
            for w in range(8): a(f"ds_read_b128 {vr(R+4*w,4)}, v{ad} offset:{w*8192}")
            for w in range(1, 8):
                a(f"s_waitcnt lgkmcnt({7-w})")
                for j in range(0, 4, 2): a(f"v_pk_add_f32 {vr(R+j,2)}, {vr(R+j,2)}, {vr(R+4*w+j,2)}")
            a(f"v_cvt_pk_bf16_f32 v{Bq+2*h}, v{R}, v{R+1}", f"v_cvt_pk_bf16_f32 v{Bq+2*h+1}, v{R+2}, v{R+3}")
        a.label(Ls)
    a("s_barrier")
    a.stamp(4)
    srd(a, SW, S_WO, 512*1024); srd(a, SO, S_OUT, 2048*1024)
    a(f"s_lshl_b32 s51, s{s_kq}, 1", f"s_add_u32 s51, s51, s{s_i}", "s_lshl_b32 s51, s51, 16",
      f"s_lshl_b32 s52, s{s_ct}, 7", f"s_add_u32 s{s_wo}, s51, s52",
      f"s_lshl_b32 s{s_l}, s{s_i}, 15", f"s_lshl_b32 s52, s{s_kq}, 13", f"s_add_u32 s{s_l}, s{s_l}, s52", f"s_add_u32 s{s_l}, s{s_l}, 16384")
    for n in range(8):
        dma(a, vWO, SW, "s51", [f"s_add_u32 m0, s{s_l}, {n*1024}", f"s_add_u32 s51, s{s_wo}, {n*8192}"])
    vG = 122
    a("v_and_b32 v120, 31, v0", "v_lshlrev_b32 v121, 3, v120",
      f"s_lshl_b32 s55, s{s_rt}, 1", f"s_add_u32 s55, s55, s{s_i}",
      "s_lshl_b32 s56, s55, 8", f"s_add_u32 s56, s56, {WS_GG:#x}", "s_mov_b32 s57, 0x200000")
    Lg = a.newlabel("GPOLL"); Lgd = a.newlabel("GPOLLD")
    a.label(Lg)
    a(f"buffer_load_dwordx2 v[{vG}:{vG+1}], v121, s[{SWS}:{SWS+3}], s56 offen sc1", "s_waitcnt vmcnt(0)",
      f"v_cmp_ne_u32 vcc, s{S_TAG}, v{vG+1}", f"s_cbranch_vccz {Lgd}", "s_sleep 1", "s_sub_u32 s57, s57, 1", f"s_cbranch_scc0 {Lg}")
    a.label(Lgd)
    a("s_barrier")
    a(f"v_sub_f32 v{vG+1}, 1.0, v{vG}", f"v_cvt_pk_bf16_f32 v{vG+1}, v{vG+1}, v{vG+1}", f"v_lshlrev_b32 v{vG+1}, 16, v{vG+1}",
      "s_mov_b32 s58, 0xffff0000")
    for j in range(4):
        a(f"v_lshlrev_b32 v120, 16, v{Bq+j}", f"v_and_b32 v121, s58, v{Bq+j}",
          f"v_mul_f32 v120, v120, v{vG+1}", f"v_mul_f32 v121, v121, v{vG+1}",
          f"v_cvt_pk_bf16_f32 v{Bq+j}, v120, v121")
    XF, WF, ACC = 8, 40, 72
    a(f"s_lshl_b32 s52, s{s_kq}, 13", "s_add_u32 s52, s52, 16384", f"v_add_u32 v{vWA}, s52, v6", f"v_xor_b32 v{vWA+1}, 64, v{vWA}")
    def wreads(st):
        for cb in range(2):
            for t in range(2):
                a(f"ds_read_b64_tr_b16 {vr(WF+8*(st%4)+4*cb+2*t,2)}, v{vWA+cb} offset:{(st//4)*32768+(st%4)*2048+t*1024}")
    for st in range(4): wreads(st)
    a("s_lshl_b32 s56, s55, 5", f"s_lshl_b32 s51, s{s_kq}, 3", "s_add_u32 s56, s56, s51",
      "s_lshl_b32 s59, s56, 10", f"s_add_u32 s59, s59, {WS_OF:#x}", "s_add_u32 s60, s59, 4096",
      f"s_lshl_b32 s56, s{s_rt}, 8", f"s_add_u32 s56, s56, {WS_FO:#x}")
    a("v_and_b32 v120, 31, v0", "v_lshlrev_b32 v120, 10, v120", "v_lshrrev_b32 v121, 5, v0", "v_lshl_add_u32 v3, v121, 4, v120",
      "s_lshl_b32 s61, s55, 15", f"s_lshl_b32 s51, s{s_ct}, 7", "s_add_u32 s61, s61, s51", f"s_lshl_b32 s51, s{s_kq}, 5", "s_add_u32 s61, s61, s51")
    a("s_waitcnt lgkmcnt(0)")
    wg_poll(a, 56, 64, 120, 57, OPT["sleep_o"])
    a.stamp(5)
    for st in range(8):
        a(f"buffer_load_dwordx4 {vr(XF+4*st,4)}, v{vL16}, s[{SWS}:{SWS+3}], s{59 if st<4 else 60} offen offset:{(st%4)*1024}{SC}")
    for st in range(8):
        w = f"s_waitcnt vmcnt({7-st})"
        if st >= 4: w += f" lgkmcnt({4*(7-st)})"
        a(w)
        for cb in range(2):
            a(mfma(ACC+16*cb, WF+8*(st%4)+4*cb, XF+4*st, "0" if st == 0 else None))
        if st < 4: wreads(st+4)
    a(f"s_mul_i32 s51, s{s_i}, {4*3*2048}", f"v_add_u32 v{vWA}, s51, v{vL16}",
      f"s_mul_i32 s52, s{s_kq}, {3*2048}", f"v_add_u32 v{vWA+1}, s52, v{vWA}", "s_nop 7", "s_nop 1")
    KEEP = 104
    Lj = a.newlabel("OUT_j")
    labs = [a.newlabel("OUT_k") for _ in range(4)]
    for kq in range(1, 4): a(f"s_cmp_eq_u32 s{s_kq}, {kq}", f"s_cbranch_scc1 {labs[kq]}")
    for kq in range(4):
        a.label(labs[kq])
        for q in range(4):
            if q == kq: continue
            rank = kq if kq < q else kq - 1
            for h in range(2):
                a(f"ds_write_b128 v{vWA}, {vr(ACC+8*q+4*h,4)} offset:{(q*3+rank)*2048+h*1024}")
        for j in range(0, 8, 2): a(f"v_pk_add_f32 {vr(KEEP+j,2)}, {vr(ACC+8*kq+j,2)}, 0")
        if kq < 3: a(f"s_branch {Lj}")
    a.label(Lj)
    a("s_waitcnt lgkmcnt(0)", "s_barrier")
    for r in range(3):
        for h in range(2): a(f"ds_read_b128 {vr(8+8*r+4*h,4)}, v{vWA+1} offset:{r*2048+h*1024}")
    for r in range(3):
        a(f"s_waitcnt lgkmcnt({4-2*r})")
        for j in range(0, 8, 2): a(f"v_pk_add_f32 {vr(KEEP+j,2)}, {vr(KEEP+j,2)}, {vr(8+8*r+j,2)}")
    for j in range(4):
        a(f"v_cvt_pk_bf16_f32 v40, v{KEEP+2*j}, v{KEEP+2*j+1}",
          "v_and_b32 v41, s58, v40", "v_lshlrev_b32 v40, 16, v40",
          f"v_mul_f32 v40, v40, v{vG}", f"v_mul_f32 v41, v41, v{vG}",
          "v_cvt_pk_bf16_f32 v40, v40, v41",
          "v_and_b32 v41, s58, v40", "v_lshlrev_b32 v40, 16, v40",
          f"v_lshlrev_b32 v42, 16, v{Bq+j}", f"v_and_b32 v43, s58, v{Bq+j}",
          "v_add_f32 v40, v40, v42", "v_add_f32 v41, v41, v43",
          f"v_cvt_pk_bf16_f32 v{44+j}, v40, v41")
    a("s_nop 1", "v_permlane32_swap_b32 v44, v46", "v_permlane32_swap_b32 v45, v47",
      f"buffer_store_dwordx4 v[44:47], v3, s[{SO}:{SO+3}], s61 offen")

TS = 2080
HALF = 16*TS
ORDER = "e0 e1 N e2 e3 c0 e4 e5 c1 S M e6 e7 c2 e8 e9 c3 e10 e11 c4 e12 P e13 c5 e14 e15 c6 c7"
def role_attn(a, end_label):
    s_head, s_qb, s_qw, s_kh = 45, 46, 47, 48
    s_kv, s_l, s_q, s_cnt = 49, 50, 51, 52
    sEX = 54
    s_src = 56
    S1, S2 = 32, 36
    vL16, vKA, vVA = 1, 2, 3
    Q = 4; K = 12; V = 16; P = 32; C = 40; S = 56; O = 88; T0 = 120
    vVB = 127
    a(f"s_and_b32 s45, s{S_B}, 7", f"s_lshr_b32 s46, s{S_B}, 3", "s_and_b32 s47, s45, 3", "s_lshr_b32 s48, s45, 2")
    srd(a, S1, S_X, 2048*1024)
    if OPT["prefetch"] & 1:
        Lw = a.newlabel("PF_w"); Ld = a.newlabel("PF_d")
        a(f"s_cmp_ge_u32 s{S_W}, 5", f"s_cbranch_scc1 {Ld}", f"s_cmp_ge_u32 s{S_W}, 2", f"s_cbranch_scc1 {Lw}")
        a("s_lshl_b32 s49, s47, 19", "s_lshl_b32 s50, s46, 14", "s_add_u32 s49, s49, s50", f"s_lshl_b32 s50, s{S_W}, 13", "s_add_u32 s49, s49, s50",
          "v_lshlrev_b32 v2, 7, v0", f"buffer_load_dword v126, v2, s[{S1}:{S1+3}], s49 offen", f"s_branch {Ld}")
        a.label(Lw)
        srd(a, S2, S_WQKV, 512*3072)
        a("s_mul_i32 s49, s46, 49152", f"s_sub_u32 s50, s{S_W}, 2", "s_lshl_b32 s50, s50, 10", "s_add_u32 s49, s49, s50",
          "s_lshl_b32 s50, s48, 9", "s_add_u32 s49, s49, s50",
          "v_lshrrev_b32 v2, 2, v0", "v_mul_u32_u24 v2, 3072, v2", "v_and_b32 v3, 3, v0", "v_lshl_add_u32 v2, v3, 7, v2",
          f"buffer_load_dword v126, v2, s[{S2}:{S2+3}], s49 offen")
        a.label(Ld)
    srd(a, S2, S_GW, 1024)
    a(f"v_lshlrev_b32 v{vL16}, 4, v0", f"s_lshl_b32 s53, s{S_B}, 3", f"s_add_u32 s53, s53, s{S_W}", "s_lshl_b32 s49, s53, 10",
      f"buffer_load_dwordx4 v[8:11], v{vL16}, s[{S2}:{S2+3}], 0 offen",
      f"buffer_load_dwordx4 v[12:15], v{vL16}, s[{S1}:{S1+3}], s49 offen")
    a("v_and_b32 v2, 31, v0", f"v_mul_u32_u24 v2, {TS}, v2", "v_lshrrev_b32 v3, 5, v0", "v_lshl_add_u32 v2, v3, 4, v2",
      "v_cmp_eq_u32 vcc, 0, v3", "v_mov_b32 v4, 0x3f803f80", "s_nop 0", "v_cndmask_b32 v4, 0, v4, vcc",
      "v_mov_b32 v5, v4", "v_mov_b32 v6, v4", "v_mov_b32 v7, v4",
      "ds_write_b128 v2, v[4:7] offset:2048")
    get_tag(a, 30, S1, updater=1)
    if OPT["prefetch"] & 2:
        Lu = a.newlabel("PF_u"); Lc = a.newlabel("PF_c")
        a(f"s_cmp_ge_u32 s{S_W}, 4", f"s_cbranch_scc1 {Lu}")
        srd(a, S2, S_WG, 512*3584)
        a(f"s_branch {Lc}")
        a.label(Lu)
        srd(a, S2, S_WU, 512*3584)
        a.label(Lc)
        a("s_lshl_b32 s49, s46, 2", f"s_and_b32 s50, s{S_W}, 3", "s_add_u32 s49, s49, s50", f"s_mul_i32 s49, s49, {4*3584}",
          "s_mul_i32 s50, s48, 1792", "s_add_u32 s49, s49, s50",
          "v_lshrrev_b32 v2, 4, v0", "v_mul_u32_u24 v2, 3584, v2", "v_and_b32 v3, 15, v0", "v_min_u32 v3, 13, v3", "v_lshl_add_u32 v2, v3, 7, v2",
          f"buffer_load_dword v126, v2, s[{S2}:{S2+3}], s49 offen")
    a("s_mov_b32 s57, 0xffff0000")
    acc = 28
    for j in range(4):
        a(f"v_lshlrev_b32 v16, 16, v{8+j}", f"v_and_b32 v17, s57, v{8+j}",
          f"v_lshlrev_b32 v18, 16, v{12+j}", f"v_and_b32 v19, s57, v{12+j}",
          "v_mul_f32 v18, v18, v16", "v_mul_f32 v19, v19, v17",
          "v_cvt_pk_bf16_f32 v18, v18, v19", "v_and_b32 v19, s57, v18", "v_lshlrev_b32 v18, 16, v18")
        if j == 0: a(f"v_add_f32 v{acc}, v18, v19")
        else: a(f"v_add_f32 v{acc}, v{acc}, v18", f"v_add_f32 v{acc}, v{acc}, v19")
    for sh in (8, 4, 2, 1):
        a("s_nop 1", f"v_add_f32_dpp v{acc}, v{acc}, v{acc} row_ror:{sh} row_mask:0xf bank_mask:0xf")
    a("s_nop 1")
    for q in range(4): a(f"v_readlane_b32 s{58+q}, v{acc}, {16*q}")
    a("s_nop 1", f"v_mov_b32 v{acc}, s58", f"v_add_f32 v{acc}, s59, v{acc}", f"v_add_f32 v{acc}, s60, v{acc}", f"v_add_f32 v{acc}, s61, v{acc}")
    a(f"v_cvt_pk_bf16_f32 v{acc}, v{acc}, v{acc}", f"v_lshlrev_b32 v{acc}, 16, v{acc}",
      f"v_mul_f32 v{acc}, {(LOG2E | 0x80000000):#x}, v{acc}", f"v_exp_f32 v{acc}, v{acc}", "s_nop 0",
      f"v_add_f32 v{acc}, 1.0, v{acc}", f"v_rcp_f32 v{acc}, v{acc}", "s_nop 0",
      f"v_cvt_pk_bf16_f32 v{acc}, v{acc}, v{acc}", f"v_lshlrev_b32 v{acc}, 16, v{acc}",
      f"v_mov_b32 v{acc+1}, s{S_TAG}", "v_mov_b32 v2, 0",
      "s_lshl_b32 s53, s53, 3", f"s_add_u32 s53, s53, {WS_GG:#x}", "s_mov_b64 exec, 1",
      f"buffer_store_dwordx2 v[{acc}:{acc+1}], v2, s[{SWS}:{SWS+3}], s53 offen sc1", "s_mov_b64 exec, -1")
    a("s_waitcnt vmcnt(0)")
    if OPT["prefetch"] & 4:
        L7 = a.newlabel("PF_7"); Lc = a.newlabel("PF_c3")
        a("v_lshlrev_b32 v2, 7, v0", f"s_cmp_eq_u32 s{S_W}, 7", f"s_cbranch_scc1 {L7}")
        srd(a, S2, S_WD, 1792*1024)
        a("s_mul_i32 s49, s46, 7", f"s_add_u32 s49, s49, s{S_W}", "s_lshl_b32 s49, s49, 13",
          f"buffer_load_dword v126, v2, s[{S2}:{S2+3}], s49 offen", f"s_branch {Lc}")
        a.label(L7)
        srd(a, S2, S_WO, 512*1024)
        a("s_lshl_b32 s49, s46, 14", "s_add_u32 s50, s49, 8192",
          f"buffer_load_dword v126, v2, s[{S2}:{S2+3}], s49 offen", f"buffer_load_dword v125, v2, s[{S2}:{S2+3}], s50 offen")
        a.label(Lc)
    a(f"s_and_b32 s{s_head}, s{S_B}, 7", f"s_lshl_b32 s{s_head}, s{s_head}, 2",
      f"s_bfe_u32 s53, s{S_B}, 0x20003", f"s_add_u32 s{s_head}, s{s_head}, s53",
      f"s_lshr_b32 s{s_qb}, s{S_B}, 5",
      f"s_and_b32 s{s_qw}, s{S_W}, 3", f"s_lshr_b32 s{s_kh}, s{S_W}, 2",
      f"s_mov_b32 s{sEX}, 0xffff", f"s_mov_b32 s{sEX+1}, 0xffff")
    a(f"s_lshl_b32 s{s_kv}, s{s_head}, 17", f"s_add_u32 s{s_kv}, s{s_kv}, {WS_KV:#x}",
      f"s_lshl_b32 s{s_q}, s{s_head}, 6", f"s_lshl_b32 s53, s{s_qb}, 3", f"s_add_u32 s{s_q}, s{s_q}, s53",
      f"s_lshl_b32 s53, s{s_qw}, 1", f"s_add_u32 s{s_q}, s{s_q}, s53", f"s_lshl_b32 s{s_q}, s{s_q}, 10")
    a(f"s_lshl_b32 s{s_src}, s{s_kh}, 16", f"s_add_u32 s{s_src}, s{s_src}, s{s_kv}",
      f"s_lshl_b32 s53, s{s_qw}, 11", f"s_add_u32 s{s_src}, s{s_src}, s53",
      f"s_mul_i32 s{s_l}, s{s_kh}, {HALF}", f"s_mul_i32 s53, s{s_qw}, {TS}", f"s_add_u32 s57, s{s_l}, s53")
    a(f"v_add_u32 v{vKA}, s{s_l}, v{vL16}",
      f"v_lshrrev_b32 v{T0}, 5, v0", f"v_lshlrev_b32 v{T0}, 8, v{T0}", f"v_and_b32 v{T0+1}, 15, v0",
      f"v_lshl_add_u32 v{T0}, v{T0+1}, 4, v{T0}",
      f"v_and_b32 v{T0+1}, 11, v0", f"v_cmp_eq_u32 vcc, 0, v{T0+1}", f"v_mov_b32 v{T0+2}, 16", "s_nop 0",
      f"v_cndmask_b32 v{T0+2}, v{T0+2}, 0, vcc",
      f"v_add_u32 v{T0+3}, 1024, v{T0+2}", f"v_add_u32 v{T0+2}, 512, v{T0+2}",
      f"v_cndmask_b32 v{vVA}, v{T0+3}, v{T0}, s[{sEX}:{sEX+1}]", f"v_cndmask_b32 v{vVB}, v{T0+2}, v{T0}, s[{sEX}:{sEX+1}]",
      f"v_add_u32 v{vVA}, s{s_l}, v{vVA}", f"v_add_u32 v{vVB}, s{s_l}, v{vVB}")
    for r in range(4): a(f"v_mov_b32 v{V+12+r}, 0", f"v_mov_b32 v{P+4+r}, 0")
    for r in range(32): a(f"v_mov_b32 v{O+r}, 0")
    a(f"s_lshr_b32 s53, s{s_head}, 1", "s_lshl_b32 s53, s53, 8", f"s_add_u32 s53, s53, {WS_FQ:#x}")
    a.stamp(0)
    a("s_waitcnt lgkmcnt(0)")
    wg_poll(a, 53, 64, T0, 58, OPT["sleep_q"])
    a("s_waitcnt vmcnt(0)")
    a.stamp(1)
    if OPT["prio"]: a(f"s_setprio {OPT['prio']}")
    def issue_chunk(slot):
        for h in range(2):
            a(f"s_add_u32 m0, s57, {(slot*8+4*h)*TS}")
            if h == 0: a("s_nop 0")
            else: a(f"s_add_u32 s{s_src}, s{s_src}, 8192")
            a(f"buffer_load_dwordx4 v{vL16}, s[{SWS}:{SWS+3}], s{s_src} offen{SC} lds",
              f"buffer_load_dwordx4 v{vL16}, s[{SWS}:{SWS+3}], s{s_src} offen offset:1024{SC} lds")
        a(f"s_add_u32 s{s_src}, s{s_src}, 8192")
    a(f"buffer_load_dwordx4 {vr(Q,4)}, v{vL16}, s[{SWS}:{SWS+3}], s{s_q} offen{SC}",
      f"buffer_load_dwordx4 {vr(Q+4,4)}, v{vL16}, s[{SWS}:{SWS+3}], s{s_q} offen offset:1024{SC}")
    issue_chunk(0); issue_chunk(1)
    def rd(it, vbuf):
        off = (it % 16) * TS
        return [f"ds_read_b128 {vr(K,4)}, v{vKA} offset:{off}",
                f"ds_read_b128 {vr(V+8*vbuf,4)}, v{vVA} offset:{off+1024}",
                f"ds_read_b128 {vr(V+8*vbuf+4,4)}, v{vVB} offset:{off+1536}"]
    a("s_waitcnt vmcnt(6)", "s_barrier")
    a(f"ds_read_b128 {vr(P,4)}, v{vL16}")
    a(*rd(0, 0))
    a("s_waitcnt lgkmcnt(3)")
    a(mfma(S, P, Q, "0"), mfma(S+16, P, Q+4, "0"), "s_nop 7", "s_nop 3")
    for t in range(2):
        b = S + 16*t; m = T0 + t
        a(f"v_max3_f32 v{m}, v{b}, v{b+1}, v{b+2}")
        for r in range(3, 15, 2): a(f"v_max3_f32 v{m}, v{m}, v{b+r}, v{b+r+1}")
        a(f"v_max_f32 v{m}, v{m}, v{b+15}")
        a(f"v_mov_b32 v{T0+2}, v{m}", "s_nop 1", f"v_permlane32_swap_b32 v{m}, v{T0+2}", "s_nop 1", f"v_max_f32 v{m}, v{m}, v{T0+2}")
    a(f"v_min_f32 v{T0}, v{T0}, v{T0+1}")
    for r in range(16): a(f"v_sub_f32 v{C+r}, 0, v{T0}")
    a("s_waitcnt lgkmcnt(0)", f"s_mov_b32 s{s_cnt}, 0")
    a(mfma(S, K, Q, C))
    a.stamp(2)
    a("s_nop 7", "s_nop 3")
    def phase(Sb, Ob, vb, smf, mid, pend, wait):
        for tok in ORDER.split():
            if tok[0] == 'e': r = int(tok[1:]); a(f"v_exp_f32 v{Sb+r}, v{Sb+r}")
            elif tok[0] == 'c': k = int(tok[1:]); a(f"v_cvt_pk_bf16_f32 v{P+k}, v{Sb+2*k}, v{Sb+2*k+1}")
            elif tok == 'S':
                if wait: a("s_waitcnt lgkmcnt(0)")
                a(smf)
            elif tok == 'N': a(pend)
            elif tok == 'P': a(mfma(Ob, V+8*vb, P))
            elif tok == 'M': mid()
        return mfma(Ob, V+8*vb+4, P+4)
    Lloop = a.newlabel("ATT_loop")
    a(".p2align 6")
    a.label(Lloop)
    pend = mfma(O+16, V+12, P+4)
    for it in range(16):
        vb = it % 2
        def midA(it=it, vb=vb):
            if it == 3:
                Lno = a.newlabel("ATT_n3")
                a(f"s_cbranch_scc1 {Lno}", "s_waitcnt vmcnt(4)", "s_barrier")
                a.label(Lno)
            elif it == 7:
                Lno = a.newlabel("ATT_n7")
                a("s_waitcnt vmcnt(0)", "s_barrier", f"s_cbranch_scc1 {Lno}")
                issue_chunk(0)
                a("s_cmp_lg_u32 0, 0")
                a.label(Lno)
            elif it == 15:
                Lno = a.newlabel("ATT_n15")
                a(f"s_cbranch_scc1 {Lno}", "s_waitcnt vmcnt(0)", "s_barrier")
                issue_chunk(1)
                a.label(Lno)
            a(*rd(it + 1, 1 - vb))
        if it == 0: a(f"s_cmp_lg_u32 s{s_cnt}, 0")
        pend = phase(S, O, vb, mfma(S+16, K, Q+4, C), midA, pend, False)
        pend = phase(S+16, O+16, vb, mfma(S, K, Q, C), lambda: None, pend, True)
    a(f"s_add_u32 s{s_cnt}, s{s_cnt}, 1", f"s_cmp_lt_u32 s{s_cnt}, 2", f"s_cbranch_scc1 {Lloop}")
    a("s_nop 1", pend)
    a.stamp(3)
    XA = 2*HALF
    Lk1 = a.newlabel("ATT_k1"); Lj = a.newlabel("ATT_j")
    a("s_barrier")
    a(f"s_mul_i32 s53, s{S_W}, 3072", f"v_add_u32 v{vKA}, s53, v{vL16}",
      f"s_xor_b32 s53, s{S_W}, 4", "s_mul_i32 s53, s53, 3072", f"v_add_u32 v{T0+4}, s53, v{vL16}", "s_nop 7")
    a(f"s_cmp_eq_u32 s{s_kh}, 1", f"s_cbranch_scc1 {Lk1}")
    for j in range(3): a(f"ds_write_b128 v{vKA}, {vr(O+16+4*j,4)} offset:{1024*j}")
    a(f"s_branch {Lj}")
    a.label(Lk1)
    for j in range(3): a(f"ds_write_b128 v{vKA}, {vr(O+4*j,4)} offset:{1024*j}")
    a("s_nop 1")
    for j in range(9): a(f"v_mov_b32 v{O+j}, v{O+16+j}")
    for j in range(4): a(f"v_mov_b32 v{Q+j}, v{Q+4+j}")
    a.label(Lj)
    a(f"s_lshl_b32 s53, s{s_qb}, 3", f"s_lshl_b32 s57, s{s_qw}, 1", "s_add_u32 s53, s53, s57", f"s_add_u32 s53, s53, s{s_kh}",
      "s_lshl_b32 s53, s53, 5", f"s_add_u32 s53, s53, s{s_head}",
      "s_lshl_b32 s62, s53, 2", f"s_add_u32 s62, s62, {WS_FO:#x}",
      "s_lshl_b32 s63, s53, 10", f"s_add_u32 s63, s63, {WS_OF:#x}")
    a("s_waitcnt lgkmcnt(0)", "s_barrier")
    for j in range(3): a(f"ds_read_b128 {vr(S+4*j,4)}, v{T0+4} offset:{1024*j}")
    a("s_waitcnt lgkmcnt(0)")
    for j in range(9): a(f"v_add_f32 v{O+j}, v{O+j}, v{S+j}")
    Lfb = a.newlabel("ATT_fallback"); Lfin = a.newlabel("ATT_fin")
    a(f"v_max3_f32 v{T0}, |v{O}|, |v{O+1}|, |v{O+2}|", f"v_max3_f32 v{T0}, v{T0}, |v{O+3}|, |v{O+4}|",
      f"v_max3_f32 v{T0}, v{T0}, |v{O+5}|, |v{O+6}|", f"v_max_f32 v{T0}, v{T0}, |v{O+7}|")
    a(f"v_add_f32 v{T0+1}, v{O}, v{O+1}")
    for j in range(2, 8): a(f"v_add_f32 v{T0+1}, v{T0+1}, v{O+j}")
    a("s_mov_b32 s53, 0x5d800000", f"v_cmp_nlt_f32 vcc, v{O+8}, s53",
      "s_mov_b32 s53, 0x7e800000", f"v_cmp_nlt_f32 s[58:59], v{T0}, s53",
      f"v_cmp_u_f32 s[60:61], v{T0+1}, v{T0+1}",
      "s_or_b64 vcc, vcc, s[58:59]", "s_or_b64 vcc, vcc, s[60:61]",
      f"s_cbranch_vccnz {Lfb}")
    a.label(Lfin)
    a(f"v_rcp_f32 v{T0}, v{O+8}", "s_nop 0")
    for j in range(8): a(f"v_mul_f32 v{O+j}, v{O+j}, v{T0}")
    for j in range(4): a(f"v_cvt_pk_bf16_f32 v{P+j}, v{O+2*j}, v{O+2*j+1}")
    a(f"buffer_store_dwordx4 {vr(P,4)}, v{vL16}, s[{SWS}:{SWS+3}], s63 offen{SC}")
    a.stamp(4)
    a("s_waitcnt vmcnt(0)")
    set_flag(a, 62, T0)
    a.stamp(5)
    a(f"s_branch {end_label}")
    a.label(Lfb)
    L1 = a.newlabel("ATT_fb1"); L2 = a.newlabel("ATT_fb2")
    a(f"v_mov_b32 v{T0}, 0xff800000", f"s_mov_b32 s57, s{s_kv}", f"s_mov_b32 s{s_cnt}, 0")
    a.label(L1)
    a(f"buffer_load_dwordx4 {vr(K,4)}, v{vL16}, s[{SWS}:{SWS+3}], s57 offen{SC}", "s_waitcnt vmcnt(0)",
      mfma(S, K, Q, "0"), "s_nop 7", "s_nop 7")
    for r in range(0, 16, 2): a(f"v_max3_f32 v{T0}, v{T0}, v{S+r}, v{S+r+1}")
    a("s_add_u32 s57, s57, 2048", f"s_add_u32 s{s_cnt}, s{s_cnt}, 1", f"s_cmp_lt_u32 s{s_cnt}, 64", f"s_cbranch_scc1 {L1}")
    a(f"v_mov_b32 v{T0+2}, v{T0}", "s_nop 1", f"v_permlane32_swap_b32 v{T0}, v{T0+2}", "s_nop 1", f"v_max_f32 v{T0}, v{T0}, v{T0+2}")
    for r in range(16): a(f"v_sub_f32 v{C+r}, 0, v{T0}", f"v_mov_b32 v{O+r}, 0")
    a(f"v_lshrrev_b32 v{T0}, 5, v0", f"v_lshlrev_b32 v{T0}, 8, v{T0}", f"v_and_b32 v{T0+1}, 15, v0",
      f"v_lshl_add_u32 v{vVA}, v{T0+1}, 4, v{T0}")
    a(f"s_mov_b32 s57, s{s_kv}", f"s_mov_b32 s{s_cnt}, 0")
    a.label(L2)
    a(f"buffer_load_dwordx4 {vr(K,4)}, v{vL16}, s[{SWS}:{SWS+3}], s57 offen{SC}",
      f"s_mov_b64 exec, s[{sEX}:{sEX+1}]",
      f"buffer_load_dwordx4 {vr(V,4)}, v{vVA}, s[{SWS}:{SWS+3}], s57 offen offset:1024{SC}",
      f"buffer_load_dwordx4 {vr(V+4,4)}, v{vVA}, s[{SWS}:{SWS+3}], s57 offen offset:1536{SC}",
      "s_mov_b64 exec, -1", "s_waitcnt vmcnt(0)",
      mfma(S, K, Q, C), "s_nop 7", "s_nop 7")
    for r in range(16): a(f"v_exp_f32 v{S+r}, v{S+r}")
    a("s_nop 0")
    for k in range(8): a(f"v_cvt_pk_bf16_f32 v{P+k}, v{S+2*k}, v{S+2*k+1}")
    a("s_nop 1", mfma(O, V, P), mfma(O, V+4, P+4), "s_nop 7", "s_nop 7")
    a("s_add_u32 s57, s57, 2048", f"s_add_u32 s{s_cnt}, s{s_cnt}, 1", f"s_cmp_lt_u32 s{s_cnt}, 64", f"s_cbranch_scc1 {L2}")
    a(f"s_branch {Lfin}")

def build(prof=False, as_list=False):
    a = Asm(); a.prof = prof
    a('.amdgcn_target "amdgcn-amd-amdhsa--gfx950"')
    a(".text", f".globl {NAME}", ".p2align 8", f".type {NAME},@function")
    a.label(NAME)
    end = "K_end"
    if prof:
        a("s_memrealtime s[88:89]", "s_memtime s[90:91]", "s_mov_b32 s94, s2")
        for i in range(6): a(f"s_mov_b32 s{64+2*i}, 0")
    a("s_cmp_ge_u32 s2, 512", f"s_cbranch_scc1 {end}_x")
    a("s_load_dwordx16 s[4:19], s[0:1], 0", "s_load_dwordx4 s[20:23], s[0:1], 64", "s_load_dwordx2 s[24:25], s[0:1], 80")
    a("v_lshrrev_b32 v1, 6, v0", f"s_and_b32 s{S_B}, s2, 255", f"v_readfirstlane_b32 s{S_W}, v1", "v_and_b32 v0, 63, v0")
    a("s_waitcnt lgkmcnt(0)")
    srd(a, SWS, S_WS, WS_SIZE)
    LB = "ROLE_B"
    a("s_cmp_ge_u32 s2, 256", f"s_cbranch_scc1 {LB}")
    role_attn(a, end)
    a.label(LB)
    phase_qkv(a)
    phase_up(a)
    phase_down_out(a)
    a.label(end)
    if prof:
        a("s_waitcnt vmcnt(0) lgkmcnt(0)", "s_memrealtime s[84:85]", "s_memtime s[86:87]",
          "s_getreg_b32 s83, hwreg(HW_REG_XCC_ID)",
          "s_mov_b32 s76, s24", "s_and_b32 s77, s25, 0xffff", "s_mov_b32 s78, 0x2000000", "s_mov_b32 s79, 0x00020000",
          "s_lshl_b32 s94, s94, 3", f"s_add_u32 s94, s94, s{S_W}", "s_lshl_b32 s94, s94, 6",
          f"s_add_u32 s94, s94, {WS_PROF:#x}",
          "s_waitcnt lgkmcnt(0)", "s_sub_u32 s86, s86, s90",
          "v_mov_b32 v4, s88", "v_mov_b32 v5, s84", "v_mov_b32 v6, s86", "v_mov_b32 v7, s83", "v_mov_b32 v8, 0",
          "s_mov_b64 exec, 1",
          "buffer_store_dwordx4 v[4:7], v8, s[76:79], s94 offen")
        for i in range(6): a(f"s_sub_u32 s{64+2*i}, s{64+2*i}, s90", f"v_mov_b32 v{12+i}, s{64+2*i}")
        a("buffer_store_dwordx4 v[12:15], v8, s[76:79], s94 offen offset:16", "buffer_store_dwordx2 v[16:17], v8, s[76:79], s94 offen offset:32")
    a.label(end + "_x")
    a("s_endpgm")
    desc = f""".section .rodata,"a"
.p2align 6
.amdhsa_kernel {NAME}
  .amdhsa_next_free_vgpr 128
  .amdhsa_next_free_sgpr 96
  .amdhsa_accum_offset 128
  .amdhsa_group_segment_fixed_size 0
  .amdhsa_kernarg_size 88
  .amdhsa_user_sgpr_count 2
  .amdhsa_user_sgpr_kernarg_segment_ptr 1
  .amdhsa_system_sgpr_workgroup_id_x 1
.end_amdhsa_kernel
"""
    k = f"kernel={NAME} " if as_list else ""
    return HEADER + f"; @launch {k}grid=(512,1,1) block=(512,1,1) lds={LDS_BYTES}\n" + a.text() + desc

if __name__ == "__main__":
    out = sys.argv[1]
    for x in sys.argv[2:]:
        if "=" in x:
            k, v = x.split("="); OPT[k] = int(v)
    open(out, "w").write(build(prof="--prof" in sys.argv, as_list="--list" in sys.argv))
```

```python
import sys
from asmlib import *

NAME = "gated_mix__softmax_full_mha__glu_gated_bilinear__prompt_kernel"
HEADER = open("gated_mix__softmax_full_mha__glu_gated_bilinear__prompt.s.ref").read().split("; Override launch")[0]

WS_QF = 0x000000
WS_KV = 0x200000
WS_OF = 0x600000
WS_HF = 0x800000
WS_GG = 0xF00000
WS_FQ = 0xF04000
WS_FO = 0xF05000
WS_FH = 0xF07000
WS_EP = 0xF08000
WS_SIZE = 0xF09000
WS_PROF = 0x1800000
QSCALE = 0x3EB8AA3B
LOG2E = 0x3FB8AA3B
LDS_BYTES = 81920

S_X, S_WQKV, S_WO, S_WG, S_WU, S_WD, S_GW, S_OUT, S_DBG, S_WS = 4, 6, 8, 12, 14, 16, 18, 20, 22, 24
S_TAG = 26
S_B = 27
SWS = 28
S_W = 44
SC = " sc1"

OPT = dict(dbg=0, prefetch=1, prio=0, prio_b=1, pace=1, sleep_q=4, sleep_o=4)

def srd(a, d, p, nbytes):
    a(f"s_mov_b32 s{d}, s{p}", f"s_and_b32 s{d+1}, s{p+1}, 0xffff",
      f"s_mov_b32 s{d+2}, {hex(nbytes)}", f"s_mov_b32 s{d+3}, 0x00020000")

def dma(a, voff, srd_, soff, pre, imm=0, flags=""):
    for l in pre: a(l)
    o = f" offset:{imm}" if imm else ""
    a(f"buffer_load_dwordx4 v{voff}, s[{srd_}:{srd_+3}], {soff} offen{o}{flags} lds")

def poll(a, s_base, nl, vt, st, sleep=4):
    L = a.newlabel("POLL"); Ld = a.newlabel("POLLD")
    a(f"v_lshlrev_b32 v{vt}, 2, v0", f"s_mov_b32 s{st}, 0x80000")
    if nl < 64: a(f"s_mov_b64 exec, {hex((1 << nl) - 1)}")
    a.label(L)
    a(f"buffer_load_dword v{vt+1}, v{vt}, s[{SWS}:{SWS+3}], s{s_base} offen sc1",
      "s_waitcnt vmcnt(0)",
      f"v_cmp_ne_u32 vcc, s{S_TAG}, v{vt+1}",
      f"s_cbranch_vccz {Ld}",
      f"s_sleep {sleep}",
      f"s_sub_u32 s{st}, s{st}, 1",
      f"s_cbranch_scc0 {L}")
    a.label(Ld)
    if nl < 64: a("s_mov_b64 exec, -1")

def set_flag(a, s_off, vt):
    a(f"v_mov_b32 v{vt}, 0", f"v_mov_b32 v{vt+1}, s{S_TAG}", "s_mov_b64 exec, 1",
      f"buffer_store_dword v{vt+1}, v{vt}, s[{SWS}:{SWS+3}], s{s_off} offen sc1", "s_mov_b64 exec, -1")

def get_tag(a, vt, sd, updater=None):
    srd(a, sd, S_DBG, 256)
    a(f"v_mov_b32 v{vt}, 0", f"s_mov_b32 s{S_TAG}, {WS_EP:#x}",
      f"buffer_load_dword v{vt+1}, v{vt}, s[{SWS}:{SWS+3}], s{S_TAG} offen sc1", "s_waitcnt vmcnt(0)",
      f"buffer_load_dword v{vt+2}, v{vt}, s[{sd}:{sd+3}], 0 offen sc1",
      f"v_readfirstlane_b32 s{S_TAG}, v{vt+1}", "s_waitcnt vmcnt(0)",
      f"v_readfirstlane_b32 s43, v{vt+2}",
      f"s_mul_i32 s{S_TAG}, s{S_TAG}, 1664525", f"s_add_u32 s{S_TAG}, s{S_TAG}, 1013904223", f"s_or_b32 s{S_TAG}, s{S_TAG}, 1",
      "s_cmp_lg_u32 s43, 0", f"s_cselect_b32 s{S_TAG}, s43, s{S_TAG}")
    if updater:
        L = a.newlabel("NOUPD")
        a(f"s_lshl_b32 s43, s{S_B}, 3", f"s_add_u32 s43, s43, s{S_W}", f"s_cmp_lg_u32 s43, {updater}", f"s_cbranch_scc1 {L}",
          f"v_mov_b32 v{vt+1}, s{S_TAG}", f"s_mov_b32 s43, {WS_EP:#x}", "s_mov_b64 exec, 1",
          f"buffer_store_dword v{vt+1}, v{vt}, s[{sd}:{sd+3}], 0 offen sc1", "s_waitcnt vmcnt(0)",
          f"buffer_store_dword v{vt+1}, v{vt}, s[{SWS}:{SWS+3}], s43 offen sc1", "s_mov_b64 exec, -1")
        a.label(L)

def tag_stage(a, stage, vt, sd):
    if stage == 0:
        srd(a, sd, S_DBG, 256)
        a(f"v_mov_b32 v{vt}, 0", f"s_mov_b32 s{S_TAG}, {WS_EP:#x}",
          f"buffer_load_dword v{vt+1}, v{vt}, s[{SWS}:{SWS+3}], s{S_TAG} offen sc1")
    elif stage == 1:
        a("s_waitcnt vmcnt(0)", f"buffer_load_dword v{vt+2}, v{vt}, s[{sd}:{sd+3}], 0 offen sc1")
    else:
        a("s_waitcnt vmcnt(0)", f"v_readfirstlane_b32 s{S_TAG}, v{vt+1}", f"v_readfirstlane_b32 s43, v{vt+2}", "s_nop 3",
          f"s_mul_i32 s{S_TAG}, s{S_TAG}, 1664525", f"s_add_u32 s{S_TAG}, s{S_TAG}, 1013904223", f"s_or_b32 s{S_TAG}, s{S_TAG}, 1",
          "s_cmp_lg_u32 s43, 0", f"s_cselect_b32 s{S_TAG}, s43, s{S_TAG}")

def wg_poll(a, s_base, nl, vt, st, sleep=4):
    L = a.newlabel("NOPOLL")
    a(f"s_cmp_lg_u32 s{S_W}, 0", f"s_cbranch_scc1 {L}")
    poll(a, s_base, nl, vt, st, sleep)
    a.label(L)
    a("s_barrier")

def phase_qkv(a):
    NU = 16; NW = 4; NX = 3
    WU = 12288; XB = 49152
    SX, SW = 32, 36
    s_ct, s_rt = 45, 46
    L_load = a.newlabel("QKV_load"); L_end = a.newlabel("QKV_end")
    a(f"s_and_b32 s47, s{S_B}, 7", f"s_lshr_b32 s48, s{S_B}, 3",
      f"s_and_b32 s{s_rt}, s47, 3", f"s_lshl_b32 s{s_rt}, s{s_rt}, 3", "s_and_b32 s49, s48, 7", f"s_add_u32 s{s_rt}, s{s_rt}, s49",
      f"s_lshr_b32 s{s_ct}, s47, 2", f"s_lshl_b32 s{s_ct}, s{s_ct}, 2", "s_lshr_b32 s49, s48, 3", f"s_add_u32 s{s_ct}, s{s_ct}, s49")
    a(f"s_cmp_ge_u32 s{S_W}, 4", f"s_cbranch_scc1 {L_load}")
    vXA, vWA = 2, 6
    XF, WF, ACC = 12, 20, 44
    vEP = 92
    s_rb, s_ch = 47, 48
    a(f"s_and_b32 s{s_rb}, s{S_W}, 1", f"s_lshr_b32 s{s_ch}, s{S_W}, 1")
    a("v_and_b32 v7, 31, v0", "v_lshrrev_b32 v8, 5, v0", "v_bfe_u32 v9, v0, 1, 3", "v_xor_b32 v9, v9, v8",
      f"s_lshl_b32 s49, s{s_rb}, 12", f"s_add_u32 s49, s49, {XB}",
      "v_lshlrev_b32 v10, 7, v7", "v_add_u32 v10, s49, v10")
    for s in range(4):
        a(f"v_xor_b32 v11, {2*s}, v9", f"v_lshl_add_u32 v{vXA+s}, v11, 4, v10")
    a("v_bfe_u32 v9, v0, 2, 2", "v_lshl_add_u32 v10, v8, 3, v9", "v_lshlrev_b32 v10, 7, v10",
      "v_lshrrev_b32 v9, 1, v9", f"v_xor_b32 v9, s{s_ch}, v9", "v_lshl_add_u32 v10, v9, 6, v10",
      "v_bfe_u32 v9, v0, 4, 1", "v_lshl_add_u32 v10, v9, 5, v10",
      "v_and_b32 v9, 3, v0", f"v_lshl_add_u32 v{vWA}, v9, 3, v10")
    tag_stage(a, 0, vEP, 32)
    def reads(n):
        u = n // 2; s = n % 2; p = n % 2; s4 = n % 4; xs = (n // 4) % NX
        a(f"ds_read_b128 {vr(XF+4*p,4)}, v{vXA+s4} offset:{xs*8192}")
        for mat in range(3):
            for t in range(2):
                a(f"ds_read_b64_tr_b16 {vr(WF+12*p+4*mat+2*t,2)}, v{vWA} offset:{(u%NW)*WU+mat*4096+s*2048+t*512}")
    def mf(n):
        p = n % 2
        for mat in range(3):
            c = "0" if n == 0 else None
            if mat < 2: a(mfma(ACC+16*mat, WF+12*p+4*mat, XF+4*p, c))
            else:       a(mfma(ACC+16*mat, XF+4*p, WF+12*p+4*mat, c))
    for n in range(2*NU):
        if n % 2 == 0:
            if n > 0: a("s_waitcnt lgkmcnt(0)")
            a("s_barrier")
            reads(n)
            if n > 0: mf(n-1)
            if n == 8: tag_stage(a, 1, vEP, 32)
            if n == 24: tag_stage(a, 2, vEP, 32)
        else:
            reads(n)
            a("s_waitcnt lgkmcnt(7)")
            mf(n-1)
    a("s_waitcnt lgkmcnt(0)")
    mf(2*NU-1)
    a(f"s_lshl_b32 s49, s{s_ct}, 1", f"s_add_u32 s49, s49, s{s_ch}",
      f"s_lshl_b32 s50, s{s_rt}, 1", f"s_add_u32 s50, s50, s{s_rb}",
      "s_lshl_b32 s56, s49, 6", "s_add_u32 s56, s56, s50", "s_lshl_b32 s56, s56, 2", f"s_add_u32 s56, s56, {WS_FQ:#x}",
      "s_lshl_b32 s49, s49, 7", "s_add_u32 s49, s49, s50",
      "s_lshl_b32 s51, s49, 10",
      "s_lshl_b32 s52, s49, 11", f"s_add_u32 s52, s52, {WS_KV:#x}",
      "s_add_u32 s53, s51, 0x10000", "s_add_u32 s54, s52, 0x20000",
      f"s_mov_b32 s55, {QSCALE:#x}")
    a("v_lshlrev_b32 v2, 4, v0")
    a("v_bfe_u32 v9, v0, 4, 1", "v_lshlrev_b32 v3, 17, v9", "v_lshl_add_u32 v3, v8, 8, v3",
      "v_and_b32 v9, 15, v0", "v_lshl_add_u32 v3, v9, 4, v3")
    P = 12
    for blk in (1, 2, 0):
        if blk == 0:
            for r in range(16): a(f"v_mul_f32 v{ACC+r}, s55, v{ACC+r}")
        for half in range(2):
            d = P + (blk*2+half)*4
            for j in range(4):
                r = ACC + 16*blk + 8*half + 2*j
                a(f"v_cvt_pk_bf16_f32 v{d+j}, v{r}, v{r+1}")
            if blk == 0: a(f"buffer_store_dwordx4 {vr(d,4)}, v2, s[{SWS}:{SWS+3}], s{51 if half==0 else 53} offen{SC}")
            elif blk == 1: a(f"buffer_store_dwordx4 {vr(d,4)}, v2, s[{SWS}:{SWS+3}], s{52 if half==0 else 54} offen{SC}")
            else: a(f"buffer_store_dwordx4 {vr(d,4)}, v3, s[{SWS}:{SWS+3}], s52 offen offset:{1024+512*half}{SC}")
    a("s_waitcnt vmcnt(0)")
    set_flag(a, 56, 4)
    a.stamp(3)
    a(f"s_branch {L_end}")
    a.label(L_load)
    srd(a, SX, S_X, 2048*1024)
    srd(a, SW, S_WQKV, 512*3072)
    s_lw, sG, sL, sX, sLX = 47, 48, 49, 50, 51
    a(f"s_sub_u32 s{s_lw}, s{S_W}, 4")
    a("v_lshrrev_b32 v3, 3, v0", "v_mul_u32_u24 v4, 3072, v3",
      "v_bfe_u32 v5, v0, 4, 1", "v_lshlrev_b32 v5, 2, v5", "v_and_b32 v6, 7, v0", "v_xor_b32 v5, v5, v6",
      "v_lshl_add_u32 v4, v5, 4, v4")
    a("v_bfe_u32 v5, v0, 4, 2", "v_xor_b32 v5, v5, v6", "v_lshlrev_b32 v3, 10, v3",
      "v_lshl_add_u32 v6, v5, 4, v3", "v_xor_b32 v7, 64, v6")
    a(f"s_mul_i32 s{sG}, s{s_lw}, {8*3072}", f"s_lshl_b32 s53, s{s_ct}, 7", f"s_add_u32 s{sG}, s{sG}, s53",
      f"s_lshl_b32 s{sL}, s{s_lw}, 10", f"s_lshl_b32 s{sLX}, s{s_lw}, 11",
      f"s_lshl_b32 s{sX}, s{s_rt}, 16", f"s_lshl_b32 s53, s{s_lw}, 14", f"s_add_u32 s{sX}, s{sX}, s53")
    cnt = []
    def issue(g):
        n = 0
        if g % 2 == 0:
            j = g // 2
            for jj in range(2):
                dma(a, 6+jj, SX, "s53", [f"s_add_u32 m0, s{sLX}, {XB + (j%NX)*8192 + jj*1024}", f"s_add_u32 s53, s{sX}, {jj*8192 + j*128}"]); n += 1
        for mat in range(3):
            dma(a, 4, SW, "s53", [f"s_add_u32 m0, s{sL}, {(g%NW)*WU + mat*4096}", f"s_add_u32 s53, s{sG}, {g*32*3072 + mat*1024}"]); n += 1
        cnt.append(n)
    for g in range(NW): issue(g)
    for u in range(NU):
        a(f"s_waitcnt vmcnt({sum(cnt[u+1:])})", "s_barrier")
        if u >= 1 and len(cnt) < NU: issue(len(cnt))
    get_tag(a, 8, 32)
    a.label(L_end)

def phase_up(a):
    T = 16; NS = 3; GU = 16384; XB = 3*GU
    SX, SG, SU = 32, 36, 40
    s_rt, s_ft = 45, 46
    L_skip = a.newlabel("UP_skip")
    a(f"s_and_b32 s47, s{S_B}, 7", f"s_lshr_b32 s48, s{S_B}, 3", "s_cmp_ge_u32 s48, 28", f"s_cbranch_scc1 {L_skip}",
      f"s_and_b32 s{s_rt}, s47, 3", f"s_lshl_b32 s{s_rt}, s{s_rt}, 2", "s_and_b32 s49, s48, 3", f"s_add_u32 s{s_rt}, s{s_rt}, s49",
      f"s_lshr_b32 s{s_ft}, s47, 2", f"s_mul_i32 s{s_ft}, s{s_ft}, 7", "s_lshr_b32 s49, s48, 2", f"s_add_u32 s{s_ft}, s{s_ft}, s49")
    srd(a, SX, S_X, 2048*1024); srd(a, SG, S_WG, 512*3584); srd(a, SU, S_WU, 512*3584)
    vXO, vGO, vUO, vXA, vWA = 2, 4, 5, 6, 10
    a("v_lshrrev_b32 v12, 3, v0", "v_and_b32 v13, 7, v0", "v_bfe_u32 v14, v0, 4, 2", "v_xor_b32 v14, v14, v13",
      "v_lshlrev_b32 v12, 10, v12", f"v_lshl_add_u32 v{vXO}, v14, 4, v12", f"v_xor_b32 v{vXO+1}, 64, v{vXO}")
    a("v_lshrrev_b32 v12, 4, v0", "v_and_b32 v13, 15, v0", "v_lshlrev_b32 v14, 1, v12", "v_xor_b32 v13, v13, v14",
      "v_mul_u32_u24 v12, 3584, v12", f"v_lshl_add_u32 v{vGO}, v13, 4, v12",
      "v_xor_b32 v13, 8, v13", f"v_lshl_add_u32 v{vUO}, v13, 4, v12")
    s_xo, s_wo, s_lx, s_lg = 47, 48, 49, 50
    a(f"s_lshl_b32 s{s_xo}, s{s_rt}, 17", f"s_lshl_b32 s52, s{S_W}, 14", f"s_add_u32 s{s_xo}, s{s_xo}, s52",
      f"s_lshl_b32 s{s_wo}, s{s_ft}, 8", f"s_mul_i32 s52, s{S_W}, {4*3584}", f"s_add_u32 s{s_wo}, s{s_wo}, s52",
      f"s_lshl_b32 s{s_lx}, s{S_W}, 11", f"s_lshl_b32 s{s_lg}, s{S_W}, 10")
    cnt = []
    def issue(g):
        n = 0
        if g % 2 == 0:
            j = g // 2
            for jj in range(2):
                dma(a, vXO+jj, SX, "s52", [f"s_add_u32 m0, s{s_lx}, {XB + (j%2)*16384 + jj*1024}", f"s_add_u32 s52, s{s_xo}, {jj*8192 + j*128}"]); n += 1
        dma(a, vGO, SG, "s52", [f"s_add_u32 m0, s{s_lg}, {(g%NS)*GU}", f"s_add_u32 s52, s{s_wo}, {g*32*3584}"])
        dma(a, vUO, SU, "s52", [f"s_add_u32 m0, s{s_lg}, {(g%NS)*GU + 8192}", "s_nop 0"])
        cnt.append(n + 2)
    a("s_barrier")
    issue(0); issue(1)
    s_rp, s_fp = 53, 54
    a(f"s_and_b32 s{s_rp}, s{S_W}, 1", f"s_lshr_b32 s{s_fp}, s{S_W}, 1")
    a("v_and_b32 v12, 31, v0", "v_lshrrev_b32 v13, 5, v0", "v_bfe_u32 v14, v0, 1, 3", "v_xor_b32 v14, v14, v13",
      f"s_lshl_b32 s52, s{s_rp}, 13", f"s_add_u32 s52, s52, {XB}", "v_lshlrev_b32 v12, 7, v12", "v_add_u32 v12, s52, v12")
    for s in range(4):
        a(f"v_xor_b32 v15, {2*s}, v14", f"v_lshl_add_u32 v{vXA+s}, v15, 4, v12")
    a("v_bfe_u32 v14, v0, 2, 2", "v_lshl_add_u32 v12, v13, 3, v14", "v_lshlrev_b32 v12, 8, v12",
      "v_bfe_u32 v15, v0, 4, 1", "v_lshl_add_u32 v12, v15, 13, v12",
      "v_and_b32 v13, 3, v0", "v_lshl_add_u32 v12, v13, 3, v12",
      "v_bfe_u32 v14, v0, 2, 3",
      f"s_lshl_b32 s52, s{s_fp}, 1", "v_xor_b32 v14, s52, v14",
      f"v_lshl_add_u32 v{vWA}, v14, 5, v12", f"v_xor_b32 v{vWA+1}, 32, v{vWA}")
    XF, WF, ACC = 16, 32, 48
    if OPT["prio_b"]: a(f"s_setprio {OPT['prio_b']}")
    def rx(n, i):
        p = n % 2; s4 = n % 4; xs = (n // 4) % 2
        a(f"ds_read_b128 {vr(XF+8*p+4*i,4)}, v{vXA+s4} offset:{xs*16384 + i*4096}")
    def rw(n, f):
        g = n // 2; s = n % 2; p = n % 2
        for t in range(2):
            a(f"ds_read_b64_tr_b16 {vr(WF+8*p+4*f+2*t,2)}, v{vWA+f} offset:{(g%NS)*GU+(16*s+4*t)*256}")
    def m1(n, i, f):
        p = n % 2
        a(mfma(ACC+16*(2*i+f), WF+8*p+4*f, XF+8*p+4*i, "0" if n == 0 else None))
    if OPT["pace"] == 0:
        for n in range(2*T):
            g = n // 2
            if n % 2 == 0: a(f"s_waitcnt vmcnt({sum(cnt[g+1:])}) lgkmcnt(0)", "s_barrier")
            rx(n, 0); rx(n, 1); rw(n, 0); rw(n, 1)
            if n % 2 == 0:
                if len(cnt) < T: issue(len(cnt))
            else: a("s_waitcnt lgkmcnt(6)")
            if n > 0:
                for i in range(2):
                    for f in range(2): m1(n-1, i, f)
        a("s_waitcnt lgkmcnt(0)")
        for i in range(2):
            for f in range(2): m1(2*T-1, i, f)
    else:
        for n in range(2*T):
            g = n // 2
            if n % 2 == 0: a(f"s_waitcnt vmcnt({sum(cnt[g+1:])})", "s_barrier")
            rx(n, 0); rw(n, 0)
            if n % 2 == 0 and len(cnt) < T: issue(len(cnt))
            if n > 0: m1(n-1, 1, 0)
            a("s_waitcnt lgkmcnt(0)"); m1(n, 0, 0)
            rw(n, 1); a("s_waitcnt lgkmcnt(0)"); m1(n, 0, 1)
            rx(n, 1); a("s_waitcnt lgkmcnt(0)"); m1(n, 1, 1)
        m1(2*T-1, 1, 0)
        a("s_nop 7")
    a(f"s_lshl_b32 s52, s{s_rt}, 1", f"s_add_u32 s52, s52, s{s_rp}", "s_mul_i32 s52, s52, 224",
      f"s_lshl_b32 s55, s{s_ft}, 3", "s_add_u32 s52, s52, s55", f"s_lshl_b32 s55, s{s_fp}, 1", "s_add_u32 s52, s52, s55",
      "s_lshl_b32 s52, s52, 10", f"s_add_u32 s52, s52, {WS_HF:#x}", f"s_add_u32 s55, s52, {112*1024}",
      f"s_lshl_b32 s56, s{s_rt}, 5", f"s_add_u32 s56, s56, s{s_ft}", "s_lshl_b32 s56, s56, 2", f"s_add_u32 s56, s56, {WS_FH:#x}",
      "v_lshlrev_b32 v2, 4, v0")
    for i in range(2):
        for f in range(2):
            A = ACC + 16*(2*i+f)
            for j in range(0, 8, 2): a(f"v_pk_mul_f32 {vr(A+j,2)}, {vr(A+j,2)}, {vr(A+8+j,2)}")
            for j in range(4): a(f"v_cvt_pk_bf16_f32 v{A+8+j}, v{A+2*j}, v{A+2*j+1}")
            a(f"buffer_store_dwordx4 {vr(A+8,4)}, v2, s[{SWS}:{SWS+3}], s{52 if i==0 else 55} offen offset:{f*1024}{SC}")
    a("s_waitcnt vmcnt(0)", "s_barrier")
    Lnf = a.newlabel("UP_nf"); Lj = a.newlabel("UP_j")
    a(f"s_cmp_lg_u32 s{S_W}, 0", f"s_cbranch_scc1 {Lj}")
    set_flag(a, 56, 4)
    a(f"s_branch {Lj}")
    a.label(L_skip)
    a("s_barrier")
    a.label(Lj)

def phase_down_out(a):
    NK = 14; D = 4
    SW, SO = 32, 36
    s_rt, s_ct = 45, 46
    a(f"s_and_b32 s47, s{S_B}, 7", f"s_lshr_b32 s48, s{S_B}, 3",
      f"s_lshl_b32 s{s_rt}, s47, 2", "s_and_b32 s47, s48, 3", f"s_add_u32 s{s_rt}, s{s_rt}, s47",
      f"s_lshr_b32 s{s_ct}, s48, 2")
    srd(a, SW, S_WD, 1792*1024)
    if OPT["prio_b"]: a(f"s_setprio {OPT['prio_b']}")
    vL16, vWO, vWA = 2, 3, 4
    a(f"v_lshlrev_b32 v{vL16}, 4, v0")
    a("v_lshrrev_b32 v7, 3, v0", "v_lshlrev_b32 v7, 10, v7", "v_bfe_u32 v8, v0, 4, 1", "v_lshlrev_b32 v8, 2, v8",
      "v_and_b32 v9, 7, v0", "v_xor_b32 v8, v8, v9", f"v_lshl_add_u32 v{vWO}, v8, 4, v7")
    s_x0, s_x1, s_wo, s_l = 47, 48, 49, 50
    a(f"s_mul_i32 s51, s{s_rt}, 224", f"s_mul_i32 s52, s{S_W}, {NK}", "s_add_u32 s51, s51, s52",
      f"s_lshl_b32 s{s_x0}, s51, 10", f"s_add_u32 s{s_x0}, s{s_x0}, {WS_HF:#x}", f"s_add_u32 s{s_x1}, s{s_x0}, {112*1024}",
      f"s_lshl_b32 s{s_wo}, s52, 14", f"s_lshl_b32 s51, s{s_ct}, 7", f"s_add_u32 s{s_wo}, s{s_wo}, s51",
      f"s_lshl_b32 s{s_l}, s{S_W}, 13")
    XF, WF, ACC = 8, 40, 56
    def issue_w(n):
        slot = n % D
        dma(a, vWO, SW, "s51", [f"s_add_u32 m0, s{s_l}, {slot*2048}", f"s_add_u32 s51, s{s_wo}, {n*16384}"])
        dma(a, vWO, SW, "s52", [f"s_add_u32 m0, s{s_l}, {slot*2048+1024}", f"s_add_u32 s52, s51, 8192"])
    def issue_x(n):
        slot = n % D
        a(f"s_add_u32 s51, s{s_x0}, {n*1024}", f"s_add_u32 s52, s{s_x1}, {n*1024}",
          f"buffer_load_dwordx4 {vr(XF+8*slot,4)}, v{vL16}, s[{SWS}:{SWS+3}], s51 offen{SC}",
          f"buffer_load_dwordx4 {vr(XF+8*slot+4,4)}, v{vL16}, s[{SWS}:{SWS+3}], s52 offen{SC}")
    for n in range(D): issue_w(n)
    a("v_lshrrev_b32 v120, 5, v0", "v_bfe_u32 v121, v0, 2, 2", "v_lshl_add_u32 v122, v120, 2, v121", "v_lshlrev_b32 v122, 7, v122",
      "v_lshrrev_b32 v121, 1, v121", "v_lshl_add_u32 v122, v121, 6, v122",
      "v_bfe_u32 v121, v0, 4, 1", "v_lshl_add_u32 v122, v121, 5, v122",
      "v_and_b32 v121, 3, v0", "v_lshl_add_u32 v6, v121, 3, v122",
      f"v_add_u32 v{vWA}, s{s_l}, v6", f"v_xor_b32 v{vWA+1}, 64, v{vWA}")
    a(f"s_lshr_b32 s53, s{s_rt}, 1", "s_lshl_b32 s53, s53, 7", f"s_add_u32 s53, s53, {WS_FH:#x}")
    a.stamp(0)
    wg_poll(a, 53, 14, 120, 54)
    a.stamp(1)
    for n in range(D): issue_x(n)
    def reads(n):
        slot = n % D; p = n % 2
        for cb in range(2):
            for t in range(2):
                a(f"ds_read_b64_tr_b16 {vr(WF+8*p+4*cb+2*t,2)}, v{vWA+cb} offset:{slot*2048+t*1024}")
    def mf(n):
        slot = n % D; p = n % 2
        for i in range(2):
            for cb in range(2):
                a(mfma(ACC+16*(2*i+cb), WF+8*p+4*cb, XF+8*slot+4*i, "0" if n == 0 else None))
    cnt = [2]*D
    if OPT["pace"] == 0:
        for n in range(NK):
            a(f"s_waitcnt vmcnt({sum(cnt[n+1:])})")
            reads(n)
            if n > 0:
                a("s_waitcnt lgkmcnt(4)")
                mf(n-1)
                if len(cnt) < NK:
                    issue_w(len(cnt)); issue_x(len(cnt)); cnt.append(4)
        a("s_waitcnt lgkmcnt(0)")
        mf(NK-1)
    else:
        for n in range(NK):
            slot = n % D
            a(f"s_waitcnt vmcnt({sum(cnt[n+1:])})")
            for cb in range(2):
                for t in range(2):
                    a(f"ds_read_b64_tr_b16 {vr(WF+4*cb+2*t,2)}, v{vWA+cb} offset:{slot*2048+t*1024}")
                a("s_waitcnt lgkmcnt(0)")
                for i in range(2):
                    a(mfma(ACC+16*(2*i+cb), WF+4*cb, XF+8*slot+4*i, "0" if n == 0 else None))
            if len(cnt) < NK:
                issue_w(len(cnt)); issue_x(len(cnt)); cnt.append(4)
    a.stamp(2)
    s_i, s_kq = 53, 54
    vRA = 7
    a(f"s_and_b32 s{s_i}, s{S_W}, 1", f"s_lshr_b32 s{s_kq}, s{S_W}, 1")
    a("v_and_b32 v120, 31, v0", "v_lshrrev_b32 v121, 5, v0", "v_and_b32 v122, 15, v0", "v_xor_b32 v121, v121, v122",
      "v_lshlrev_b32 v120, 8, v120", "v_lshl_add_u32 v120, v121, 4, v120", f"v_add_u32 v{vWA}, s{s_l}, v120",
      f"s_lshl_b32 s51, s{s_kq}, 6", f"v_xor_b32 v{vRA}, s51, v120", f"v_xor_b32 v{vWA+1}, 32, v{vRA}")
    a("s_nop 7")
    R = 8; Bq = 124
    for i in range(2):
        if i == 1: a("s_barrier")
        for cb in range(2):
            for q in range(4):
                k = (cb*8 + 2*q) * 16
                if k: a(f"v_xor_b32 v120, {k}, v{vWA}")
                a(f"ds_write_b128 v{120 if k else vWA}, {vr(ACC+16*(2*i+cb)+4*q,4)}")
        a("s_waitcnt lgkmcnt(0)", "s_barrier")
        Ls = a.newlabel("DN_skip")
        a(f"s_cmp_lg_u32 s{s_i}, {i}", f"s_cbranch_scc1 {Ls}")
        for h in range(2):
            ad = vRA if h == 0 else vWA+1
            for w in range(8): a(f"ds_read_b128 {vr(R+4*w,4)}, v{ad} offset:{w*8192}")
            for w in range(1, 8):
                a(f"s_waitcnt lgkmcnt({7-w})")
                for j in range(0, 4, 2): a(f"v_pk_add_f32 {vr(R+j,2)}, {vr(R+j,2)}, {vr(R+4*w+j,2)}")
            a(f"v_cvt_pk_bf16_f32 v{Bq+2*h}, v{R}, v{R+1}", f"v_cvt_pk_bf16_f32 v{Bq+2*h+1}, v{R+2}, v{R+3}")
        a.label(Ls)
    a("s_barrier")
    a.stamp(4)
    if OPT["dbg"] == 1: a("s_branch K_end")
    srd(a, SW, S_WO, 512*1024); srd(a, SO, S_OUT, 2048*1024)
    a(f"s_lshl_b32 s51, s{s_kq}, 1", f"s_add_u32 s51, s51, s{s_i}", "s_lshl_b32 s51, s51, 16",
      f"s_lshl_b32 s52, s{s_ct}, 7", f"s_add_u32 s{s_wo}, s51, s52",
      f"s_lshl_b32 s{s_l}, s{s_i}, 15", f"s_lshl_b32 s52, s{s_kq}, 13", f"s_add_u32 s{s_l}, s{s_l}, s52", f"s_add_u32 s{s_l}, s{s_l}, 16384")
    for n in range(8):
        dma(a, vWO, SW, "s51", [f"s_add_u32 m0, s{s_l}, {n*1024}", f"s_add_u32 s51, s{s_wo}, {n*8192}"])
    vG = 122
    a("v_and_b32 v120, 31, v0", "v_lshlrev_b32 v121, 3, v120",
      f"s_lshl_b32 s55, s{s_rt}, 1", f"s_add_u32 s55, s55, s{s_i}",
      "s_lshl_b32 s56, s55, 8", f"s_add_u32 s56, s56, {WS_GG:#x}", "s_mov_b32 s57, 0x200000")
    Lg = a.newlabel("GPOLL"); Lgd = a.newlabel("GPOLLD")
    a.label(Lg)
    a(f"buffer_load_dwordx2 v[{vG}:{vG+1}], v121, s[{SWS}:{SWS+3}], s56 offen sc1", "s_waitcnt vmcnt(0)",
      f"v_cmp_ne_u32 vcc, s{S_TAG}, v{vG+1}", f"s_cbranch_vccz {Lgd}", "s_sleep 1", "s_sub_u32 s57, s57, 1", f"s_cbranch_scc0 {Lg}")
    a.label(Lgd)
    a("s_barrier")
    a(f"v_sub_f32 v{vG+1}, 1.0, v{vG}", f"v_cvt_pk_bf16_f32 v{vG+1}, v{vG+1}, v{vG+1}", f"v_lshlrev_b32 v{vG+1}, 16, v{vG+1}",
      "s_mov_b32 s58, 0xffff0000")
    for j in range(4):
        a(f"v_lshlrev_b32 v120, 16, v{Bq+j}", f"v_and_b32 v121, s58, v{Bq+j}",
          f"v_mul_f32 v120, v120, v{vG+1}", f"v_mul_f32 v121, v121, v{vG+1}",
          f"v_cvt_pk_bf16_f32 v{Bq+j}, v120, v121")
    XF, WF, ACC = 8, 40, 72
    a(f"s_lshl_b32 s52, s{s_kq}, 13", "s_add_u32 s52, s52, 16384", f"v_add_u32 v{vWA}, s52, v6", f"v_xor_b32 v{vWA+1}, 64, v{vWA}")
    def wreads(st):
        for cb in range(2):
            for t in range(2):
                a(f"ds_read_b64_tr_b16 {vr(WF+8*(st%4)+4*cb+2*t,2)}, v{vWA+cb} offset:{(st//4)*32768+(st%4)*2048+t*1024}")
    for st in range(4): wreads(st)
    a("s_lshl_b32 s56, s55, 5", f"s_lshl_b32 s51, s{s_kq}, 3", "s_add_u32 s56, s56, s51",
      "s_lshl_b32 s59, s56, 10", f"s_add_u32 s59, s59, {WS_OF:#x}", "s_add_u32 s60, s59, 4096",
      f"s_lshl_b32 s56, s{s_rt}, 8", f"s_add_u32 s56, s56, {WS_FO:#x}")
    a("v_and_b32 v120, 31, v0", "v_lshlrev_b32 v120, 10, v120", "v_lshrrev_b32 v121, 5, v0", "v_lshl_add_u32 v3, v121, 4, v120",
      "s_lshl_b32 s61, s55, 15", f"s_lshl_b32 s51, s{s_ct}, 7", "s_add_u32 s61, s61, s51", f"s_lshl_b32 s51, s{s_kq}, 5", "s_add_u32 s61, s61, s51")
    a("s_waitcnt lgkmcnt(0)")
    wg_poll(a, 56, 64, 120, 57, OPT["sleep_o"])
    a.stamp(5)
    for st in range(8):
        a(f"buffer_load_dwordx4 {vr(XF+4*st,4)}, v{vL16}, s[{SWS}:{SWS+3}], s{59 if st<4 else 60} offen offset:{(st%4)*1024}{SC}")
    for st in range(8):
        w = f"s_waitcnt vmcnt({7-st})"
        if st >= 4: w += f" lgkmcnt({4*(7-st)})"
        a(w)
        for cb in range(2):
            a(mfma(ACC+16*cb, WF+8*(st%4)+4*cb, XF+4*st, "0" if st == 0 else None))
        if st < 4: wreads(st+4)
    a(f"s_mul_i32 s51, s{s_i}, {4*3*2048}", f"v_add_u32 v{vWA}, s51, v{vL16}",
      f"s_mul_i32 s52, s{s_kq}, {3*2048}", f"v_add_u32 v{vWA+1}, s52, v{vWA}", "s_nop 7", "s_nop 1")
    KEEP = 104
    Lj = a.newlabel("OUT_j")
    labs = [a.newlabel("OUT_k") for _ in range(4)]
    for kq in range(1, 4): a(f"s_cmp_eq_u32 s{s_kq}, {kq}", f"s_cbranch_scc1 {labs[kq]}")
    for kq in range(4):
        a.label(labs[kq])
        for q in range(4):
            if q == kq: continue
            rank = kq if kq < q else kq - 1
            for h in range(2):
                a(f"ds_write_b128 v{vWA}, {vr(ACC+8*q+4*h,4)} offset:{(q*3+rank)*2048+h*1024}")
        for j in range(0, 8, 2): a(f"v_pk_add_f32 {vr(KEEP+j,2)}, {vr(ACC+8*kq+j,2)}, 0")
        if kq < 3: a(f"s_branch {Lj}")
    a.label(Lj)
    a("s_waitcnt lgkmcnt(0)", "s_barrier")
    for r in range(3):
        for h in range(2): a(f"ds_read_b128 {vr(8+8*r+4*h,4)}, v{vWA+1} offset:{r*2048+h*1024}")
    for r in range(3):
        a(f"s_waitcnt lgkmcnt({4-2*r})")
        for j in range(0, 8, 2): a(f"v_pk_add_f32 {vr(KEEP+j,2)}, {vr(KEEP+j,2)}, {vr(8+8*r+j,2)}")
    for j in range(4):
        a(f"v_cvt_pk_bf16_f32 v40, v{KEEP+2*j}, v{KEEP+2*j+1}",
          "v_and_b32 v41, s58, v40", "v_lshlrev_b32 v40, 16, v40",
          f"v_mul_f32 v40, v40, v{vG}", f"v_mul_f32 v41, v41, v{vG}",
          "v_cvt_pk_bf16_f32 v40, v40, v41",
          "v_and_b32 v41, s58, v40", "v_lshlrev_b32 v40, 16, v40",
          f"v_lshlrev_b32 v42, 16, v{Bq+j}", f"v_and_b32 v43, s58, v{Bq+j}",
          "v_add_f32 v40, v40, v42", "v_add_f32 v41, v41, v43",
          f"v_cvt_pk_bf16_f32 v{44+j}, v40, v41")
    a("s_nop 1", "v_permlane32_swap_b32 v44, v46", "v_permlane32_swap_b32 v45, v47",
      f"buffer_store_dwordx4 v[44:47], v3, s[{SO}:{SO+3}], s61 offen")

TS = 2080
HALF = 16*TS
ORDER = "e0 e1 N e2 e3 c0 e4 e5 c1 S M e6 e7 c2 e8 e9 c3 e10 e11 c4 e12 P e13 c5 e14 e15 c6 c7"
def role_attn(a, end_label):
    s_head, s_qb, s_qw, s_kh = 45, 46, 47, 48
    s_kv, s_l, s_q, s_cnt = 49, 50, 51, 52
    sEX = 54
    s_src = 56
    S1, S2 = 32, 36
    vL16, vKA, vVA = 1, 2, 3
    Q = 4; K = 12; V = 16; P = 32; C = 40; S = 56; O = 88; T0 = 120
    vVB = 127
    a(f"s_and_b32 s45, s{S_B}, 7", f"s_lshr_b32 s46, s{S_B}, 3", "s_and_b32 s47, s45, 3", "s_lshr_b32 s48, s45, 2")
    srd(a, S1, S_X, 2048*1024)
    if OPT["prefetch"] & 1:
        Lw = a.newlabel("PF_w"); Ld = a.newlabel("PF_d")
        a(f"s_cmp_ge_u32 s{S_W}, 5", f"s_cbranch_scc1 {Ld}", f"s_cmp_ge_u32 s{S_W}, 2", f"s_cbranch_scc1 {Lw}")
        a("s_lshl_b32 s49, s47, 19", "s_lshl_b32 s50, s46, 14", "s_add_u32 s49, s49, s50", f"s_lshl_b32 s50, s{S_W}, 13", "s_add_u32 s49, s49, s50",
          "v_lshlrev_b32 v2, 7, v0", f"buffer_load_dword v126, v2, s[{S1}:{S1+3}], s49 offen", f"s_branch {Ld}")
        a.label(Lw)
        srd(a, S2, S_WQKV, 512*3072)
        a("s_mul_i32 s49, s46, 49152", f"s_sub_u32 s50, s{S_W}, 2", "s_lshl_b32 s50, s50, 10", "s_add_u32 s49, s49, s50",
          "s_lshl_b32 s50, s48, 9", "s_add_u32 s49, s49, s50",
          "v_lshrrev_b32 v2, 2, v0", "v_mul_u32_u24 v2, 3072, v2", "v_and_b32 v3, 3, v0", "v_lshl_add_u32 v2, v3, 7, v2",
          f"buffer_load_dword v126, v2, s[{S2}:{S2+3}], s49 offen")
        a.label(Ld)
    srd(a, S2, S_GW, 1024)
    a(f"v_lshlrev_b32 v{vL16}, 4, v0", f"s_lshl_b32 s53, s{S_B}, 3", f"s_add_u32 s53, s53, s{S_W}", "s_lshl_b32 s49, s53, 10",
      f"buffer_load_dwordx4 v[8:11], v{vL16}, s[{S2}:{S2+3}], 0 offen",
      f"buffer_load_dwordx4 v[12:15], v{vL16}, s[{S1}:{S1+3}], s49 offen")
    a("v_and_b32 v2, 31, v0", f"v_mul_u32_u24 v2, {TS}, v2", "v_lshrrev_b32 v3, 5, v0", "v_lshl_add_u32 v2, v3, 4, v2",
      "v_cmp_eq_u32 vcc, 0, v3", "v_mov_b32 v4, 0x3f803f80", "s_nop 0", "v_cndmask_b32 v4, 0, v4, vcc",
      "v_mov_b32 v5, v4", "v_mov_b32 v6, v4", "v_mov_b32 v7, v4",
      "ds_write_b128 v2, v[4:7] offset:2048")
    get_tag(a, 30, S1, updater=1)
    if OPT["prefetch"] & 2:
        Lu = a.newlabel("PF_u"); Lc = a.newlabel("PF_c")
        a(f"s_cmp_ge_u32 s{S_W}, 4", f"s_cbranch_scc1 {Lu}")
        srd(a, S2, S_WG, 512*3584)
        a(f"s_branch {Lc}")
        a.label(Lu)
        srd(a, S2, S_WU, 512*3584)
        a.label(Lc)
        a("s_lshl_b32 s49, s46, 2", f"s_and_b32 s50, s{S_W}, 3", "s_add_u32 s49, s49, s50", f"s_mul_i32 s49, s49, {4*3584}",
          "s_mul_i32 s50, s48, 1792", "s_add_u32 s49, s49, s50",
          "v_lshrrev_b32 v2, 4, v0", "v_mul_u32_u24 v2, 3584, v2", "v_and_b32 v3, 15, v0", "v_min_u32 v3, 13, v3", "v_lshl_add_u32 v2, v3, 7, v2",
          f"buffer_load_dword v126, v2, s[{S2}:{S2+3}], s49 offen")
    a("s_mov_b32 s57, 0xffff0000")
    acc = 28
    for j in range(4):
        a(f"v_lshlrev_b32 v16, 16, v{8+j}", f"v_and_b32 v17, s57, v{8+j}",
          f"v_lshlrev_b32 v18, 16, v{12+j}", f"v_and_b32 v19, s57, v{12+j}",
          "v_mul_f32 v18, v18, v16", "v_mul_f32 v19, v19, v17",
          "v_cvt_pk_bf16_f32 v18, v18, v19", "v_and_b32 v19, s57, v18", "v_lshlrev_b32 v18, 16, v18")
        if j == 0: a(f"v_add_f32 v{acc}, v18, v19")
        else: a(f"v_add_f32 v{acc}, v{acc}, v18", f"v_add_f32 v{acc}, v{acc}, v19")
    for sh in (8, 4, 2, 1):
        a("s_nop 1", f"v_add_f32_dpp v{acc}, v{acc}, v{acc} row_ror:{sh} row_mask:0xf bank_mask:0xf")
    a("s_nop 1")
    for q in range(4): a(f"v_readlane_b32 s{58+q}, v{acc}, {16*q}")
    a("s_nop 1", f"v_mov_b32 v{acc}, s58", f"v_add_f32 v{acc}, s59, v{acc}", f"v_add_f32 v{acc}, s60, v{acc}", f"v_add_f32 v{acc}, s61, v{acc}")
    a(f"v_cvt_pk_bf16_f32 v{acc}, v{acc}, v{acc}", f"v_lshlrev_b32 v{acc}, 16, v{acc}",
      f"v_mul_f32 v{acc}, {(LOG2E | 0x80000000):#x}, v{acc}", f"v_exp_f32 v{acc}, v{acc}", "s_nop 0",
      f"v_add_f32 v{acc}, 1.0, v{acc}", f"v_rcp_f32 v{acc}, v{acc}", "s_nop 0",
      f"v_cvt_pk_bf16_f32 v{acc}, v{acc}, v{acc}", f"v_lshlrev_b32 v{acc}, 16, v{acc}",
      f"v_mov_b32 v{acc+1}, s{S_TAG}", "v_mov_b32 v2, 0",
      "s_lshl_b32 s53, s53, 3", f"s_add_u32 s53, s53, {WS_GG:#x}", "s_mov_b64 exec, 1",
      f"buffer_store_dwordx2 v[{acc}:{acc+1}], v2, s[{SWS}:{SWS+3}], s53 offen sc1", "s_mov_b64 exec, -1")
    a("s_waitcnt vmcnt(0)")
    if OPT["prefetch"] & 4:
        L7 = a.newlabel("PF_7"); Lc = a.newlabel("PF_c3")
        a("v_lshlrev_b32 v2, 7, v0", f"s_cmp_eq_u32 s{S_W}, 7", f"s_cbranch_scc1 {L7}")
        srd(a, S2, S_WD, 1792*1024)
        a("s_mul_i32 s49, s46, 7", f"s_add_u32 s49, s49, s{S_W}", "s_lshl_b32 s49, s49, 13",
          f"buffer_load_dword v126, v2, s[{S2}:{S2+3}], s49 offen", f"s_branch {Lc}")
        a.label(L7)
        srd(a, S2, S_WO, 512*1024)
        a("s_lshl_b32 s49, s46, 14", "s_add_u32 s50, s49, 8192",
          f"buffer_load_dword v126, v2, s[{S2}:{S2+3}], s49 offen", f"buffer_load_dword v125, v2, s[{S2}:{S2+3}], s50 offen")
        a.label(Lc)
    a(f"s_and_b32 s{s_head}, s{S_B}, 7", f"s_lshl_b32 s{s_head}, s{s_head}, 2",
      f"s_bfe_u32 s53, s{S_B}, 0x20003", f"s_add_u32 s{s_head}, s{s_head}, s53",
      f"s_lshr_b32 s{s_qb}, s{S_B}, 5",
      f"s_and_b32 s{s_qw}, s{S_W}, 3", f"s_lshr_b32 s{s_kh}, s{S_W}, 2",
      f"s_mov_b32 s{sEX}, 0xffff", f"s_mov_b32 s{sEX+1}, 0xffff")
    a(f"s_lshl_b32 s{s_kv}, s{s_head}, 17", f"s_add_u32 s{s_kv}, s{s_kv}, {WS_KV:#x}",
      f"s_lshl_b32 s{s_q}, s{s_head}, 6", f"s_lshl_b32 s53, s{s_qb}, 3", f"s_add_u32 s{s_q}, s{s_q}, s53",
      f"s_lshl_b32 s53, s{s_qw}, 1", f"s_add_u32 s{s_q}, s{s_q}, s53", f"s_lshl_b32 s{s_q}, s{s_q}, 10")
    a(f"s_lshl_b32 s{s_src}, s{s_kh}, 16", f"s_add_u32 s{s_src}, s{s_src}, s{s_kv}",
      f"s_lshl_b32 s53, s{s_qw}, 11", f"s_add_u32 s{s_src}, s{s_src}, s53",
      f"s_mul_i32 s{s_l}, s{s_kh}, {HALF}", f"s_mul_i32 s53, s{s_qw}, {TS}", f"s_add_u32 s57, s{s_l}, s53")
    a(f"v_add_u32 v{vKA}, s{s_l}, v{vL16}",
      f"v_lshrrev_b32 v{T0}, 5, v0", f"v_lshlrev_b32 v{T0}, 8, v{T0}", f"v_and_b32 v{T0+1}, 15, v0",
      f"v_lshl_add_u32 v{T0}, v{T0+1}, 4, v{T0}",
      f"v_and_b32 v{T0+1}, 11, v0", f"v_cmp_eq_u32 vcc, 0, v{T0+1}", f"v_mov_b32 v{T0+2}, 16", "s_nop 0",
      f"v_cndmask_b32 v{T0+2}, v{T0+2}, 0, vcc",
      f"v_add_u32 v{T0+3}, 1024, v{T0+2}", f"v_add_u32 v{T0+2}, 512, v{T0+2}",
      f"v_cndmask_b32 v{vVA}, v{T0+3}, v{T0}, s[{sEX}:{sEX+1}]", f"v_cndmask_b32 v{vVB}, v{T0+2}, v{T0}, s[{sEX}:{sEX+1}]",
      f"v_add_u32 v{vVA}, s{s_l}, v{vVA}", f"v_add_u32 v{vVB}, s{s_l}, v{vVB}")
    for r in range(4): a(f"v_mov_b32 v{V+12+r}, 0", f"v_mov_b32 v{P+4+r}, 0")
    for r in range(32): a(f"v_mov_b32 v{O+r}, 0")
    a(f"s_lshr_b32 s53, s{s_head}, 1", "s_lshl_b32 s53, s53, 8", f"s_add_u32 s53, s53, {WS_FQ:#x}")
    a.stamp(0)
    if OPT["dbg"] == 1: a(f"s_branch {end_label}")
    a("s_waitcnt lgkmcnt(0)")
    wg_poll(a, 53, 64, T0, 58, OPT["sleep_q"])
    a("s_waitcnt vmcnt(0)")
    a.stamp(1)
    if OPT["prio"]: a(f"s_setprio {OPT['prio']}")
    def issue_chunk(slot):
        for h in range(2):
            a(f"s_add_u32 m0, s57, {(slot*8+4*h)*TS}")
            if h == 0: a("s_nop 0")
            else: a(f"s_add_u32 s{s_src}, s{s_src}, 8192")
            a(f"buffer_load_dwordx4 v{vL16}, s[{SWS}:{SWS+3}], s{s_src} offen{SC} lds",
              f"buffer_load_dwordx4 v{vL16}, s[{SWS}:{SWS+3}], s{s_src} offen offset:1024{SC} lds")
        a(f"s_add_u32 s{s_src}, s{s_src}, 8192")
    a(f"buffer_load_dwordx4 {vr(Q,4)}, v{vL16}, s[{SWS}:{SWS+3}], s{s_q} offen{SC}",
      f"buffer_load_dwordx4 {vr(Q+4,4)}, v{vL16}, s[{SWS}:{SWS+3}], s{s_q} offen offset:1024{SC}")
    issue_chunk(0); issue_chunk(1)
    def rd(it, vbuf):
        off = (it % 16) * TS
        return [f"ds_read_b128 {vr(K,4)}, v{vKA} offset:{off}",
                f"ds_read_b128 {vr(V+8*vbuf,4)}, v{vVA} offset:{off+1024}",
                f"ds_read_b128 {vr(V+8*vbuf+4,4)}, v{vVB} offset:{off+1536}"]
    a("s_waitcnt vmcnt(6)", "s_barrier")
    a(f"ds_read_b128 {vr(P,4)}, v{vL16}")
    a(*rd(0, 0))
    a("s_waitcnt lgkmcnt(3)")
    a(mfma(S, P, Q, "0"), mfma(S+16, P, Q+4, "0"), "s_nop 7", "s_nop 3")
    for t in range(2):
        b = S + 16*t; m = T0 + t
        a(f"v_max3_f32 v{m}, v{b}, v{b+1}, v{b+2}")
        for r in range(3, 15, 2): a(f"v_max3_f32 v{m}, v{m}, v{b+r}, v{b+r+1}")
        a(f"v_max_f32 v{m}, v{m}, v{b+15}")
        a(f"v_mov_b32 v{T0+2}, v{m}", "s_nop 1", f"v_permlane32_swap_b32 v{m}, v{T0+2}", "s_nop 1", f"v_max_f32 v{m}, v{m}, v{T0+2}")
    a(f"v_min_f32 v{T0}, v{T0}, v{T0+1}")
    for r in range(16): a(f"v_sub_f32 v{C+r}, 0, v{T0}")
    a("s_waitcnt lgkmcnt(0)", f"s_mov_b32 s{s_cnt}, 0")
    a(mfma(S, K, Q, C))
    a.stamp(2)
    a("s_nop 7", "s_nop 3")
    def phase(Sb, Ob, vb, smf, mid, pend, wait):
        for tok in ORDER.split():
            if tok[0] == 'e': r = int(tok[1:]); a(f"v_exp_f32 v{Sb+r}, v{Sb+r}")
            elif tok[0] == 'c': k = int(tok[1:]); a(f"v_cvt_pk_bf16_f32 v{P+k}, v{Sb+2*k}, v{Sb+2*k+1}")
            elif tok == 'S':
                if wait: a("s_waitcnt lgkmcnt(0)")
                a(smf)
            elif tok == 'N': a(pend)
            elif tok == 'P': a(mfma(Ob, V+8*vb, P))
            elif tok == 'M': mid()
        return mfma(Ob, V+8*vb+4, P+4)
    Lloop = a.newlabel("ATT_loop")
    a(".p2align 6")
    a.label(Lloop)
    pend = mfma(O+16, V+12, P+4)
    for it in range(16):
        vb = it % 2
        def midA(it=it, vb=vb):
            if it == 3:
                Lno = a.newlabel("ATT_n3")
                a(f"s_cbranch_scc1 {Lno}", "s_waitcnt vmcnt(4)", "s_barrier")
                a.label(Lno)
            elif it == 7:
                Lno = a.newlabel("ATT_n7")
                a("s_waitcnt vmcnt(0)", "s_barrier", f"s_cbranch_scc1 {Lno}")
                issue_chunk(0)
                a("s_cmp_lg_u32 0, 0")
                a.label(Lno)
            elif it == 15:
                Lno = a.newlabel("ATT_n15")
                a(f"s_cbranch_scc1 {Lno}", "s_waitcnt vmcnt(0)", "s_barrier")
                issue_chunk(1)
                a.label(Lno)
            a(*rd(it + 1, 1 - vb))
        if it == 0: a(f"s_cmp_lg_u32 s{s_cnt}, 0")
        pend = phase(S, O, vb, mfma(S+16, K, Q+4, C), midA, pend, False)
        pend = phase(S+16, O+16, vb, mfma(S, K, Q, C), lambda: None, pend, True)
    a(f"s_add_u32 s{s_cnt}, s{s_cnt}, 1", f"s_cmp_lt_u32 s{s_cnt}, 2", f"s_cbranch_scc1 {Lloop}")
    a("s_nop 1", pend)
    a.stamp(3)
    XA = 2*HALF
    Lk1 = a.newlabel("ATT_k1"); Lj = a.newlabel("ATT_j")
    a("s_barrier")
    a(f"s_mul_i32 s53, s{S_W}, 3072", f"v_add_u32 v{vKA}, s53, v{vL16}",
      f"s_xor_b32 s53, s{S_W}, 4", "s_mul_i32 s53, s53, 3072", f"v_add_u32 v{T0+4}, s53, v{vL16}", "s_nop 7")
    a(f"s_cmp_eq_u32 s{s_kh}, 1", f"s_cbranch_scc1 {Lk1}")
    for j in range(3): a(f"ds_write_b128 v{vKA}, {vr(O+16+4*j,4)} offset:{1024*j}")
    a(f"s_branch {Lj}")
    a.label(Lk1)
    for j in range(3): a(f"ds_write_b128 v{vKA}, {vr(O+4*j,4)} offset:{1024*j}")
    a("s_nop 1")
    for j in range(9): a(f"v_mov_b32 v{O+j}, v{O+16+j}")
    for j in range(4): a(f"v_mov_b32 v{Q+j}, v{Q+4+j}")
    a.label(Lj)
    a(f"s_lshl_b32 s53, s{s_qb}, 3", f"s_lshl_b32 s57, s{s_qw}, 1", "s_add_u32 s53, s53, s57", f"s_add_u32 s53, s53, s{s_kh}",
      "s_lshl_b32 s53, s53, 5", f"s_add_u32 s53, s53, s{s_head}",
      "s_lshl_b32 s62, s53, 2", f"s_add_u32 s62, s62, {WS_FO:#x}",
      "s_lshl_b32 s63, s53, 10", f"s_add_u32 s63, s63, {WS_OF:#x}")
    a("s_waitcnt lgkmcnt(0)", "s_barrier")
    for j in range(3): a(f"ds_read_b128 {vr(S+4*j,4)}, v{T0+4} offset:{1024*j}")
    a("s_waitcnt lgkmcnt(0)")
    for j in range(9): a(f"v_add_f32 v{O+j}, v{O+j}, v{S+j}")
    Lfb = a.newlabel("ATT_fallback"); Lfin = a.newlabel("ATT_fin")
    a(f"v_max3_f32 v{T0}, |v{O}|, |v{O+1}|, |v{O+2}|", f"v_max3_f32 v{T0}, v{T0}, |v{O+3}|, |v{O+4}|",
      f"v_max3_f32 v{T0}, v{T0}, |v{O+5}|, |v{O+6}|", f"v_max_f32 v{T0}, v{T0}, |v{O+7}|")
    a(f"v_add_f32 v{T0+1}, v{O}, v{O+1}")
    for j in range(2, 8): a(f"v_add_f32 v{T0+1}, v{T0+1}, v{O+j}")
    a("s_mov_b32 s53, 0x5d800000", f"v_cmp_nlt_f32 vcc, v{O+8}, s53",
      "s_mov_b32 s53, 0x7e800000", f"v_cmp_nlt_f32 s[58:59], v{T0}, s53",
      f"v_cmp_u_f32 s[60:61], v{T0+1}, v{T0+1}",
      "s_or_b64 vcc, vcc, s[58:59]", "s_or_b64 vcc, vcc, s[60:61]",
      f"s_cbranch_vccnz {Lfb}")
    a.label(Lfin)
    a(f"v_rcp_f32 v{T0}, v{O+8}", "s_nop 0")
    for j in range(8): a(f"v_mul_f32 v{O+j}, v{O+j}, v{T0}")
    for j in range(4): a(f"v_cvt_pk_bf16_f32 v{P+j}, v{O+2*j}, v{O+2*j+1}")
    a(f"buffer_store_dwordx4 {vr(P,4)}, v{vL16}, s[{SWS}:{SWS+3}], s63 offen{SC}")
    a.stamp(4)
    a("s_waitcnt vmcnt(0)")
    set_flag(a, 62, T0)
    a.stamp(5)
    a(f"s_branch {end_label}")
    a.label(Lfb)
    L1 = a.newlabel("ATT_fb1"); L2 = a.newlabel("ATT_fb2")
    a(f"v_mov_b32 v{T0}, 0xff800000", f"s_mov_b32 s57, s{s_kv}", f"s_mov_b32 s{s_cnt}, 0")
    a.label(L1)
    a(f"buffer_load_dwordx4 {vr(K,4)}, v{vL16}, s[{SWS}:{SWS+3}], s57 offen{SC}", "s_waitcnt vmcnt(0)",
      mfma(S, K, Q, "0"), "s_nop 7", "s_nop 7")
    for r in range(0, 16, 2): a(f"v_max3_f32 v{T0}, v{T0}, v{S+r}, v{S+r+1}")
    a("s_add_u32 s57, s57, 2048", f"s_add_u32 s{s_cnt}, s{s_cnt}, 1", f"s_cmp_lt_u32 s{s_cnt}, 64", f"s_cbranch_scc1 {L1}")
    a(f"v_mov_b32 v{T0+2}, v{T0}", "s_nop 1", f"v_permlane32_swap_b32 v{T0}, v{T0+2}", "s_nop 1", f"v_max_f32 v{T0}, v{T0}, v{T0+2}")
    for r in range(16): a(f"v_sub_f32 v{C+r}, 0, v{T0}", f"v_mov_b32 v{O+r}, 0")
    a(f"v_lshrrev_b32 v{T0}, 5, v0", f"v_lshlrev_b32 v{T0}, 8, v{T0}", f"v_and_b32 v{T0+1}, 15, v0",
      f"v_lshl_add_u32 v{vVA}, v{T0+1}, 4, v{T0}")
    a(f"s_mov_b32 s57, s{s_kv}", f"s_mov_b32 s{s_cnt}, 0")
    a.label(L2)
    a(f"buffer_load_dwordx4 {vr(K,4)}, v{vL16}, s[{SWS}:{SWS+3}], s57 offen{SC}",
      f"s_mov_b64 exec, s[{sEX}:{sEX+1}]",
      f"buffer_load_dwordx4 {vr(V,4)}, v{vVA}, s[{SWS}:{SWS+3}], s57 offen offset:1024{SC}",
      f"buffer_load_dwordx4 {vr(V+4,4)}, v{vVA}, s[{SWS}:{SWS+3}], s57 offen offset:1536{SC}",
      "s_mov_b64 exec, -1", "s_waitcnt vmcnt(0)",
      mfma(S, K, Q, C), "s_nop 7", "s_nop 7")
    for r in range(16): a(f"v_exp_f32 v{S+r}, v{S+r}")
    a("s_nop 0")
    for k in range(8): a(f"v_cvt_pk_bf16_f32 v{P+k}, v{S+2*k}, v{S+2*k+1}")
    a("s_nop 1", mfma(O, V, P), mfma(O, V+4, P+4), "s_nop 7", "s_nop 7")
    a("s_add_u32 s57, s57, 2048", f"s_add_u32 s{s_cnt}, s{s_cnt}, 1", f"s_cmp_lt_u32 s{s_cnt}, 64", f"s_cbranch_scc1 {L2}")
    a(f"s_branch {Lfin}")

def build(prof=False, as_list=False):
    a = Asm(); a.prof = prof
    a('.amdgcn_target "amdgcn-amd-amdhsa--gfx950"')
    a(".text", f".globl {NAME}", ".p2align 8", f".type {NAME},@function")
    a.label(NAME)
    end = "K_end"
    if prof:
        a("s_memrealtime s[88:89]", "s_memtime s[90:91]", "s_mov_b32 s94, s2")
        for i in range(6): a(f"s_mov_b32 s{64+2*i}, 0")
    a("s_cmp_ge_u32 s2, 512", f"s_cbranch_scc1 {end}_x")
    a("s_load_dwordx16 s[4:19], s[0:1], 0", "s_load_dwordx4 s[20:23], s[0:1], 64", "s_load_dwordx2 s[24:25], s[0:1], 80")
    a("v_lshrrev_b32 v1, 6, v0", f"s_and_b32 s{S_B}, s2, 255", f"v_readfirstlane_b32 s{S_W}, v1", "v_and_b32 v0, 63, v0")
    a("s_waitcnt lgkmcnt(0)")
    srd(a, SWS, S_WS, WS_SIZE)
    LB = "ROLE_B"
    a("s_cmp_ge_u32 s2, 256", f"s_cbranch_scc1 {LB}")
    role_attn(a, end)
    a.label(LB)
    phase_qkv(a)
    if OPT["dbg"] == 2: a("s_branch K_end")
    phase_up(a)
    phase_down_out(a)
    a.label(end)
    if prof == 2:
        a("s_waitcnt vmcnt(0) lgkmcnt(0)", "s_memrealtime s[84:85]", "s_memtime s[86:87]",
          f"s_cmp_lg_u32 s{S_W}, 0", f"s_cbranch_scc1 {end}_x",
          "s_mov_b32 s76, s22", "s_and_b32 s77, s23, 0xffff", "s_mov_b32 s78, 256", "s_mov_b32 s79, 0x00020000",
          "s_waitcnt lgkmcnt(0)", "s_sub_u32 s86, s86, s90", "s_not_b32 s83, s88",
          "s_cmp_ge_u32 s94, 256", "s_cselect_b32 s82, 32, 4", "s_cselect_b32 s83, s86, s83")
        vals = ["s83", "s88", "s64", "s66", "s68", "s70", "s72", "s84"]
        a("v_mov_b32 v4, 0")
        for i, v in enumerate(vals): a(f"v_writelane_b32 v4, {v}, {i}")
        a("s_cmp_ge_u32 s94, 256", "s_cbranch_scc1 PR_b")
        for i, v in enumerate(["s83", "s88", "s66", "s68", "s70", "s74", "s84"]): a(f"v_writelane_b32 v4, {v}, {i}")
        a("s_mov_b64 exec, 0x7f", "s_branch PR_c")
        a.label("PR_b")
        for i, v in enumerate(["s83", "s70", "s64", "s66", "s68", "s72", "s74", "s84"]): a(f"v_writelane_b32 v4, {v}, {i}")
        a("s_mov_b64 exec, 0xff")
        a.label("PR_c")
        a("v_lshlrev_b32 v5, 2, v0", "s_nop 1", "buffer_atomic_umax v4, v5, s[76:79], s82 offen")
    elif prof:
        a("s_waitcnt vmcnt(0) lgkmcnt(0)", "s_memrealtime s[84:85]", "s_memtime s[86:87]",
          "s_getreg_b32 s83, hwreg(HW_REG_XCC_ID)",
          "s_mov_b32 s76, s24", "s_and_b32 s77, s25, 0xffff", "s_mov_b32 s78, 0x2000000", "s_mov_b32 s79, 0x00020000",
          "s_lshl_b32 s94, s94, 3", f"s_add_u32 s94, s94, s{S_W}", "s_lshl_b32 s94, s94, 6",
          f"s_add_u32 s94, s94, {WS_PROF:#x}",
          "s_waitcnt lgkmcnt(0)", "s_sub_u32 s86, s86, s90",
          "v_mov_b32 v4, s88", "v_mov_b32 v5, s84", "v_mov_b32 v6, s86", "v_mov_b32 v7, s83", "v_mov_b32 v8, 0",
          "s_mov_b64 exec, 1",
          "buffer_store_dwordx4 v[4:7], v8, s[76:79], s94 offen")
        for i in range(6): a(f"s_sub_u32 s{64+2*i}, s{64+2*i}, s90", f"v_mov_b32 v{12+i}, s{64+2*i}")
        a("buffer_store_dwordx4 v[12:15], v8, s[76:79], s94 offen offset:16", "buffer_store_dwordx2 v[16:17], v8, s[76:79], s94 offen offset:32")
    a.label(end + "_x")
    a("s_endpgm")
    desc = f""".section .rodata,"a"
.p2align 6
.amdhsa_kernel {NAME}
  .amdhsa_next_free_vgpr 128
  .amdhsa_next_free_sgpr 96
  .amdhsa_accum_offset 128
  .amdhsa_group_segment_fixed_size 0
  .amdhsa_kernarg_size 88
  .amdhsa_user_sgpr_count 2
  .amdhsa_user_sgpr_kernarg_segment_ptr 1
  .amdhsa_system_sgpr_workgroup_id_x 1
.end_amdhsa_kernel
"""
    k = f"kernel={NAME} " if as_list else ""
    return HEADER + f"; @launch {k}grid=(512,1,1) block=(512,1,1) lds={LDS_BYTES}\n" + a.text() + desc

if __name__ == "__main__":
    out = sys.argv[1]
    for x in sys.argv[2:]:
        if "=" in x:
            k, v = x.split("="); OPT[k] = int(v)
    open(out, "w").write(build(prof=(2 if "--prof2" in sys.argv else ("--prof" in sys.argv)), as_list="--list" in sys.argv))
```

```python
class Asm:
    def __init__(self):
        self.lines = []
        self.uid = 0
    def __call__(self, s, *rest):
        for x in (s,) + rest:
            for ln in x.split("\n"):
                ln = ln.rstrip()
                if not ln.strip():
                    continue
                st = ln.strip()
                if st.endswith(":") or st.startswith("."):
                    self.lines.append(st)
                else:
                    self.lines.append("    " + st)
    def c(self, s):
        self.lines.append("    ; " + s)
    def label(self, name):
        self.lines.append(name + ":")
    def newlabel(self, p="L"):
        self.uid += 1
        return f"{p}_{self.uid}"
    prof = False
    sb = 64
    plan = None
    def stamp(self, i):
        if self.plan is not None:
            if i not in self.plan: return
            i = self.plan.index(i) + 1
        if self.prof == 2:
            self(f"s_memrealtime s[{self.sb+2*i}:{self.sb+1+2*i}]")
        elif self.prof:
            self(f"s_memtime s[{self.sb+2*i}:{self.sb+1+2*i}]")
    def text(self):
        return "\n".join(self.lines) + "\n"

def vr(b, n=1):
    return f"v{b}" if n == 1 else f"v[{b}:{b+n-1}]"
def sr(b, n=1):
    return f"s{b}" if n == 1 else f"s[{b}:{b+n-1}]"
def mfma(d, a, b, c=None):
    cs = vr(d, 16) if c is None else (c if isinstance(c, str) else vr(c, 16))
    return f"v_mfma_f32_32x32x16_bf16 {vr(d,16)}, {vr(a,4)}, {vr(b,4)}, {cs}"
```

```python
import sys
from asmlib import *

NAME = "gated_mix__softmax_full_mha__glu_gated_bilinear__prompt_kernel"
HEADER = open("gated_mix__softmax_full_mha__glu_gated_bilinear__prompt.s.ref").read().split("; Override launch")[0]

WS_QF = 0x000000
WS_KV = 0x200000
WS_OF = 0x600000
WS_HF = 0x800000
WS_GG = 0xF00000
WS_EP = 0xF04000
WS_FQ = 0xF10000
WS_FO = 0xF30000
WS_FH = 0xF70000
WS_SIZE = 0xFB0000
FS = 7
WS_PROF = 0x1800000
QSCALE = 0x3EB8AA3B
LOG2E = 0x3FB8AA3B
LDS_BYTES = 163840

S_X, S_WQKV, S_WO, S_WG, S_WU, S_WD, S_GW, S_OUT, S_DBG, S_WS = 4, 6, 8, 12, 14, 16, 18, 20, 22, 24
S_TAG, S_W = 26, 27
SWS, SA, SBd, SCd, SD = 28, 32, 36, 40, 44
SC = " sc1"
OPT = dict(tlb=1, dq=2, dg=3, dswitch=7, qpub=10, rot=2, dbg=0, sleep=2, dstart=6, dback=2)

def srd(a, d, p, nbytes):
    a(f"s_mov_b32 s{d}, s{p}", f"s_and_b32 s{d+1}, s{p+1}, 0xffff",
      f"s_mov_b32 s{d+2}, {hex(nbytes)}", f"s_mov_b32 s{d+3}, 0x00020000")

def dma(a, voff, srd_, soff, pre, imm=0, flags=""):
    for l in pre: a(l)
    o = f" offset:{imm}" if imm else ""
    a(f"buffer_load_dwordx4 v{voff}, s[{srd_}:{srd_+3}], {soff} offen{o}{flags} lds")

def poll(a, s_base, voff, mask, vt, st, staged=True):
    a(f"s_mov_b32 s{st}, 0x80000")
    for stage in range(0 if staged else 1, 2):
        L = a.newlabel("POLL"); Ld = a.newlabel("POLLD")
        if stage == 0: a("s_mov_b64 exec, 1")
        elif mask == (1 << 64) - 1: a("s_mov_b64 exec, -1")
        else: a(f"s_mov_b32 exec_lo, {mask & 0xffffffff:#x}", f"s_mov_b32 exec_hi, {mask >> 32:#x}")
        a.label(L)
        a(f"buffer_load_dword v{vt}, v{voff}, s[{SWS}:{SWS+3}], s{s_base} offen sc1",
          "s_waitcnt vmcnt(0)",
          f"v_cmp_ne_u32 vcc, s{S_TAG}, v{vt}",
          f"s_cbranch_vccz {Ld}",
          "s_mov_b64 exec, vcc",
          f"s_sleep {OPT['sleep']}",
          f"s_sub_u32 s{st}, s{st}, 1",
          f"s_cbranch_scc0 {L}")
        a.label(Ld)
    a("s_mov_b64 exec, -1")

def set_flag(a, s_off, vt):
    a(f"v_mov_b32 v{vt}, 0", f"v_mov_b32 v{vt+1}, s{S_TAG}", "s_mov_b64 exec, 1",
      f"buffer_store_dword v{vt+1}, v{vt}, s[{SWS}:{SWS+3}], s{s_off} offen sc1", "s_mov_b64 exec, -1")

PLAN = ["issued", "qkv", "up", "loop", "loopend", "oflag", "prepoll", "polled", "outmf"]
class VM:
    def __init__(self): self.q = []
    def add(self, tag, n=1): self.q += [tag] * n
    def wait_for(self, pred):
        idx = [i for i, t in enumerate(self.q) if pred(t)]
        if not idx: return None
        n = len(self.q) - 1 - idx[-1]
        self.q = self.q[idx[-1]+1:]
        return n

def vw(a, vm, pred, extra=""):
    n = vm.wait_for(pred)
    if n is not None: a(f"s_waitcnt vmcnt({n}){extra}")
    elif extra: a(f"s_waitcnt{extra}")

SLOT = 32768
TS = 2080; CS = 16*TS; AB = 32768
ORDER = "e0 e1 N e2 e3 c0 e4 e5 c1 S M e6 e7 c2 e8 e9 c3 e10 e11 c4 e12 P e13 c5 e14 e15 c6 c7"

s_rt, s_ct, s_ft, s_rb, s_hf, s_up = 48, 49, 50, 51, 52, 53
sX, sWq, sGU, sLx, sLw, sLg = 54, 55, 56, 57, 58, 59
T1, T2, T3, T4 = 60, 61, 62, 63
s_head, s_qb, s_src, s_lkv, s_q = 64, 65, 66, 67, 68
s_row = 69
s_fq = 70
sGo = 71
XR, ACC, WF = 128, 64, 32
Q, K, V, P, C, S, O = 16, 24, 32, 48, 64, 80, 112
vL16, vKA, vVA, vVB = 1, 2, 3, 4

def gemm_phase(a, hf, swap, L_attn):
    vm = VM()
    vXA, vWA, vGA = 2, 6, 7
    vXO, vWO, vGO, vUO = 11, 13, 28, 29
    vT = 24
    nb = 2 if hf == 0 else 1
    b0 = 0 if hf == 0 else 2
    def issue_groups(n):
        slot = (n % 5) * SLOT
        G = []
        def mk(voff, sr_, pre):
            def f():
                dma(a, voff, sr_, f"s{T1}", pre); vm.add(("u", n))
            return f
        if n < 8:
            if hf == 1:
                pre0 = [f"s_add_u32 s{T2}, s3, {n}", f"s_and_b32 s{T2}, s{T2}, 7", f"s_lshl_b32 s{T3}, s{T2}, 7", f"s_add_u32 s{T3}, s{T3}, s{sX}",
                        f"s_mul_i32 s{T2}, s{T2}, {64*3072}"]
                for jj in range(4):
                    G.append(mk(vXO + jj % 2, SA, (pre0 if jj == 0 else []) + [f"s_add_u32 m0, s{sLx}, {slot + jj*1024}", f"s_add_u32 s{T1}, s{T3}, {jj*8192}"]))
                for i in range(3):
                    G.append(mk(vWO + i, SBd, [f"s_add_u32 m0, s{sLw}, {slot + 16384 + i*1024}", f"s_add_u32 s{T1}, s{sWq}, s{T2}"]))
        else:
            g = n - 8
            pre0 = [f"s_add_u32 s{sGo}, s3, {g}", f"s_and_b32 s{sGo}, s{sGo}, 7", f"s_mul_i32 s{sGo}, s{sGo}, {64*3584}", f"s_add_u32 s{sGo}, s{sGo}, s{sGU}"]
            for h in range(2):
                G.append(mk(vGO, SCd, (pre0 if h == 0 else []) + [f"s_add_u32 m0, s{sLg}, {slot + h*1024}", f"s_add_u32 s{T1}, s{sGo}, {h*4*3584}"]))
                G.append(mk(vUO, SD, [f"s_add_u32 m0, s{sLg}, {slot + 16384 + h*1024}", f"s_add_u32 s{T1}, s{sGo}, {h*4*3584}"]))
        return G
    sched = {n: [] for n in range(-1, 16)}
    nxt = 0
    for n in range(-1, 16):
        dist = OPT["dq"] if n < OPT["dswitch"] else OPT["dg"]
        lim = min(15, n + dist, n + 4)
        while nxt <= lim and len(sched[n]) < (OPT["dq"] if n < 0 else 2):
            sched[n].append(nxt); nxt += 1
    for u in sched[-1]:
        for f in issue_groups(u): f()
    a.stamp("issued")
    if hf == 0 and OPT["tlb"]:
        Ls = [a.newlabel("TW") for _ in range(4)]; Le = a.newlabel("TWE")
        for q in range(1, 4): a(f"s_cmp_eq_u32 s{S_W}, {q}", f"s_cbranch_scc1 {Ls[q]}")
        a("v_mul_u32_u24 v30, 28672, v0", f"buffer_load_dword v31, v30, s[{SCd}:{SCd+3}], 0 offen", f"s_branch {Le}")
        a.label(Ls[1])
        a("v_mul_u32_u24 v30, 28672, v0", f"buffer_load_dword v31, v30, s[{SD}:{SD+3}], 0 offen", f"s_branch {Le}")
        a.label(Ls[2])
        srd(a, 72, S_WD, 1792*1024)
        a("v_mul_u32_u24 v30, 28672, v0", "buffer_load_dword v31, v30, s[72:75], 0 offen")
        srd(a, 72, S_WO, 512*1024)
        a("v_lshlrev_b32 v30, 13, v0", "buffer_load_dword v31, v30, s[72:75], 0 offen", f"s_branch {Le}")
        a.label(Ls[3])
        srd(a, 72, S_OUT, 2048*1024)
        a("v_lshlrev_b32 v30, 15, v0", "buffer_load_dword v31, v30, s[72:75], 0 offen",
          "v_lshlrev_b32 v30, 18, v0", f"buffer_load_dword v31, v30, s[{SWS}:{SWS+3}], 0 offen sc1")
        a.label(Le)
        a("s_waitcnt vmcnt(0)")
    a(f"v_mov_b32 v{vT}, 0", f"s_mov_b32 s{T1}, {WS_EP:#x}",
      f"buffer_load_dword v{vT+1}, v{vT}, s[{SWS}:{SWS+3}], s{T1} offen sc1")
    vm.add("E")
    srd(a, 72, S_GW, 1024)
    a(f"s_lshl_b32 s{T1}, s{s_row}, 10",
      f"buffer_load_dwordx4 v[16:19], v{vL16}, s[72:75], 0 offen",
      f"buffer_load_dwordx4 v[20:23], v{vL16}, s[{SA}:{SA+3}], s{T1} offen")
    vm.add("G", 2)
    a("v_and_b32 v30, 31, v0", "v_lshrrev_b32 v31, 5, v0", "v_bfe_u32 v32, v0, 1, 3", "v_xor_b32 v32, v32, v31",
      f"s_lshl_b32 s{T1}, s{s_rb}, 12", "v_lshlrev_b32 v33, 7, v30", f"v_add_u32 v33, s{T1}, v33")
    for s in range(4): a(f"v_xor_b32 v34, {2*s}, v32", f"v_lshl_add_u32 v{vXA+s}, v34, 4, v33")
    a("v_bfe_u32 v32, v0, 2, 2", "v_lshl_add_u32 v33, v31, 3, v32", "v_mul_u32_u24 v34, 192, v33",
      "v_bfe_u32 v35, v0, 4, 1", "v_lshl_add_u32 v34, v35, 5, v34", "v_and_b32 v36, 3, v0", "v_lshl_add_u32 v34, v36, 3, v34",
      f"v_add_u32 v{vWA}, {16384 + b0*64}, v34")
    a("v_lshlrev_b32 v33, 8, v33", "v_lshl_add_u32 v33, v35, 14, v33", "v_lshl_add_u32 v33, v36, 3, v33", "v_bfe_u32 v32, v0, 2, 3")
    for f in range(4): a(f"v_xor_b32 v34, {4*hf+f}, v32", f"v_lshl_add_u32 v{vGA+f}, v34, 5, v33")
    cur = [0]
    def rebase(n):
        slot = n % 5
        want = (slot // 2) * 2
        if want != cur[0]:
            d = ((want - cur[0]) * SLOT) & 0xffffffff
            regs = (list(range(vXA, vXA+4)) + [vWA] if n < 8 else []) + list(range(vGA, vGA+4))
            for r in regs: a(f"v_add_u32 v{r}, {d:#x}, v{r}")
            cur[0] = want
        return (slot - want) * SLOT
    def reads(n, s, off):
        p = s % 2
        R = []
        if n < 8:
            R.append(f"ds_read_b128 {vr(XR+4*(4*n+s),4)}, v{vXA+s} offset:{off}")
            for b in range(nb):
                for t in range(2):
                    R.append(f"ds_read_b64_tr_b16 {vr(WF+16*p+4*b+2*t,2)}, v{vWA} offset:{off+(16*s+4*t)*192+b*64}")
            return R
        for f in range(4):
            for t in range(2):
                R.append(f"ds_read_b64_tr_b16 {vr(WF+16*p+4*f+2*t,2)}, v{vGA+f} offset:{off+(16*s+4*t)*256}")
        return R
    def mf(n, s):
        p = s % 2
        M = []
        if n < 8:
            x = XR + 4*(4*n+s)
            for b in range(nb):
                c = "0" if (n == 0 and s == 0) else None
                M.append(mfma(ACC+16*b, x, WF+16*p+4*b, c) if swap else mfma(ACC+16*b, WF+16*p+4*b, x, c))
        else:
            x = XR + 4*(4*(n-8)+s)
            for f in range(4): M.append(mfma(ACC+16*f, WF+16*p+4*f, x, "0" if (n == 8 and s == 0) else None))
        return M
    def qkv_epilogue():
        a("s_nop 7", "s_nop 3")
        for b in range(nb):
            a(f"s_mul_i32 s{T1}, s{s_ct}, 3", f"s_add_u32 s{T1}, s{T1}, {b0+b}", f"s_and_b32 s{T2}, s{T1}, 15", f"s_lshl_b32 s{T2}, s{T2}, 7",
              f"s_lshl_b32 s{T3}, s{s_rt}, 2", f"s_add_u32 s{T3}, s{T3}, s{s_rb}", f"s_add_u32 s{T2}, s{T2}, s{T3}")
            A = ACC + 16*b; D = WF + 8*b
            if not swap:
                a(f"s_lshl_b32 s{T3}, s{T2}, 10", f"s_lshl_b32 s{T2}, s{T2}, 11", f"s_add_u32 s{T2}, s{T2}, {WS_KV:#x}",
                  f"s_cmp_lt_u32 s{T1}, 16", f"s_cselect_b32 s{T2}, s{T3}, s{T2}",
                  f"s_cselect_b32 s{T3}, 0x10000, 0x20000" .replace("0x10000, 0x20000", "1, 2"), f"s_cselect_b32 s{T4}, {QSCALE:#x}, 1.0",
                  f"s_lshl_b32 s{T3}, s{T3}, 16", f"s_add_u32 s{T3}, s{T3}, s{T2}")
                for r in range(16): a(f"v_mul_f32 v{A+r}, s{T4}, v{A+r}")
                for j in range(8): a(f"v_cvt_pk_bf16_f32 v{D+j}, v{A+2*j}, v{A+2*j+1}")
                a(f"buffer_store_dwordx4 {vr(D,4)}, v{vL16}, s[{SWS}:{SWS+3}], s{T2} offen{SC}",
                  f"buffer_store_dwordx4 {vr(D+4,4)}, v{vL16}, s[{SWS}:{SWS+3}], s{T3} offen{SC}")
            else:
                a(f"s_lshl_b32 s{T2}, s{T2}, 11", f"s_add_u32 s{T2}, s{T2}, {WS_KV:#x}")
                if b == 0:
                    a("v_bfe_u32 v30, v0, 4, 1", "v_lshlrev_b32 v30, 17, v30", "v_lshrrev_b32 v31, 5, v0", "v_lshl_add_u32 v30, v31, 8, v30",
                      "v_and_b32 v31, 15, v0", "v_lshl_add_u32 v30, v31, 4, v30")
                for j in range(8): a(f"v_cvt_pk_bf16_f32 v{D+j}, v{A+2*j}, v{A+2*j+1}")
                a(f"buffer_store_dwordx4 {vr(D,4)}, v30, s[{SWS}:{SWS+3}], s{T2} offen offset:1024{SC}",
                  f"buffer_store_dwordx4 {vr(D+4,4)}, v30, s[{SWS}:{SWS+3}], s{T2} offen offset:1536{SC}")
            vm.add("Q", 2)
    def gate_compute():
        acc = vT + 2
        a(f"s_mov_b32 s{T4}, 0xffff0000")
        for j in range(4):
            a(f"v_lshlrev_b32 v30, 16, v{16+j}", f"v_and_b32 v{16+j}, s{T4}, v{16+j}",
              f"v_lshlrev_b32 v31, 16, v{20+j}", f"v_and_b32 v{20+j}, s{T4}, v{20+j}",
              "v_mul_f32 v30, v30, v31", f"v_mul_f32 v31, v{16+j}, v{20+j}",
              "v_cvt_pk_bf16_f32 v30, v30, v31", f"v_and_b32 v31, s{T4}, v30", "v_lshlrev_b32 v30, 16, v30")
            if j == 0: a(f"v_add_f32 v{acc}, v30, v31")
            else: a(f"v_add_f32 v{acc}, v{acc}, v30", f"v_add_f32 v{acc}, v{acc}, v31")
        for sh in (8, 4, 2, 1):
            a("s_nop 1", f"v_add_f32_dpp v{acc}, v{acc}, v{acc} row_ror:{sh} row_mask:0xf bank_mask:0xf")
        a("s_nop 1")
        for q in range(4): a(f"v_readlane_b32 s{T1+q}, v{acc}, {16*q}")
        a("s_nop 1", f"v_mov_b32 v{acc}, s{T1}", f"v_add_f32 v{acc}, s{T2}, v{acc}", f"v_add_f32 v{acc}, s{T3}, v{acc}", f"v_add_f32 v{acc}, s{T4}, v{acc}")
        a(f"v_cvt_pk_bf16_f32 v{acc}, v{acc}, v{acc}", f"v_lshlrev_b32 v{acc}, 16, v{acc}",
          f"v_mul_f32 v{acc}, {(LOG2E | 0x80000000):#x}, v{acc}", f"v_exp_f32 v{acc}, v{acc}", "s_nop 0",
          f"v_add_f32 v{acc}, 1.0, v{acc}", f"v_rcp_f32 v{acc}, v{acc}", "s_nop 0",
          f"v_cvt_pk_bf16_f32 v{acc}, v{acc}, v{acc}", f"v_lshlrev_b32 v{acc}, 16, v{acc}")
    def tag_finish_and_gate_store():
        acc = vT + 2
        a(f"v_readfirstlane_b32 s{S_TAG}, v{vT+1}", f"v_readfirstlane_b32 s{T1}, v16", "s_nop 3",
          f"s_mul_i32 s{S_TAG}, s{S_TAG}, 1664525", f"s_add_u32 s{S_TAG}, s{S_TAG}, 1013904223", f"s_or_b32 s{S_TAG}, s{S_TAG}, 1",
          f"s_cmp_lg_u32 s{T1}, 0", f"s_cselect_b32 s{S_TAG}, s{T1}, s{S_TAG}",
          f"s_lshl_b32 s{T1}, s{s_row}, 3", f"s_add_u32 s{T1}, s{T1}, {WS_GG:#x}",
          f"v_mov_b32 v{acc+1}, s{S_TAG}", "s_mov_b64 exec, 1",
          f"buffer_store_dwordx2 v[{acc}:{acc+1}], v{vT}, s[{SWS}:{SWS+3}], s{T1} offen sc1", "s_mov_b64 exec, -1")
        vm.add("g")
    def w(pred, extra=""):
        n = vm.wait_for(pred)
        if n is not None: a(f"s_waitcnt vmcnt({n}){extra}")
        elif extra: a(f"s_waitcnt{extra}")
    prev = None
    L_noup = a.newlabel("NOUP")
    for n in range(16):
        if n == 8:
            a("s_waitcnt lgkmcnt(0)"); a(*mf(*prev)); prev = None
            a.stamp("qkv")
            qkv_epilogue()
            a(f"s_cmp_eq_u32 s{s_up}, 0", f"s_cbranch_scc1 {L_noup}")
        w(lambda t: t == ("u", n) or (n == OPT["qpub"] and t == "Q"), " lgkmcnt(0)" if n else "")
        a.stamp(f"pre{n}")
        a("s_barrier")
        a.stamp(f"b{n}")
        off = rebase(n)
        dm = [f for u in sched[n] for f in issue_groups(u)]
        for s in range(4):
            R = reads(n, s, off); M = mf(*prev) if prev else []
            if n < 8:
                a(*R)
                if s == 0:
                    for f in dm: f()
                    dm = []
                if s > 0: a(f"s_waitcnt lgkmcnt({len(R)})")
                if M: a(*M)
            else:
                if s > 0: a("s_waitcnt lgkmcnt(0)")
                nd = (len(dm) + (3 - s)) // (4 - s)
                for j in range(4):
                    if M: a(M[j])
                    a(R[2*j], R[2*j+1])
                    if j >= 1 and nd > 0 and dm: dm.pop(0)(); nd -= 1
            if s == 0:
                if n == OPT["qpub"] and hf == 0:
                    Lf = a.newlabel("QF"); a(f"s_cmp_lg_u32 s{S_W}, 0", f"s_cbranch_scc1 {Lf}"); set_flag(a, s_fq, 30); a.label(Lf)
                if n == 13: qflag_load(a, vm)
                if n == 14: attn_prefetch(a, vm, 0)
                if n == 15: attn_prefetch(a, vm, 1)
            prev = (n, s)
            if s == 1 and n == (2 if hf == 0 else 3):
                w(lambda t: t == "G"); gate_compute()
                srd(a, 72, S_DBG, 256)
                a(f"buffer_load_dword v16, v{vT}, s[72:75], 0 offen sc1"); vm.add("D")
            if s == 3 and n == 7:
                w(lambda t: t == "D"); tag_finish_and_gate_store()
                if hf == 0:
                    L = a.newlabel("NOUPD")
                    a(f"s_cmp_lg_u32 s{s_row}, 1", f"s_cbranch_scc1 {L}",
                      f"v_mov_b32 v30, s{S_TAG}", f"s_mov_b32 s{T1}, {WS_EP:#x}", "s_mov_b64 exec, 1",
                      f"buffer_store_dword v30, v{vT}, s[72:75], 0 offen sc1", "s_waitcnt vmcnt(0)",
                      f"buffer_store_dword v30, v{vT}, s[{SWS}:{SWS+3}], s{T1} offen sc1", "s_mov_b64 exec, -1", "s_waitcnt vmcnt(0)")
                    a.label(L)
    a("s_waitcnt lgkmcnt(0)"); a(*mf(*prev))
    a.stamp("up")
    a(f"s_lshl_b32 s{T1}, s{s_rt}, 2", f"s_add_u32 s{T1}, s{T1}, s{s_rb}", f"s_mul_i32 s{T1}, s{T1}, 112",
      f"s_lshl_b32 s{T2}, s{s_ft}, 3", f"s_add_u32 s{T1}, s{T1}, s{T2}", f"s_lshl_b32 s{T1}, s{T1}, 10",
      f"s_add_u32 s{T1}, s{T1}, {WS_HF + hf*4096:#x}", "s_nop 4")
    for f in range(4):
        A = ACC + 16*f; D = XR + 16 + 4*f
        for j in range(0, 8, 2): a(f"v_pk_mul_f32 {vr(A+j,2)}, {vr(A+j,2)}, {vr(A+8+j,2)}")
        for j in range(4): a(f"v_cvt_pk_bf16_f32 v{D+j}, v{A+2*j}, v{A+2*j+1}")
        a(f"buffer_store_dwordx4 {vr(D,4)}, v{vL16}, s[{SWS}:{SWS+3}], s{T1} offen offset:{f*1024}{SC}")
    a(f"s_branch {L_attn}")
    a.label(L_noup)
    a("s_waitcnt vmcnt(0)", "s_barrier")
    if hf == 0:
        Lf = a.newlabel("QF"); a(f"s_cmp_lg_u32 s{S_W}, 0", f"s_cbranch_scc1 {Lf}"); set_flag(a, s_fq, 30); a.label(Lf)
    vm2 = VM(); qflag_load(a, vm2); attn_prefetch(a, vm2, 0); attn_prefetch(a, vm2, 1)
    a("s_waitcnt vmcnt(0)")
    a(f"s_branch {L_attn}")

def issue_chunk(a, cslot):
    for h in range(2):
        a(f"s_add_u32 m0, s{s_lkv}, {cslot*CS + 4*h*TS}")
        if h == 0: a("s_nop 0")
        else: a(f"s_add_u32 s{s_src}, s{s_src}, 8192")
        a(f"buffer_load_dwordx4 v{vL16}, s[{SWS}:{SWS+3}], s{s_src} offen{SC} lds",
          f"buffer_load_dwordx4 v{vL16}, s[{SWS}:{SWS+3}], s{s_src} offen offset:1024{SC} lds")
    a(f"s_add_u32 s{s_src}, s{s_src}, 8192")

QMASK = (1 << 34) - 1
def qflag_load(a, vm):
    a(f"s_lshr_b32 s{T1}, s{s_head}, 1", "v_lshrrev_b32 v30, 4, v0", "v_add_u32 v30, 1, v30", "v_cmp_gt_u32 vcc, 3, v30", "s_nop 1",
      "v_cndmask_b32 v30, 0, v30, vcc", "v_lshlrev_b32 v30, 4, v30", f"v_add_u32 v30, s{T1}, v30",
      "v_mul_u32_u24 v30, 43691, v30", "v_lshrrev_b32 v30, 17, v30",
      "v_and_b32 v31, 15, v0", f"s_lshl_b32 s{T2}, s{s_qb}, 1", f"v_add_u32 v24, s{T2}, v31", "v_cndmask_b32 v31, v24, v31, vcc",
      "v_lshl_add_u32 v30, v30, 4, v31", f"v_lshlrev_b32 v30, {FS}, v30")
    flag_load(a, vm, WS_FQ, 30, QMASK, 31)

def flag_load(a, vm, base, voff, mask, vt):
    a(f"s_mov_b32 s{T1}, {base:#x}", f"s_mov_b32 exec_lo, {mask & 0xffffffff:#x}", f"s_mov_b32 exec_hi, {mask >> 32:#x}",
      f"buffer_load_dword v{vt}, v{voff}, s[{SWS}:{SWS+3}], s{T1} offen sc1", "s_mov_b64 exec, -1")
    vm.add("F")

def flag_check(a, vm, base, voff, mask, vt):
    L = a.newlabel("FOK")
    a(f"s_waitcnt vmcnt({vm.wait_for(lambda t: t == 'F')})",
      f"v_cmp_ne_u32 vcc, s{S_TAG}, v{vt}", f"s_and_b32 vcc_lo, vcc_lo, {mask & 0xffffffff:#x}", f"s_and_b32 vcc_hi, vcc_hi, {mask >> 32:#x}",
      f"s_or_b32 s{T1}, vcc_lo, vcc_hi", f"s_cbranch_scc0 {L}", f"s_mov_b32 s{T1}, {base:#x}")
    poll(a, T1, voff, mask, vt, T2, staged=False)
    a.label(L)

def attn_prefetch(a, vm, which):
    if which == 0:
        flag_check(a, vm, WS_FQ, 30, QMASK, 31)
        a(f"buffer_load_dwordx4 {vr(Q,4)}, v{vL16}, s[{SWS}:{SWS+3}], s{s_q} offen{SC}",
          f"buffer_load_dwordx4 {vr(Q+4,4)}, v{vL16}, s[{SWS}:{SWS+3}], s{s_q} offen offset:1024{SC}")
        vm.add("q", 2)
    issue_chunk(a, which)
    vm.add(("c", which), 4)

def attention_phase(a, end_label):
    vm = VM(); vm.add("q", 2); vm.add(("c", 0), 4); vm.add(("c", 1), 4); vm.add("h", 4)
    T0 = 8
    vWR, vWO = 5, 7
    vG1, vG2, vFO = 28, 30, 56
    AD, XD, WD = 144, 208, 240
    D = 4; NK = 14
    s_qw, s_kh = s_rb, s_hf
    sEX = 54
    s_r64, s_c64, s_x0, s_wd, s_wo, s_lw, s_fh = 56, 57, 58, 59, 71, 72, 73
    s_i, s_kq = 74, 75
    a("s_and_b32 s60, s2, 7", "s_lshr_b32 s61, s2, 3", f"s_lshl_b32 s{s_r64}, s60, 2", "s_and_b32 s60, s61, 3", f"s_add_u32 s{s_r64}, s{s_r64}, s60",
      f"s_lshr_b32 s{s_c64}, s61, 2", f"s_mov_b32 s{sEX}, 0xffff", f"s_mov_b32 s{sEX+1}, 0xffff",
      f"s_and_b32 s{s_i}, s{S_W}, 1", f"s_lshr_b32 s{s_kq}, s{S_W}, 1")
    srd(a, SA, S_WD, 1792*1024); srd(a, SBd, S_WO, 512*1024); srd(a, SCd, S_OUT, 2048*1024)
    a(f"s_mul_i32 s60, s{s_r64}, 224", f"s_mul_i32 s61, s{S_W}, {NK}", "s_add_u32 s60, s60, s61",
      f"s_lshl_b32 s{s_x0}, s60, 10", f"s_add_u32 s{s_x0}, s{s_x0}, {WS_HF:#x}",
      f"s_lshl_b32 s{s_wd}, s61, 14", f"s_lshl_b32 s60, s{s_c64}, 7", f"s_add_u32 s{s_wd}, s{s_wd}, s60",
      f"s_lshl_b32 s{s_wo}, s{S_W}, 16", f"s_add_u32 s{s_wo}, s{s_wo}, s60",
      f"s_lshl_b32 s{s_lw}, s{s_qw}, 13", f"s_lshl_b32 s60, s{s_kh}, 17", f"s_add_u32 s{s_lw}, s{s_lw}, s60")
    a(f"s_lshl_b32 s60, s{s_rt}, 2", f"s_add_u32 s60, s60, s{s_rb}", "s_lshl_b32 s60, s60, 5", f"s_lshl_b32 s61, s{s_ft}, 1", "s_add_u32 s60, s60, s61",
      f"s_add_u32 s60, s60, s{s_hf}", f"s_lshl_b32 s60, s60, {FS}", f"s_add_u32 s{s_fh}, s60, {WS_FH:#x}")
    a(f"v_and_b32 v{T0}, 31, v0", f"v_mul_u32_u24 v{T0}, {TS}, v{T0}", f"v_lshrrev_b32 v{T0+1}, 5, v0", f"v_lshl_add_u32 v{T0}, v{T0+1}, 4, v{T0}",
      f"v_cmp_eq_u32 vcc, 0, v{T0+1}", f"v_mov_b32 v{T0+4}, 0x3f803f80", "s_nop 0", f"v_cndmask_b32 v{T0+4}, 0, v{T0+4}, vcc",
      f"v_mov_b32 v{T0+5}, v{T0+4}", f"v_mov_b32 v{T0+6}, v{T0+4}", f"v_mov_b32 v{T0+7}, v{T0+4}",
      f"ds_write_b128 v{T0}, {vr(T0+4,4)} offset:{AB+2048}")
    a(f"s_mul_i32 s60, s{s_kh}, {8*TS}", f"s_add_u32 s60, s60, {AB}", f"v_add_u32 v{vKA}, s60, v{vL16}",
      f"v_lshlrev_b32 v{T0}, 8, v{T0+1}", f"v_and_b32 v{T0+1}, 15, v0", f"v_lshl_add_u32 v{T0}, v{T0+1}, 4, v{T0}",
      f"v_and_b32 v{T0+1}, 11, v0", f"v_cmp_eq_u32 vcc, 0, v{T0+1}", f"v_mov_b32 v{T0+2}, 16", "s_nop 0",
      f"v_cndmask_b32 v{T0+2}, v{T0+2}, 0, vcc",
      f"v_add_u32 v{T0+3}, 1024, v{T0+2}", f"v_add_u32 v{T0+2}, 512, v{T0+2}",
      f"v_cndmask_b32 v{vVA}, v{T0+3}, v{T0}, s[{sEX}:{sEX+1}]", f"v_cndmask_b32 v{vVB}, v{T0+2}, v{T0}, s[{sEX}:{sEX+1}]",
      f"v_add_u32 v{vVA}, s60, v{vVA}", f"v_add_u32 v{vVB}, s60, v{vVB}")
    def rd(it, vbuf):
        off = ((it // 8) % 2) * CS + (it % 8) * TS
        return [f"ds_read_b128 {vr(K,4)}, v{vKA} offset:{off}",
                f"ds_read_b128 {vr(V+8*vbuf,4)}, v{vVA} offset:{off+1024}",
                f"ds_read_b128 {vr(V+8*vbuf+4,4)}, v{vVB} offset:{off+1536}"]
    a(f"s_waitcnt vmcnt({vm.wait_for(lambda t: t == ('c', 0))}) lgkmcnt(0)", "s_barrier")
    a(f"ds_read_b128 {vr(P,4)}, v{vL16} offset:{AB}")
    a(*rd(0, 0))
    a(f"v_lshrrev_b32 v{T0}, 3, v0", f"v_lshlrev_b32 v{T0}, 10, v{T0}", f"v_bfe_u32 v{T0+1}, v0, 4, 1", f"v_lshlrev_b32 v{T0+2}, 2, v{T0+1}",
      f"v_and_b32 v{T0+3}, 7, v0", f"v_xor_b32 v{T0+2}, v{T0+2}, v{T0+3}", f"v_lshl_add_u32 v{vWO}, v{T0+2}, 4, v{T0}")
    a("s_waitcnt lgkmcnt(3)")
    a(mfma(S, P, Q, "0"), mfma(S+16, P, Q+4, "0"))
    vWO2, vX2 = 58, 59
    a(f"v_add_u32 v{vWO2}, {8192-1024}, v{vWO}", f"v_add_u32 v{vX2}, {112*1024}, v{vL16}")
    def issue_w(n):
        slot = n % D
        sr_, base = (SA, s_wd) if n < NK else (SBd, s_wo)
        a(f"s_add_u32 m0, s{s_lw}, {slot*2048}")
        if n not in (0, NK): a(f"s_add_u32 s{base}, s{base}, 16384")
        else: a("s_nop 0")
        dma(a, vWO, sr_, f"s{base}", [])
        dma(a, vWO2, sr_, f"s{base}", [], imm=1024)
        vm.add(("w", n), 2)
    def issue_x(n):
        slot = n % D
        if n and n % 4 == 0: a(f"s_add_u32 s{s_x0}, s{s_x0}, 4096")
        a(f"buffer_load_dwordx4 {vr(XD+8*slot,4)}, v{vL16}, s[{SWS}:{SWS+3}], s{s_x0} offen offset:{(n%4)*1024}{SC}",
          f"buffer_load_dwordx4 {vr(XD+8*slot+4,4)}, v{vX2}, s[{SWS}:{SWS+3}], s{s_x0} offen offset:{(n%4)*1024}{SC}")
        vm.add(("x", n), 2)
    a(f"v_lshrrev_b32 v{T0}, 5, v0", f"v_bfe_u32 v{T0+2}, v0, 2, 2", f"v_lshl_add_u32 v{T0}, v{T0}, 2, v{T0+2}", f"v_lshlrev_b32 v{T0}, 7, v{T0}",
      f"v_lshrrev_b32 v{T0+2}, 1, v{T0+2}", f"v_lshl_add_u32 v{T0}, v{T0+2}, 6, v{T0}",
      f"v_lshl_add_u32 v{T0}, v{T0+1}, 5, v{T0}", f"v_and_b32 v{T0+2}, 3, v0", f"v_lshl_add_u32 v{T0}, v{T0+2}, 3, v{T0}",
      f"v_add_u32 v{vWR}, s{s_lw}, v{T0}", f"v_xor_b32 v{vWR+1}, 64, v{vWR}")
    for r in range(4): a(f"v_mov_b32 v{V+12+r}, 0", f"v_mov_b32 v{P+4+r}, 0")
    for t in range(2):
        b = S + 16*t; m = T0 + t
        a(f"v_max3_f32 v{m}, v{b}, v{b+1}, v{b+2}")
        for r in range(3, 15, 2): a(f"v_max3_f32 v{m}, v{m}, v{b+r}, v{b+r+1}")
        a(f"v_max_f32 v{m}, v{m}, v{b+15}")
        a(f"v_mov_b32 v{T0+2}, v{m}", "s_nop 1", f"v_permlane32_swap_b32 v{m}, v{T0+2}", "s_nop 1", f"v_max_f32 v{m}, v{m}, v{T0+2}")
    a(f"v_min_f32 v{T0}, v{T0}, v{T0+1}")
    for r in range(16): a(f"v_sub_f32 v{C+r}, 0, v{T0}")
    a("s_waitcnt lgkmcnt(0)", "s_nop 0")
    a(mfma(S, K, Q, C))
    a(f"s_mul_i32 s60, s{S_W}, 14", "s_add_u32 s61, s60, 13", "s_lshr_b32 s60, s60, 2", "s_lshr_b32 s61, s61, 2",
      f"v_and_b32 v{vFO}, 7, v0", f"v_add_u32 v{vFO}, s60, v{vFO}", f"v_min_u32 v{vFO}, s61, v{vFO}",
      f"v_bfe_u32 v{T0}, v0, 3, 1", f"s_lshl_b32 s60, s{s_r64}, 1", f"v_add_u32 v{T0}, s60, v{T0}",
      f"v_lshl_add_u32 v{vFO}, v{T0}, 5, v{vFO}", f"v_lshlrev_b32 v{vFO}, {FS}, v{vFO}")
    a.stamp("loop")
    HMASK = 0x1f1f
    c0 = OPT["dstart"] + 2
    c = [c0 + (n * (31 - c0)) // (NK - 1) for n in range(NK)]
    assert len(set(c)) == NK and c[-1] <= 31
    done = {}
    xnext = [D]
    dq = []
    first_pv = [True, True]
    def phase(t, vb, smf, mid, pend, wait):
        Sb = S + 16*t; Ob = O + 16*t
        for tok in ORDER.split():
            if tok[0] == 'e': r = int(tok[1:]); a(f"v_exp_f32 v{Sb+r}, v{Sb+r}")
            elif tok[0] == 'c':
                k = int(tok[1:]); a(f"v_cvt_pk_bf16_f32 v{P+k}, v{Sb+2*k}, v{Sb+2*k+1}")
                ready = [d for d in dq if d[0] <= 0]
                if ready and (k == 3 or (k == 6 and len(ready) > OPT["dback"])):
                    d = dq.pop(0); a(d[1])
                    if not any(e[2] == d[2] for e in dq): done[d[2]] = True
            elif tok == 'S':
                if wait: a("s_waitcnt lgkmcnt(0)")
                if smf: a(smf)
            elif tok == 'N':
                if pend: a(pend)
            elif tok == 'P':
                a(mfma(Ob, V+8*vb, P, "0" if first_pv[t] else None)); first_pv[t] = False
            elif tok == 'M': mid()
        for d in dq: d[0] -= 1
        return mfma(Ob, V+8*vb+4, P+4)
    pend = None
    for it in range(32):
        vb = it % 2
        def midA():
            if it % 8 == 7 and it < 31:
                ch = it // 8 + 1
                vw(a, vm, lambda t: t == ('c', ch)); a("s_barrier")
                if ch + 1 < 4:
                    issue_chunk(a, (ch + 1) % 2); vm.add(("c", ch + 1), 4)
            if it < 31: a(*rd(it + 1, 1 - vb))
            if it in c:
                n = c.index(it); slot = n % D; p = n % 2
                assert n < 2 or done.get(n - 2), (n, it)
                vw(a, vm, lambda t: t in (('x', n), ('w', n)))
                for cb in range(2):
                    for t in range(2):
                        a(f"ds_read_b64_tr_b16 {vr(WD+8*p+4*cb+2*t,2)}, v{vWR+cb} offset:{slot*2048+t*1024}")
                for i in range(2):
                    for cb in range(2):
                        dq.append([1, mfma(AD+16*(2*i+cb), WD+8*p+4*cb, XD+8*slot+4*i, "0" if n == 0 else None), n])
        def midB():
            if it == 0:
                for n in range(D): issue_w(n)
            if it == 1:
                L = a.newlabel("NOH")
                a(f"s_waitcnt vmcnt({vm.wait_for(lambda t: t == 'h')})", f"s_cmp_eq_u32 s{s_up}, 0", f"s_cbranch_scc1 {L}")
                set_flag(a, s_fh, T0)
                a.label(L)
            if it == OPT["dstart"] - 1: flag_load(a, vm, WS_FH, vFO, HMASK, vFO+1)
            if it == OPT["dstart"]:
                flag_check(a, vm, WS_FH, vFO, HMASK, vFO+1)
                for n in range(D): issue_x(n)
            if it in c and c.index(it) + D < NK + 4: issue_w(c.index(it) + D)
            if xnext[0] < NK and done.get(xnext[0] - D): issue_x(xnext[0]); xnext[0] += 1
            if it == 20:
                a(f"v_and_b32 v{T0}, 31, v0", f"v_lshlrev_b32 v{T0}, 3, v{T0}",
                  f"s_lshl_b32 s60, s{s_qb}, 3", f"s_lshl_b32 s61, s{s_qw}, 1", "s_add_u32 s60, s60, s61", f"s_add_u32 s60, s60, s{s_kh}",
                  "s_lshl_b32 s60, s60, 8", f"s_add_u32 s60, s60, {WS_GG:#x}",
                  f"s_lshl_b32 s61, s{s_r64}, 1", f"s_add_u32 s61, s61, s{s_i}", "s_lshl_b32 s61, s61, 8", f"s_add_u32 s61, s61, {WS_GG:#x}",
                  f"buffer_load_dwordx2 v[{vG1}:{vG1+1}], v{T0}, s[{SWS}:{SWS+3}], s60 offen sc1",
                  f"buffer_load_dwordx2 v[{vG2}:{vG2+1}], v{T0}, s[{SWS}:{SWS+3}], s61 offen sc1")
                vm.add("g", 2)
        a.stamp(f"it{it}")
        pend = phase(0, vb, mfma(S+16, K, Q+4, C), midA, pend, False)
        pend = phase(1, vb, mfma(S, K, Q, C) if it < 31 else None, midB, pend, True)
    a("s_nop 1", pend)
    for d in dq: a(d[1])
    a.stamp("loopend")
    XO = 32768; XDN = 57344
    Lk1 = a.newlabel("ATT_k1"); Lj = a.newlabel("ATT_j")
    a("s_barrier")
    a(f"s_mul_i32 s60, s{S_W}, 3072", f"v_add_u32 v{vKA}, s60, v{vL16}",
      f"s_xor_b32 s60, s{S_W}, 4", "s_mul_i32 s60, s60, 3072", f"v_add_u32 v{vVB}, s60, v{vL16}", "s_nop 3")
    a(f"s_cmp_eq_u32 s{s_kh}, 1", f"s_cbranch_scc1 {Lk1}")
    for j in range(3): a(f"ds_write_b128 v{vKA}, {vr(O+16+4*j,4)} offset:{XO+1024*j}")
    a(f"s_branch {Lj}")
    a.label(Lk1)
    for j in range(3): a(f"ds_write_b128 v{vKA}, {vr(O+4*j,4)} offset:{XO+1024*j}")
    a("s_nop 1")
    for j in range(9): a(f"v_mov_b32 v{O+j}, v{O+16+j}")
    for j in range(4): a(f"v_mov_b32 v{Q+j}, v{Q+4+j}")
    a.label(Lj)
    a(f"s_lshl_b32 s60, s{s_qb}, 3", f"s_lshl_b32 s61, s{s_qw}, 1", "s_add_u32 s60, s60, s61", f"s_add_u32 s60, s60, s{s_kh}",
      "s_lshl_b32 s60, s60, 5", f"s_add_u32 s60, s60, s{s_head}",
      f"s_lshl_b32 s48, s60, {FS}", f"s_add_u32 s48, s48, {WS_FO:#x}",
      "s_lshl_b32 s49, s60, 10", f"s_add_u32 s49, s49, {WS_OF:#x}")
    Lgok = a.newlabel("GOK"); Lgr = a.newlabel("GRE")
    gw = vm.wait_for(lambda t: t == "g")
    if gw is not None: a(f"s_waitcnt vmcnt({gw})")
    a("s_mov_b32 s62, 0x80000")
    a.label(Lgr)
    a(f"v_cmp_ne_u32 vcc, s{S_TAG}, v{vG1+1}", f"v_cmp_ne_u32 s[60:61], s{S_TAG}, v{vG2+1}", "s_or_b64 vcc, vcc, s[60:61]", f"s_cbranch_scc0 {Lgok}",
      f"v_and_b32 v{T0}, 31, v0", f"v_lshlrev_b32 v{T0}, 3, v{T0}",
      f"s_sub_u32 s60, s49, {WS_OF:#x}", "s_lshr_b32 s60, s60, 15", "s_lshl_b32 s60, s60, 8", f"s_add_u32 s60, s60, {WS_GG:#x}",
      f"s_lshl_b32 s61, s{s_r64}, 1", f"s_add_u32 s61, s61, s{s_i}", "s_lshl_b32 s61, s61, 8", f"s_add_u32 s61, s61, {WS_GG:#x}",
      f"buffer_load_dwordx2 v[{vG1}:{vG1+1}], v{T0}, s[{SWS}:{SWS+3}], s60 offen sc1",
      f"buffer_load_dwordx2 v[{vG2}:{vG2+1}], v{T0}, s[{SWS}:{SWS+3}], s61 offen sc1",
      "s_waitcnt vmcnt(0)", "s_sub_u32 s62, s62, 1", f"s_cbranch_scc0 {Lgr}")
    a.label(Lgok)
    a("s_waitcnt lgkmcnt(0)", "s_barrier")
    for j in range(3): a(f"ds_read_b128 {vr(S+4*j,4)}, v{vVB} offset:{XO+1024*j}")
    a("s_waitcnt lgkmcnt(0)")
    for j in range(9): a(f"v_add_f32 v{O+j}, v{O+j}, v{S+j}")
    Lfb = a.newlabel("ATT_fallback"); Lfin = a.newlabel("ATT_fin")
    a(f"v_max3_f32 v{T0}, |v{O}|, |v{O+1}|, |v{O+2}|", f"v_max3_f32 v{T0}, v{T0}, |v{O+3}|, |v{O+4}|",
      f"v_max3_f32 v{T0}, v{T0}, |v{O+5}|, |v{O+6}|", f"v_max_f32 v{T0}, v{T0}, |v{O+7}|")
    a(f"v_add_f32 v{T0+1}, v{O}, v{O+1}")
    for j in range(2, 8): a(f"v_add_f32 v{T0+1}, v{T0+1}, v{O+j}")
    a("s_mov_b32 s62, 0x5d800000", f"v_cmp_nlt_f32 vcc, v{O+8}, s62",
      "s_mov_b32 s62, 0x7e800000", f"v_cmp_nlt_f32 s[60:61], v{T0}, s62",
      "s_or_b64 vcc, vcc, s[60:61]",
      f"v_cmp_u_f32 s[60:61], v{T0+1}, v{T0+1}",
      "s_or_b64 vcc, vcc, s[60:61]",
      f"s_cbranch_scc1 {Lfb}")
    a.label(Lfin)
    a(f"v_rcp_f32 v{T0}, v{O+8}", "s_nop 0", f"v_mul_f32 v{T0}, v{T0}, v{vG1}")
    for j in range(8): a(f"v_mul_f32 v{O+j}, v{O+j}, v{T0}")
    for j in range(4): a(f"v_cvt_pk_bf16_f32 v{P+j}, v{O+2*j}, v{O+2*j+1}")
    a(f"buffer_store_dwordx4 {vr(P,4)}, v{vL16}, s[{SWS}:{SWS+3}], s49 offen{SC}")
    Li1 = a.newlabel("DX_i1"); Lxj = a.newlabel("DX_j")
    a(f"s_lshl_b32 s60, s{S_W}, 13", f"s_add_u32 s60, s60, {XDN}", f"v_add_u32 v{vKA}, s60, v{vL16}", f"v_xor_b32 v{vVB}, 0x2000, v{vKA}" if XDN % 16384 == 0 else "s_nop 0")
    if XDN % 16384:
        a(f"s_xor_b32 s60, s{S_W}, 1", "s_lshl_b32 s60, s60, 13", f"s_add_u32 s60, s60, {XDN}", f"v_add_u32 v{vVB}, s60, v{vL16}")
    a(f"s_cmp_eq_u32 s{s_i}, 1", f"s_cbranch_scc1 {Li1}")
    for j in range(8): a(f"ds_write_b128 v{vKA}, {vr(AD+32+4*j,4)} offset:{1024*j}")
    a(f"s_branch {Lxj}")
    a.label(Li1)
    for j in range(8): a(f"ds_write_b128 v{vKA}, {vr(AD+4*j,4)} offset:{1024*j}")
    a("s_nop 1")
    for j in range(32): a(f"v_mov_b32 v{AD+j}, v{AD+32+j}")
    a.label(Lxj)
    a("s_waitcnt vmcnt(0)")
    set_flag(a, 48, T0)
    a.stamp("oflag")
    a("s_waitcnt lgkmcnt(0)", "s_barrier")
    for j in range(8): a(f"ds_read_b128 {vr(AD+32+4*j,4)}, v{vVB} offset:{1024*j}")
    WO = 64
    a(f"s_lshl_b32 s60, s{s_i}, 13", f"v_subrev_u32 v{vWR}, s60, v{vWR}", f"v_xor_b32 v{vWR+1}, 64, v{vWR}")
    a(f"v_sub_f32 v{vG2}, 1.0, v{vG2}", f"v_cvt_pk_bf16_f32 v{vG2}, v{vG2}, v{vG2}", f"v_lshlrev_b32 v{vG2}, 16, v{vG2}")
    a("s_waitcnt lgkmcnt(0)")
    for st in range(8):
        for cb in range(2):
            for t in range(2):
                a(f"ds_read_b64_tr_b16 {vr(WO+8*st+4*cb+2*t,2)}, v{vWR+cb} offset:{(st//4)*8192+((NK+st%4)%D)*2048+t*1024}")
        if st % 2 == 1: a("s_waitcnt lgkmcnt(6)")
        for j in range(4*st, 4*st+4):
            a(f"v_add_f32 v{AD+j}, v{AD+j}, v{AD+32+j}", f"v_mul_f32 v{AD+j}, v{AD+j}, v{vG2}")
    XF = 32
    a(f"s_lshl_b32 s60, s{s_r64}, 1", f"s_add_u32 s60, s60, s{s_i}",
      "s_lshl_b32 s61, s60, 5", f"s_lshl_b32 s62, s{s_kq}, 3", "s_add_u32 s61, s61, s62",
      "s_lshl_b32 s50, s61, 10", f"s_add_u32 s50, s50, {WS_OF:#x}", "s_add_u32 s51, s50, 4096",
      f"s_lshl_b32 s52, s61, {FS}", f"s_add_u32 s52, s52, {WS_FO:#x}",
      "s_lshl_b32 s53, s60, 15", f"s_lshl_b32 s62, s{s_c64}, 7", "s_add_u32 s53, s53, s62", f"s_lshl_b32 s62, s{s_kq}, 5", "s_add_u32 s53, s53, s62")
    a(f"v_and_b32 v{T0}, 31, v0", f"v_lshlrev_b32 v{T0}, 10, v{T0}", f"v_lshrrev_b32 v{T0+1}, 5, v0", f"v_lshl_add_u32 v{vVA}, v{T0+1}, 4, v{T0}",
      f"v_lshlrev_b32 v{T0}, {FS}, v0",
      f"s_mul_i32 s60, s{s_i}, {4*3*2048}", f"s_add_u32 s60, s60, {XO}", f"v_add_u32 v{vKA}, s60, v{vL16}",
      f"s_mul_i32 s61, s{s_kq}, {3*2048}", f"v_add_u32 v{vVB}, s61, v{vKA}")
    a("s_waitcnt lgkmcnt(0)", "s_barrier")
    a.stamp("prepoll")
    poll(a, 52, T0, 0xff, T0+1, 62)
    a.stamp("polled")
    for st in range(8):
        a(f"buffer_load_dwordx4 {vr(XF+4*st,4)}, v{vL16}, s[{SWS}:{SWS+3}], s{50 if st<4 else 51} offen offset:{(st%4)*1024}{SC}")
    for st in range(8):
        a(f"s_waitcnt vmcnt({7-st})")
        for cb in range(2): a(mfma(AD+16*cb, WO+8*st+4*cb, XF+4*st))
    a.stamp("outmf")
    a("s_nop 7", "s_nop 1")
    KEEP = 16
    Lj = a.newlabel("OUT_j")
    labs = [a.newlabel("OUT_k") for _ in range(4)]
    for kq in range(1, 4): a(f"s_cmp_eq_u32 s{s_kq}, {kq}", f"s_cbranch_scc1 {labs[kq]}")
    for kq in range(4):
        a.label(labs[kq])
        for q in range(4):
            if q == kq: continue
            rank = kq if kq < q else kq - 1
            for h in range(2):
                a(f"ds_write_b128 v{vKA}, {vr(AD+8*q+4*h,4)} offset:{(q*3+rank)*2048+h*1024}")
        for j in range(8): a(f"v_mov_b32 v{KEEP+j}, v{AD+8*kq+j}")
        if kq < 3: a(f"s_branch {Lj}")
    a.label(Lj)
    a("s_waitcnt lgkmcnt(0)", "s_barrier")
    for r in range(3):
        for h in range(2): a(f"ds_read_b128 {vr(XF+8*r+4*h,4)}, v{vVB} offset:{r*2048+h*1024}")
    for r in range(3):
        a(f"s_waitcnt lgkmcnt({4-2*r})")
        for j in range(8): a(f"v_add_f32 v{KEEP+j}, v{KEEP+j}, v{XF+8*r+j}")
    for j in range(4): a(f"v_cvt_pk_bf16_f32 v{24+j}, v{KEEP+2*j}, v{KEEP+2*j+1}")
    a("s_nop 1", "v_permlane32_swap_b32 v24, v26", "v_permlane32_swap_b32 v25, v27",
      f"buffer_store_dwordx4 v[24:27], v{vVA}, s[{SCd}:{SCd+3}], s53 offen")
    a(f"s_branch {end_label}")
    a.label(Lfb)
    L1 = a.newlabel("ATT_fb1"); L2 = a.newlabel("ATT_fb2")
    a(f"s_lshl_b32 s63, s{s_head}, 17", f"s_add_u32 s63, s63, {WS_KV:#x}")
    a(f"v_mov_b32 v{T0}, 0xff800000", "s_mov_b32 s60, s63", "s_mov_b32 s61, 0")
    a.label(L1)
    a(f"buffer_load_dwordx4 {vr(K,4)}, v{vL16}, s[{SWS}:{SWS+3}], s60 offen{SC}", "s_waitcnt vmcnt(0)",
      mfma(S, K, Q, "0"), "s_nop 7", "s_nop 7")
    for r in range(0, 16, 2): a(f"v_max3_f32 v{T0}, v{T0}, v{S+r}, v{S+r+1}")
    a("s_add_u32 s60, s60, 2048", "s_add_u32 s61, s61, 1", "s_cmp_lt_u32 s61, 64", f"s_cbranch_scc1 {L1}")
    a(f"v_mov_b32 v{T0+2}, v{T0}", "s_nop 1", f"v_permlane32_swap_b32 v{T0}, v{T0+2}", "s_nop 1", f"v_max_f32 v{T0}, v{T0}, v{T0+2}")
    for r in range(16): a(f"v_sub_f32 v{C+r}, 0, v{T0}", f"v_mov_b32 v{O+r}, 0")
    a(f"v_lshrrev_b32 v{T0}, 5, v0", f"v_lshlrev_b32 v{T0}, 8, v{T0}", f"v_and_b32 v{T0+1}, 15, v0",
      f"v_lshl_add_u32 v{vVA}, v{T0+1}, 4, v{T0}")
    a("s_mov_b32 s60, s63", "s_mov_b32 s61, 0")
    a.label(L2)
    a(f"buffer_load_dwordx4 {vr(K,4)}, v{vL16}, s[{SWS}:{SWS+3}], s60 offen{SC}",
      f"s_mov_b64 exec, s[{sEX}:{sEX+1}]",
      f"buffer_load_dwordx4 {vr(V,4)}, v{vVA}, s[{SWS}:{SWS+3}], s60 offen offset:1024{SC}",
      f"buffer_load_dwordx4 {vr(V+4,4)}, v{vVA}, s[{SWS}:{SWS+3}], s60 offen offset:1536{SC}",
      "s_mov_b64 exec, -1", "s_waitcnt vmcnt(0)",
      mfma(S, K, Q, C), "s_nop 7", "s_nop 7")
    for r in range(16): a(f"v_exp_f32 v{S+r}, v{S+r}")
    a("s_nop 0")
    for k in range(8): a(f"v_cvt_pk_bf16_f32 v{P+k}, v{S+2*k}, v{S+2*k+1}")
    a("s_nop 1", mfma(O, V, P), mfma(O, V+4, P+4), "s_nop 7", "s_nop 7")
    a("s_add_u32 s60, s60, 2048", "s_add_u32 s61, s61, 1", "s_cmp_lt_u32 s61, 64", f"s_cbranch_scc1 {L2}")
    a(f"s_branch {Lfin}")

def rot_code():
    m = OPT["rot"]
    if m == 0: return ["s_mov_b32 s3, 0"]
    if m == 1: return [f"s_lshl_b32 s3, s{s_rt}, 1", "s_add_u32 s3, s3, s61", "s_and_b32 s63, s60, 1", "s_add_u32 s3, s3, s63"]
    base = ["s_lshl_b32 s3, s60, 1", "s_and_b32 s63, s60, 4", "s_add_u32 s3, s3, s63"]
    if m == 2: return base
    if m == 3: return base + [f"s_add_u32 s63, s61, s{s_rt}", "s_and_b32 s63, s63, 1", "s_add_u32 s3, s3, s63"]
    if m == 4: return base + [f"s_add_u32 s63, s61, s{s_rt}", "s_and_b32 s63, s63, 1", "s_lshl_b32 s63, s63, 2", "s_add_u32 s3, s3, s63"]

def build(prof=False, as_list=False):
    a = Asm(); a.prof = prof; a.sb = 76
    a('.amdgcn_target "amdgcn-amd-amdhsa--gfx950"')
    a(".text", f".globl {NAME}", ".p2align 8", f".type {NAME},@function")
    a.label(NAME)
    end = "K_end"
    if prof:
        a.plan = PLAN
        a("s_memrealtime s[100:101]", "s_memtime s[76:77]")
        for i in range(1, 12): a(f"s_mov_b32 s{76+2*i}, 0")
    a("s_cmp_ge_u32 s2, 256", f"s_cbranch_scc1 {end}_x")
    a("s_load_dwordx16 s[4:19], s[0:1], 0", "s_load_dwordx4 s[20:23], s[0:1], 64", "s_load_dwordx2 s[24:25], s[0:1], 80")
    a("v_lshrrev_b32 v1, 6, v0", "s_and_b32 s60, s2, 7", f"v_readfirstlane_b32 s{S_W}, v1", "v_and_b32 v0, 63, v0", f"v_lshlrev_b32 v{vL16}, 4, v0")
    a("s_lshr_b32 s61, s2, 3", f"s_and_b32 s{s_rt}, s60, 3", f"s_lshl_b32 s{s_rt}, s{s_rt}, 2", "s_and_b32 s62, s61, 3", f"s_add_u32 s{s_rt}, s{s_rt}, s62",
      "s_lshr_b32 s61, s61, 2", "s_lshr_b32 s62, s60, 2", f"s_lshl_b32 s{s_ct}, s62, 3", f"s_add_u32 s{s_ct}, s{s_ct}, s61",
      f"s_mul_i32 s{s_ft}, s62, 7", "s_min_u32 s63, s61, 6", f"s_add_u32 s{s_ft}, s{s_ft}, s63",
      "s_cmp_lt_u32 s61, 7", f"s_cselect_b32 s{s_up}, 1, 0",
      *rot_code(),
      f"s_and_b32 s{s_rb}, s{S_W}, 3", f"s_lshr_b32 s{s_hf}, s{S_W}, 2",
      f"s_lshl_b32 s{s_row}, s2, 3", f"s_add_u32 s{s_row}, s{s_row}, s{S_W}",
      f"s_lshl_b32 s{s_fq}, s{s_ct}, 4", f"s_add_u32 s{s_fq}, s{s_fq}, s{s_rt}", f"s_lshl_b32 s{s_fq}, s{s_fq}, {FS}", f"s_add_u32 s{s_fq}, s{s_fq}, {WS_FQ:#x}")
    a(f"s_lshl_b32 s{sX}, s{s_rt}, 17", f"s_lshl_b32 s62, s{s_rb}, 15", f"s_add_u32 s{sX}, s{sX}, s62",
      f"s_mul_i32 s{sWq}, s{s_rb}, {16*3072}", f"s_mul_i32 s62, s{s_ct}, 192", f"s_add_u32 s{sWq}, s{sWq}, s62",
      f"s_mul_i32 s{sGU}, s{S_W}, {8*3584}", f"s_lshl_b32 s62, s{s_ft}, 8", f"s_add_u32 s{sGU}, s{sGU}, s62",
      f"s_lshl_b32 s{sLx}, s{s_rb}, 12", f"s_mul_i32 s{sLw}, s{s_rb}, 3072", f"s_lshl_b32 s{sLg}, s{S_W}, 11")
    a(f"s_lshl_b32 s{s_head}, s60, 2", "s_bfe_u32 s62, s2, 0x20003", f"s_add_u32 s{s_head}, s{s_head}, s62", f"s_lshr_b32 s{s_qb}, s2, 5",
      f"s_lshl_b32 s{s_q}, s{s_head}, 6", f"s_lshl_b32 s62, s{s_qb}, 3", f"s_add_u32 s{s_q}, s{s_q}, s62",
      f"s_lshl_b32 s62, s{s_rb}, 1", f"s_add_u32 s{s_q}, s{s_q}, s62", f"s_lshl_b32 s{s_q}, s{s_q}, 10",
      f"s_lshl_b32 s{s_src}, s{s_head}, 17", f"s_add_u32 s{s_src}, s{s_src}, {WS_KV:#x}", f"s_lshl_b32 s62, s{s_hf}, 16", f"s_add_u32 s{s_src}, s{s_src}, s62",
      f"s_lshl_b32 s62, s{s_rb}, 11", f"s_add_u32 s{s_src}, s{s_src}, s62",
      f"s_mul_i32 s{s_lkv}, s{s_hf}, {8*TS}", f"s_mul_i32 s62, s{s_rb}, {TS}", f"s_add_u32 s{s_lkv}, s{s_lkv}, s62", f"s_add_u32 s{s_lkv}, s{s_lkv}, {AB}")
    a("v_lshrrev_b32 v30, 3, v0", "v_and_b32 v31, 7, v0", "v_bfe_u32 v32, v0, 4, 2", "v_xor_b32 v32, v32, v31",
      "v_lshlrev_b32 v30, 10, v30", "v_lshl_add_u32 v11, v32, 4, v30", "v_xor_b32 v12, 64, v11")
    for i in range(3):
        a(f"v_add_u32 v30, {64*i}, v0", "v_mul_u32_u24 v31, 5462, v30", "v_lshrrev_b32 v31, 16, v31",
          "v_mul_u32_u24 v32, 12, v31", "v_sub_u32 v32, v30, v32", "v_mul_u32_u24 v31, 3072, v31", f"v_lshl_add_u32 v{13+i}, v32, 4, v31")
    a("v_lshrrev_b32 v30, 4, v0", "v_and_b32 v31, 15, v0", "v_lshlrev_b32 v32, 1, v30", "v_xor_b32 v31, v31, v32",
      "v_mul_u32_u24 v30, 3584, v30", "v_lshl_add_u32 v28, v31, 4, v30", "v_xor_b32 v31, 8, v31", "v_lshl_add_u32 v29, v31, 4, v30")
    a("s_waitcnt lgkmcnt(0)")
    srd(a, SA, S_X, 2048*1024); srd(a, SBd, S_WQKV, 512*3072)
    srd(a, SWS, S_WS, WS_SIZE); srd(a, SCd, S_WG, 512*3584); srd(a, SD, S_WU, 512*3584)
    L = {k: a.newlabel("CLS") for k in ("10", "11", "01")}
    L_attn = "ATTN"
    a(f"s_cmp_eq_u32 s{s_hf}, 0", f"s_cbranch_scc1 CLS0")
    a(f"s_cmp_ge_u32 s{s_ct}, 10", f"s_cbranch_scc1 {L['11']}")
    gemm_phase(a, 1, False, L_attn)
    a.label(L['11']); gemm_phase(a, 1, True, L_attn)
    a.label("CLS0")
    a(f"s_cmp_ge_u32 s{s_ct}, 11", f"s_cbranch_scc1 {L['01']}")
    gemm_phase(a, 0, False, L_attn)
    a.label(L['01']); gemm_phase(a, 0, True, L_attn)
    a(".p2align 6")
    a.label(L_attn)
    attention_phase(a, end)
    a.label(end)
    if prof:
        a("s_waitcnt vmcnt(0) lgkmcnt(0)", "s_memrealtime s[36:37]", "s_memtime s[38:39]",
          "s_getreg_b32 s40, hwreg(HW_REG_XCC_ID)",
          "s_mov_b32 s32, s24", "s_and_b32 s33, s25, 0xffff", "s_mov_b32 s34, 0x2000000", "s_mov_b32 s35, 0x00020000",
          "s_lshl_b32 s41, s2, 3", f"s_add_u32 s41, s41, s{S_W}", "s_lshl_b32 s41, s41, 6",
          f"s_add_u32 s41, s41, {WS_PROF:#x}",
          "s_waitcnt lgkmcnt(0)", "s_sub_u32 s38, s38, s76",
          "v_mov_b32 v4, s100", "v_mov_b32 v5, s36", "v_mov_b32 v6, s38", "v_mov_b32 v7, s40", "v_mov_b32 v8, 0",
          "s_mov_b64 exec, 1",
          "buffer_store_dwordx4 v[4:7], v8, s[32:35], s41 offen")
        for i in range(1, 12): a(f"s_sub_u32 s{76+2*i}, s{76+2*i}, s76", f"v_mov_b32 v{11+i}, s{76+2*i}")
        a("v_mov_b32 v23, 0")
        for q in range(3): a(f"buffer_store_dwordx4 v[{12+4*q}:{15+4*q}], v8, s[32:35], s41 offen offset:{16+16*q}")
    a.label(end + "_x")
    a("s_endpgm")
    desc = f""".section .rodata,"a"
.p2align 6
.amdhsa_kernel {NAME}
  .amdhsa_next_free_vgpr 256
  .amdhsa_next_free_sgpr 102
  .amdhsa_accum_offset 256
  .amdhsa_group_segment_fixed_size 0
  .amdhsa_kernarg_size 88
  .amdhsa_user_sgpr_count 2
  .amdhsa_user_sgpr_kernarg_segment_ptr 1
  .amdhsa_system_sgpr_workgroup_id_x 1
.end_amdhsa_kernel
"""
    k = f"kernel={NAME} " if as_list else ""
    return HEADER + f"; @launch {k}grid=(256,1,1) block=(512,1,1) lds={LDS_BYTES}\n" + a.text() + desc

if __name__ == "__main__":
    out = sys.argv[1]
    for x in sys.argv[2:]:
        if x.startswith("plan="): PLAN[:] = x[5:].split(",")
        elif "=" in x:
            k, v = x.split("="); OPT[k] = int(v)
    open(out, "w").write(build(prof="--prof" in sys.argv, as_list="--list" in sys.argv))
```

```python
import sys
from asmlib import *

NAME = "gated_mix__softmax_full_mha__glu_gated_bilinear__prompt_kernel"
HEADER = open("gated_mix__softmax_full_mha__glu_gated_bilinear__prompt.s.ref").read().split("; Override launch")[0]

WS_QF = 0x000000
WS_KV = 0x200000
WS_OF = 0x600000
WS_HF = 0x800000
WS_GG = 0xF00000
WS_EP = 0xF04000
WS_FQ = 0xF10000
WS_FO = 0xF30000
WS_FH = 0xF70000
WS_SIZE = 0xFB0000
FS = 7
WS_PROF = 0x1800000
QSCALE = 0x3EB8AA3B
LOG2E = 0x3FB8AA3B
LDS_BYTES = 163840

S_X, S_WQKV, S_WO, S_WG, S_WU, S_WD, S_GW, S_OUT, S_DBG, S_WS = 4, 6, 8, 12, 14, 16, 18, 20, 22, 24
S_TAG, S_W = 26, 27
SWS, SA, SBd, SCd, SD = 28, 32, 36, 40, 44
SC = " sc1"
OPT = dict(spin=0, gpf=3, map=0, tlb=0, glate=0, dq=2, dg=2, dswitch=7, qpub=10, rot=2, dbg=0, sleep=2, dstart=6, dback=2)

def srd(a, d, p, nbytes):
    a(f"s_mov_b32 s{d}, s{p}", f"s_and_b32 s{d+1}, s{p+1}, 0xffff",
      f"s_mov_b32 s{d+2}, {hex(nbytes)}", f"s_mov_b32 s{d+3}, 0x00020000")

def dma(a, voff, srd_, soff, pre, imm=0, flags=""):
    for l in pre: a(l)
    o = f" offset:{imm}" if imm else ""
    a(f"buffer_load_dwordx4 v{voff}, s[{srd_}:{srd_+3}], {soff} offen{o}{flags} lds")

def poll(a, s_base, voff, mask, vt, st, staged=True):
    a(f"s_mov_b32 s{st}, 0x80000")
    for stage in range(0 if staged else 1, 2):
        L = a.newlabel("POLL"); Ld = a.newlabel("POLLD")
        if stage == 0: a("s_mov_b64 exec, 1")
        elif mask == (1 << 64) - 1: a("s_mov_b64 exec, -1")
        else: a(f"s_mov_b32 exec_lo, {mask & 0xffffffff:#x}", f"s_mov_b32 exec_hi, {mask >> 32:#x}")
        a.label(L)
        a(f"buffer_load_dword v{vt}, v{voff}, s[{SWS}:{SWS+3}], s{s_base} offen sc1",
          "s_waitcnt vmcnt(0)",
          f"v_cmp_ne_u32 vcc, s{S_TAG}, v{vt}",
          f"s_cbranch_vccz {Ld}",
          "s_mov_b64 exec, vcc",
          f"s_sleep {OPT['sleep']}",
          f"s_sub_u32 s{st}, s{st}, 1",
          f"s_cbranch_scc0 {L}")
        a.label(Ld)
    a("s_mov_b64 exec, -1")

def set_flag(a, s_off, vt):
    a(f"v_mov_b32 v{vt}, 0", f"v_mov_b32 v{vt+1}, s{S_TAG}", "s_mov_b64 exec, 1",
      f"buffer_store_dword v{vt+1}, v{vt}, s[{SWS}:{SWS+3}], s{s_off} offen sc1", "s_mov_b64 exec, -1")

PLAN = ["issued", "qkv", "up", "loop", "loopend", "oflag", "prepoll", "polled", "outmf"]
class VM:
    def __init__(self): self.q = []
    def add(self, tag, n=1): self.q += [tag] * n
    def wait_for(self, pred):
        idx = [i for i, t in enumerate(self.q) if pred(t)]
        if not idx: return None
        n = len(self.q) - 1 - idx[-1]
        self.q = self.q[idx[-1]+1:]
        return n

def vw(a, vm, pred, extra=""):
    n = vm.wait_for(pred)
    if n is not None: a(f"s_waitcnt vmcnt({n}){extra}")
    elif extra: a(f"s_waitcnt{extra}")

SLOT = 32768
TS = 2080; CS = 16*TS; AB = 32768
ORDER = "e0 e1 N e2 e3 c0 e4 e5 c1 S M e6 e7 c2 e8 e9 c3 e10 e11 c4 e12 P e13 c5 e14 e15 c6 c7"

s_rt, s_ct, s_ft, s_rb, s_hf, s_up = 48, 49, 50, 51, 52, 53
sX, sWq, sGU, sLx, sLw, sLg = 54, 55, 56, 57, 58, 59
T1, T2, T3, T4 = 60, 61, 62, 63
s_head, s_qb, s_src, s_lkv, s_q = 64, 65, 66, 67, 68
s_row = 69
s_fq = 70
sGo = 71
XR, ACC, WF = 128, 64, 32
Q, K, V, P, C, S, O = 16, 24, 32, 48, 64, 80, 112
vL16, vKA, vVA, vVB = 1, 2, 3, 4

def gemm_phase(a, hf, swap, L_attn):
    vm = VM()
    vXA, vWA, vGA = 2, 6, 7
    vXO, vWO, vGO, vUO = 11, 13, 28, 29
    vT = 24
    nb = 2 if hf == 0 else 1
    b0 = 0 if hf == 0 else 2
    def issue_groups(n):
        slot = (n % 5) * SLOT
        G = []
        def mk(voff, sr_, pre):
            def f():
                dma(a, voff, sr_, f"s{T1}", pre); vm.add(("u", n))
            return f
        if n < 8:
            if hf == 1:
                pre0 = [f"s_add_u32 s{T2}, s3, {n}", f"s_and_b32 s{T2}, s{T2}, 7", f"s_lshl_b32 s{T3}, s{T2}, 7", f"s_add_u32 s{T3}, s{T3}, s{sX}",
                        f"s_mul_i32 s{T2}, s{T2}, {64*3072}"]
                for jj in range(4):
                    G.append(mk(vXO + jj % 2, SA, (pre0 if jj == 0 else []) + [f"s_add_u32 m0, s{sLx}, {slot + jj*1024}", f"s_add_u32 s{T1}, s{T3}, {jj*8192}"]))
                for i in range(3):
                    G.append(mk(vWO + i, SBd, [f"s_add_u32 m0, s{sLw}, {slot + 16384 + i*1024}", f"s_add_u32 s{T1}, s{sWq}, s{T2}"]))
        else:
            g = n - 8
            pre0 = [f"s_add_u32 s{sGo}, s3, {g}", f"s_and_b32 s{sGo}, s{sGo}, 7", f"s_mul_i32 s{sGo}, s{sGo}, {64*3584}", f"s_add_u32 s{sGo}, s{sGo}, s{sGU}"]
            for h in range(2):
                G.append(mk(vGO, SCd, (pre0 if h == 0 else []) + [f"s_add_u32 m0, s{sLg}, {slot + h*1024}", f"s_add_u32 s{T1}, s{sGo}, {h*4*3584}"]))
                G.append(mk(vUO, SD, [f"s_add_u32 m0, s{sLg}, {slot + 16384 + h*1024}", f"s_add_u32 s{T1}, s{sGo}, {h*4*3584}"]))
        return G
    sched = {n: [] for n in range(-1, 16)}
    nxt = 0
    for n in range(-1, 16):
        dist = OPT["dq"] if n < OPT["dswitch"] else OPT["dg"]
        lim = min(15, n + dist, n + 4)
        while nxt <= lim and len(sched[n]) < (OPT["dq"] if n < 0 else 2):
            sched[n].append(nxt); nxt += 1
    for u in sched[-1]:
        for f in issue_groups(u): f()
    a.stamp("issued")
    if hf == 0 and OPT["tlb"]:
        Ls = [a.newlabel("TW") for _ in range(4)]; Le = a.newlabel("TWE")
        for q in range(1, 4): a(f"s_cmp_eq_u32 s{S_W}, {q}", f"s_cbranch_scc1 {Ls[q]}")
        a("v_mul_u32_u24 v30, 28672, v0", f"buffer_load_dword v31, v30, s[{SCd}:{SCd+3}], 0 offen", f"s_branch {Le}")
        a.label(Ls[1])
        a("v_mul_u32_u24 v30, 28672, v0", f"buffer_load_dword v31, v30, s[{SD}:{SD+3}], 0 offen", f"s_branch {Le}")
        a.label(Ls[2])
        srd(a, 72, S_WD, 1792*1024)
        a("v_mul_u32_u24 v30, 28672, v0", "buffer_load_dword v31, v30, s[72:75], 0 offen")
        srd(a, 72, S_WO, 512*1024)
        a("v_lshlrev_b32 v30, 13, v0", "buffer_load_dword v31, v30, s[72:75], 0 offen", f"s_branch {Le}")
        a.label(Ls[3])
        srd(a, 72, S_OUT, 2048*1024)
        a("v_lshlrev_b32 v30, 15, v0", "buffer_load_dword v31, v30, s[72:75], 0 offen",
          "v_lshlrev_b32 v30, 18, v0", f"buffer_load_dword v31, v30, s[{SWS}:{SWS+3}], 0 offen sc1")
        a.label(Le)
        a("s_waitcnt vmcnt(0)")
    a(f"v_mov_b32 v{vT}, 0", f"s_mov_b32 s{T1}, {WS_EP:#x}",
      f"buffer_load_dword v{vT+1}, v{vT}, s[{SWS}:{SWS+3}], s{T1} offen sc1")
    vm.add("E")
    srd(a, 72, S_GW, 1024)
    a(f"s_lshl_b32 s{T1}, s{s_row}, 10",
      f"buffer_load_dwordx4 v[16:19], v{vL16}, s[72:75], 0 offen",
      f"buffer_load_dwordx4 v[20:23], v{vL16}, s[{SA}:{SA+3}], s{T1} offen")
    vm.add("G", 2)
    a("v_and_b32 v30, 31, v0", "v_lshrrev_b32 v31, 5, v0", "v_bfe_u32 v32, v0, 1, 3", "v_xor_b32 v32, v32, v31",
      f"s_lshl_b32 s{T1}, s{s_rb}, 12", "v_lshlrev_b32 v33, 7, v30", f"v_add_u32 v33, s{T1}, v33")
    for s in range(4): a(f"v_xor_b32 v34, {2*s}, v32", f"v_lshl_add_u32 v{vXA+s}, v34, 4, v33")
    a("v_bfe_u32 v32, v0, 2, 2", "v_lshl_add_u32 v33, v31, 3, v32", "v_mul_u32_u24 v34, 192, v33",
      "v_bfe_u32 v35, v0, 4, 1", "v_lshl_add_u32 v34, v35, 5, v34", "v_and_b32 v36, 3, v0", "v_lshl_add_u32 v34, v36, 3, v34",
      f"v_add_u32 v{vWA}, {16384 + b0*64}, v34")
    a("v_lshlrev_b32 v33, 8, v33", "v_lshl_add_u32 v33, v35, 14, v33", "v_lshl_add_u32 v33, v36, 3, v33", "v_bfe_u32 v32, v0, 2, 3")
    for f in range(4): a(f"v_xor_b32 v34, {4*hf+f}, v32", f"v_lshl_add_u32 v{vGA+f}, v34, 5, v33")
    cur = [0]
    def rebase(n):
        slot = n % 5
        want = (slot // 2) * 2
        if want != cur[0]:
            d = ((want - cur[0]) * SLOT) & 0xffffffff
            regs = (list(range(vXA, vXA+4)) + [vWA] if n < 8 else []) + list(range(vGA, vGA+4))
            for r in regs: a(f"v_add_u32 v{r}, {d:#x}, v{r}")
            cur[0] = want
        return (slot - want) * SLOT
    def reads(n, s, off):
        p = s % 2
        R = []
        if n < 8:
            R.append(f"ds_read_b128 {vr(XR+4*(4*n+s),4)}, v{vXA+s} offset:{off}")
            for b in range(nb):
                for t in range(2):
                    R.append(f"ds_read_b64_tr_b16 {vr(WF+16*p+4*b+2*t,2)}, v{vWA} offset:{off+(16*s+4*t)*192+b*64}")
            return R
        for f in range(4):
            for t in range(2):
                R.append(f"ds_read_b64_tr_b16 {vr(WF+16*p+4*f+2*t,2)}, v{vGA+f} offset:{off+(16*s+4*t)*256}")
        return R
    def mf(n, s):
        p = s % 2
        M = []
        if n < 8:
            x = XR + 4*(4*n+s)
            for b in range(nb):
                c = "0" if (n == 0 and s == 0) else None
                M.append(mfma(ACC+16*b, x, WF+16*p+4*b, c) if swap else mfma(ACC+16*b, WF+16*p+4*b, x, c))
        else:
            x = XR + 4*(4*(n-8)+s)
            for f in range(4): M.append(mfma(ACC+16*f, WF+16*p+4*f, x, "0" if (n == 8 and s == 0) else None))
        return M
    def qkv_epilogue():
        a("s_nop 7", "s_nop 3")
        ST = []
        def mk(line):
            def f(): a(line); vm.add("Q")
            return f
        for b in range(nb):
            o1, o2 = 72 + 2*b, 73 + 2*b
            a(f"s_mul_i32 s{T1}, s{s_ct}, 3", f"s_add_u32 s{T1}, s{T1}, {b0+b}", f"s_and_b32 s{T2}, s{T1}, 15", f"s_lshl_b32 s{T2}, s{T2}, 7",
              f"s_lshl_b32 s{T3}, s{s_rt}, 2", f"s_add_u32 s{T3}, s{T3}, s{s_rb}", f"s_add_u32 s{T2}, s{T2}, s{T3}")
            A = ACC + 16*b; D = 12 + 8*b
            if not swap:
                a(f"s_lshl_b32 s{T3}, s{T2}, 10", f"s_lshl_b32 s{T2}, s{T2}, 11", f"s_add_u32 s{T2}, s{T2}, {WS_KV:#x}",
                  f"s_cmp_lt_u32 s{T1}, 16", f"s_cselect_b32 s{o1}, s{T3}, s{T2}",
                  f"s_cselect_b32 s{T3}, 1, 2", f"s_cselect_b32 s{T4}, {QSCALE:#x}, 1.0",
                  f"s_lshl_b32 s{T3}, s{T3}, 16", f"s_add_u32 s{o2}, s{T3}, s{o1}")
                for r in range(16): a(f"v_mul_f32 v{A+r}, s{T4}, v{A+r}")
                if b == 0: a(f"v_mov_b32 v2, v{vL16}")
            else:
                a(f"s_lshl_b32 s{T2}, s{T2}, 11", f"s_add_u32 s{o1}, s{T2}, {WS_KV+1024:#x}", f"s_add_u32 s{o2}, s{o1}, 512")
                if b == 0:
                    a("v_bfe_u32 v30, v0, 4, 1", "v_lshlrev_b32 v30, 17, v30", "v_lshrrev_b32 v31, 5, v0", "v_lshl_add_u32 v30, v31, 8, v30",
                      "v_and_b32 v31, 15, v0", "v_lshl_add_u32 v2, v31, 4, v30")
            for j in range(8): a(f"v_cvt_pk_bf16_f32 v{D+j}, v{A+2*j}, v{A+2*j+1}")
            ST.append(mk(f"buffer_store_dwordx4 {vr(D,4)}, v2, s[{SWS}:{SWS+3}], s{o1} offen{SC}"))
            ST.append(mk(f"buffer_store_dwordx4 {vr(D+4,4)}, v2, s[{SWS}:{SWS+3}], s{o2} offen{SC}"))
        return ST
    def gate_compute():
        acc = vT + 2
        a(f"s_mov_b32 s{T4}, 0xffff0000")
        for j in range(4):
            a(f"v_lshlrev_b32 v30, 16, v{16+j}", f"v_and_b32 v{16+j}, s{T4}, v{16+j}",
              f"v_lshlrev_b32 v31, 16, v{20+j}", f"v_and_b32 v{20+j}, s{T4}, v{20+j}",
              "v_mul_f32 v30, v30, v31", f"v_mul_f32 v31, v{16+j}, v{20+j}",
              "v_cvt_pk_bf16_f32 v30, v30, v31", f"v_and_b32 v31, s{T4}, v30", "v_lshlrev_b32 v30, 16, v30")
            if j == 0: a(f"v_add_f32 v{acc}, v30, v31")
            else: a(f"v_add_f32 v{acc}, v{acc}, v30", f"v_add_f32 v{acc}, v{acc}, v31")
        for sh in (8, 4, 2, 1):
            a("s_nop 1", f"v_add_f32_dpp v{acc}, v{acc}, v{acc} row_ror:{sh} row_mask:0xf bank_mask:0xf")
        a("s_nop 1")
        for q in range(4): a(f"v_readlane_b32 s{T1+q}, v{acc}, {16*q}")
        a("s_nop 1", f"v_mov_b32 v{acc}, s{T1}", f"v_add_f32 v{acc}, s{T2}, v{acc}", f"v_add_f32 v{acc}, s{T3}, v{acc}", f"v_add_f32 v{acc}, s{T4}, v{acc}")
        a(f"v_cvt_pk_bf16_f32 v{acc}, v{acc}, v{acc}", f"v_lshlrev_b32 v{acc}, 16, v{acc}",
          f"v_mul_f32 v{acc}, {(LOG2E | 0x80000000):#x}, v{acc}", f"v_exp_f32 v{acc}, v{acc}", "s_nop 0",
          f"v_add_f32 v{acc}, 1.0, v{acc}", f"v_rcp_f32 v{acc}, v{acc}", "s_nop 0",
          f"v_cvt_pk_bf16_f32 v{acc}, v{acc}, v{acc}", f"v_lshlrev_b32 v{acc}, 16, v{acc}")
    def tag_finish_and_gate_store():
        acc = vT + 2
        a(f"v_readfirstlane_b32 s{S_TAG}, v{vT+1}", f"v_readfirstlane_b32 s{T1}, v16", "s_nop 3",
          f"s_mul_i32 s{S_TAG}, s{S_TAG}, 1664525", f"s_add_u32 s{S_TAG}, s{S_TAG}, 1013904223", f"s_or_b32 s{S_TAG}, s{S_TAG}, 1",
          f"s_cmp_lg_u32 s{T1}, 0", f"s_cselect_b32 s{S_TAG}, s{T1}, s{S_TAG}",
          f"s_lshl_b32 s{T1}, s{s_row}, 3", f"s_add_u32 s{T1}, s{T1}, {WS_GG:#x}",
          f"v_mov_b32 v{acc+1}, s{S_TAG}", "s_mov_b64 exec, 1",
          f"buffer_store_dwordx2 v[{acc}:{acc+1}], v{vT}, s[{SWS}:{SWS+3}], s{T1} offen sc1", "s_mov_b64 exec, -1")
        vm.add("g")
    def w(pred, extra=""):
        n = vm.wait_for(pred)
        if n is not None: a(f"s_waitcnt vmcnt({n}){extra}")
        elif extra: a(f"s_waitcnt{extra}")
    prev = None
    L_noup = a.newlabel("NOUP")
    for n in range(16):
        if n == 8:
            a("s_waitcnt lgkmcnt(0)"); a(*mf(*prev)); prev = None
            a.stamp("qkv")
            ST = qkv_epilogue()
            if swap:
                a(f"s_branch GPART{hf}")
                return
            a.label(f"GPART{hf}")
            a(f"s_cmp_eq_u32 s{s_up}, 0", f"s_cbranch_scc1 {L_noup}")
            for f in dm: f()
        w(lambda t: t == ("u", n) or (n == OPT["qpub"] and t == "Q"), " lgkmcnt(0)" if n else "")
        a.stamp(f"pre{n}")
        a("s_barrier")
        a.stamp(f"b{n}")
        off = rebase(n)
        dm = [f for u in sched[n] for f in issue_groups(u)]
        if n == 8: dm = ST + dm
        for s in range(4):
            R = reads(n, s, off); M = mf(*prev) if prev else []
            if n < 8:
                a(*R)
                if s == 0 and n < 7:
                    for f in dm: f()
                    dm = []
                if s > 0: a(f"s_waitcnt lgkmcnt({len(R)})")
                if M: a(*M)
            else:
                if s > 0: a("s_waitcnt lgkmcnt(0)")
                nd = (len(dm) + (3 - s)) // (4 - s)
                if s < OPT["glate"]: nd = 0
                for j in range(4):
                    if M: a(M[j])
                    if j < 2: a(*R[4*j:4*j+4])
                    elif nd > 0 and dm:
                        for _ in range((nd + 1) // 2 if j == 2 else nd): dm.pop(0)(); nd -= 1
            if s == 0:
                if n == OPT["qpub"] and hf == 0:
                    Lf = a.newlabel("QF"); a(f"s_cmp_lg_u32 s{S_W}, 0", f"s_cbranch_scc1 {Lf}"); set_flag(a, s_fq, 30); a.label(Lf)
                if n == 13: qflag_load(a, vm)
                if n == 14: attn_prefetch(a, vm, 0)
                if n == 15: attn_prefetch(a, vm, 1)
            prev = (n, s)
            if s == 0 and n == OPT["gpf"] and hf == 0:
                L = a.newlabel("GPF")
                a(f"s_cmp_ge_u32 s{S_W}, 2", f"s_cbranch_scc1 {L}",
                  f"s_lshl_b32 s{T1}, s3, 4", f"s_lshr_b32 s{T2}, s2, 3", f"s_add_u32 s{T1}, s{T1}, s{T2}", f"s_and_b32 s{T1}, s{T1}, 127",
                  f"s_mul_i32 s{T1}, s{T1}, {4*3584}", f"s_bfe_u32 s{T2}, s2, 0x10002", f"s_mul_i32 s{T2}, s{T2}, 1792", f"s_add_u32 s{T1}, s{T1}, s{T2}",
                  "v_lshrrev_b32 v30, 4, v0", "v_mul_u32_u24 v30, 3584, v30", "v_and_b32 v31, 15, v0", "v_min_u32 v31, 13, v31", "v_lshl_add_u32 v30, v31, 7, v30",
                  f"s_cmp_eq_u32 s{S_W}, 0", f"s_cbranch_scc1 {L}_g",
                  f"buffer_load_dword v127, v30, s[{SD}:{SD+3}], s{T1} offen", f"s_branch {L}")
                a.label(L + "_g")
                a(f"buffer_load_dword v127, v30, s[{SCd}:{SCd+3}], s{T1} offen")
                a.label(L)
            if s == 1 and n == (2 if hf == 0 else 3):
                w(lambda t: t == "G"); gate_compute()
                srd(a, 72, S_DBG, 256)
                a(f"buffer_load_dword v16, v{vT}, s[72:75], 0 offen sc1"); vm.add("D")
            if s == 3 and n == 7:
                w(lambda t: t == "D"); tag_finish_and_gate_store()
                if hf == 0:
                    L = a.newlabel("NOUPD")
                    a(f"s_cmp_lg_u32 s{s_row}, 1", f"s_cbranch_scc1 {L}",
                      f"v_mov_b32 v30, s{S_TAG}", f"s_mov_b32 s{T1}, {WS_EP:#x}", "s_mov_b64 exec, 1",
                      f"buffer_store_dword v30, v{vT}, s[72:75], 0 offen sc1", "s_waitcnt vmcnt(0)",
                      f"buffer_store_dword v30, v{vT}, s[{SWS}:{SWS+3}], s{T1} offen sc1", "s_mov_b64 exec, -1", "s_waitcnt vmcnt(0)")
                    a.label(L)
    a("s_waitcnt lgkmcnt(0)"); a(*mf(*prev))
    a.stamp("up")
    a(f"s_lshl_b32 s{T1}, s{s_rt}, 2", f"s_add_u32 s{T1}, s{T1}, s{s_rb}", f"s_mul_i32 s{T1}, s{T1}, 112",
      f"s_lshl_b32 s{T2}, s{s_ft}, 3", f"s_add_u32 s{T1}, s{T1}, s{T2}", f"s_lshl_b32 s{T1}, s{T1}, 10",
      f"s_add_u32 s{T1}, s{T1}, {WS_HF + hf*4096:#x}", "s_nop 4")
    for f in range(4):
        A = ACC + 16*f; D = XR + 16 + 4*f
        for j in range(0, 8, 2): a(f"v_pk_mul_f32 {vr(A+j,2)}, {vr(A+j,2)}, {vr(A+8+j,2)}")
        for j in range(4): a(f"v_cvt_pk_bf16_f32 v{D+j}, v{A+2*j}, v{A+2*j+1}")
        a(f"buffer_store_dwordx4 {vr(D,4)}, v{vL16}, s[{SWS}:{SWS+3}], s{T1} offen offset:{f*1024}{SC}")
    a(f"s_branch {L_attn}")
    a.label(L_noup)
    for f in ST: f()
    a("s_waitcnt vmcnt(0)", "s_barrier")
    if hf == 0:
        Lf = a.newlabel("QF"); a(f"s_cmp_lg_u32 s{S_W}, 0", f"s_cbranch_scc1 {Lf}"); set_flag(a, s_fq, 30); a.label(Lf)
    vm2 = VM(); qflag_load(a, vm2); attn_prefetch(a, vm2, 0); attn_prefetch(a, vm2, 1)
    a("s_waitcnt vmcnt(0)")
    a(f"s_branch {L_attn}")

def issue_chunk(a, cslot):
    for h in range(2):
        a(f"s_add_u32 m0, s{s_lkv}, {cslot*CS + 4*h*TS}")
        if h == 0: a("s_nop 0")
        else: a(f"s_add_u32 s{s_src}, s{s_src}, 8192")
        a(f"buffer_load_dwordx4 v{vL16}, s[{SWS}:{SWS+3}], s{s_src} offen{SC} lds",
          f"buffer_load_dwordx4 v{vL16}, s[{SWS}:{SWS+3}], s{s_src} offen offset:1024{SC} lds")
    a(f"s_add_u32 s{s_src}, s{s_src}, 8192")

QMASK = (1 << 34) - 1
def qflag_load(a, vm):
    a(f"s_lshr_b32 s{T1}, s{s_head}, 1", "v_lshrrev_b32 v30, 4, v0", "v_add_u32 v30, 1, v30", "v_cmp_gt_u32 vcc, 3, v30", "s_nop 1",
      "v_cndmask_b32 v30, 0, v30, vcc", "v_lshlrev_b32 v30, 4, v30", f"v_add_u32 v30, s{T1}, v30",
      "v_mul_u32_u24 v30, 43691, v30", "v_lshrrev_b32 v30, 17, v30",
      "v_and_b32 v31, 15, v0", f"s_lshl_b32 s{T2}, s{s_qb}, 1", f"v_add_u32 v24, s{T2}, v31", "v_cndmask_b32 v31, v24, v31, vcc",
      "v_lshl_add_u32 v30, v30, 4, v31", f"v_lshlrev_b32 v30, {FS}, v30")
    flag_load(a, vm, WS_FQ, 30, QMASK, 31)

def flag_load(a, vm, base, voff, mask, vt):
    a(f"s_mov_b32 s{T1}, {base:#x}", f"s_mov_b32 exec_lo, {mask & 0xffffffff:#x}", f"s_mov_b32 exec_hi, {mask >> 32:#x}",
      f"buffer_load_dword v{vt}, v{voff}, s[{SWS}:{SWS+3}], s{T1} offen sc1", "s_mov_b64 exec, -1")
    vm.add("F")

def flag_check(a, vm, base, voff, mask, vt):
    L = a.newlabel("FOK")
    a(f"s_waitcnt vmcnt({vm.wait_for(lambda t: t == 'F')})",
      f"v_cmp_ne_u32 vcc, s{S_TAG}, v{vt}", f"s_and_b32 vcc_lo, vcc_lo, {mask & 0xffffffff:#x}", f"s_and_b32 vcc_hi, vcc_hi, {mask >> 32:#x}",
      f"s_or_b32 s{T1}, vcc_lo, vcc_hi", f"s_cbranch_scc0 {L}", f"s_mov_b32 s{T1}, {base:#x}")
    poll(a, T1, voff, mask, vt, T2, staged=False)
    a.label(L)

def attn_prefetch(a, vm, which):
    if which == 0:
        flag_check(a, vm, WS_FQ, 30, QMASK, 31)
        a(f"buffer_load_dwordx4 {vr(Q,4)}, v{vL16}, s[{SWS}:{SWS+3}], s{s_q} offen{SC}",
          f"buffer_load_dwordx4 {vr(Q+4,4)}, v{vL16}, s[{SWS}:{SWS+3}], s{s_q} offen offset:1024{SC}")
        vm.add("q", 2)
    issue_chunk(a, which)
    vm.add(("c", which), 4)

def attention_phase(a, end_label):
    vm = VM(); vm.add("q", 2); vm.add(("c", 0), 4); vm.add(("c", 1), 4); vm.add("h", 4)
    T0 = 8
    vWR, vWO = 5, 7
    vG1, vG2, vFO = 28, 30, 56
    AD, XD, WD = 144, 208, 240
    D = 4; NK = 14
    s_qw, s_kh = s_rb, s_hf
    sEX = 54
    s_r64, s_c64, s_x0, s_wd, s_wo, s_lw, s_fh = 56, 57, 58, 59, 71, 72, 73
    s_i, s_kq = 74, 75
    a("s_and_b32 s60, s2, 7", "s_lshr_b32 s61, s2, 3", f"s_lshl_b32 s{s_r64}, s60, 2", "s_and_b32 s60, s61, 3", f"s_add_u32 s{s_r64}, s{s_r64}, s60",
      f"s_lshr_b32 s{s_c64}, s61, 2", f"s_mov_b32 s{sEX}, 0xffff", f"s_mov_b32 s{sEX+1}, 0xffff",
      f"s_and_b32 s{s_i}, s{S_W}, 1", f"s_lshr_b32 s{s_kq}, s{S_W}, 1")
    srd(a, SA, S_WD, 1792*1024); srd(a, SBd, S_WO, 512*1024); srd(a, SCd, S_OUT, 2048*1024)
    a(f"s_mul_i32 s60, s{s_r64}, 224", f"s_mul_i32 s61, s{S_W}, {NK}", "s_add_u32 s60, s60, s61",
      f"s_lshl_b32 s{s_x0}, s60, 10", f"s_add_u32 s{s_x0}, s{s_x0}, {WS_HF:#x}",
      f"s_lshl_b32 s{s_wd}, s61, 14", f"s_lshl_b32 s60, s{s_c64}, 7", f"s_add_u32 s{s_wd}, s{s_wd}, s60",
      f"s_lshl_b32 s{s_wo}, s{S_W}, 16", f"s_add_u32 s{s_wo}, s{s_wo}, s60",
      f"s_lshl_b32 s{s_lw}, s{s_qw}, 13", f"s_lshl_b32 s60, s{s_kh}, 17", f"s_add_u32 s{s_lw}, s{s_lw}, s60")
    a(f"s_lshl_b32 s60, s{s_rt}, 2", f"s_add_u32 s60, s60, s{s_rb}", "s_lshl_b32 s60, s60, 5", f"s_lshl_b32 s61, s{s_ft}, 1", "s_add_u32 s60, s60, s61",
      f"s_add_u32 s60, s60, s{s_hf}", f"s_lshl_b32 s60, s60, {FS}", f"s_add_u32 s{s_fh}, s60, {WS_FH:#x}")
    a(f"v_and_b32 v{T0}, 31, v0", f"v_mul_u32_u24 v{T0}, {TS}, v{T0}", f"v_lshrrev_b32 v{T0+1}, 5, v0", f"v_lshl_add_u32 v{T0}, v{T0+1}, 4, v{T0}",
      f"v_cmp_eq_u32 vcc, 0, v{T0+1}", f"v_mov_b32 v{T0+4}, 0x3f803f80", "s_nop 0", f"v_cndmask_b32 v{T0+4}, 0, v{T0+4}, vcc",
      f"v_mov_b32 v{T0+5}, v{T0+4}", f"v_mov_b32 v{T0+6}, v{T0+4}", f"v_mov_b32 v{T0+7}, v{T0+4}",
      f"ds_write_b128 v{T0}, {vr(T0+4,4)} offset:{AB+2048}")
    a(f"s_mul_i32 s60, s{s_kh}, {8*TS}", f"s_add_u32 s60, s60, {AB}", f"v_add_u32 v{vKA}, s60, v{vL16}",
      f"v_lshlrev_b32 v{T0}, 8, v{T0+1}", f"v_and_b32 v{T0+1}, 15, v0", f"v_lshl_add_u32 v{T0}, v{T0+1}, 4, v{T0}",
      f"v_and_b32 v{T0+1}, 11, v0", f"v_cmp_eq_u32 vcc, 0, v{T0+1}", f"v_mov_b32 v{T0+2}, 16", "s_nop 0",
      f"v_cndmask_b32 v{T0+2}, v{T0+2}, 0, vcc",
      f"v_add_u32 v{T0+3}, 1024, v{T0+2}", f"v_add_u32 v{T0+2}, 512, v{T0+2}",
      f"v_cndmask_b32 v{vVA}, v{T0+3}, v{T0}, s[{sEX}:{sEX+1}]", f"v_cndmask_b32 v{vVB}, v{T0+2}, v{T0}, s[{sEX}:{sEX+1}]",
      f"v_add_u32 v{vVA}, s60, v{vVA}", f"v_add_u32 v{vVB}, s60, v{vVB}")
    def rd(it, vbuf):
        off = ((it // 8) % 2) * CS + (it % 8) * TS
        return [f"ds_read_b128 {vr(K,4)}, v{vKA} offset:{off}",
                f"ds_read_b128 {vr(V+8*vbuf,4)}, v{vVA} offset:{off+1024}",
                f"ds_read_b128 {vr(V+8*vbuf+4,4)}, v{vVB} offset:{off+1536}"]
    a(f"s_waitcnt vmcnt({vm.wait_for(lambda t: t == ('c', 0))}) lgkmcnt(0)", "s_barrier")
    a(f"ds_read_b128 {vr(P,4)}, v{vL16} offset:{AB}")
    a(*rd(0, 0))
    a(f"v_lshrrev_b32 v{T0}, 3, v0", f"v_lshlrev_b32 v{T0}, 10, v{T0}", f"v_bfe_u32 v{T0+1}, v0, 4, 1", f"v_lshlrev_b32 v{T0+2}, 2, v{T0+1}",
      f"v_and_b32 v{T0+3}, 7, v0", f"v_xor_b32 v{T0+2}, v{T0+2}, v{T0+3}", f"v_lshl_add_u32 v{vWO}, v{T0+2}, 4, v{T0}")
    a("s_waitcnt lgkmcnt(3)")
    a(mfma(S, P, Q, "0"), mfma(S+16, P, Q+4, "0"))
    vWO2, vX2 = 58, 59
    a(f"v_add_u32 v{vWO2}, {8192-1024}, v{vWO}", f"v_add_u32 v{vX2}, {112*1024}, v{vL16}")
    def issue_w(n):
        slot = n % D
        sr_, base = (SA, s_wd) if n < NK else (SBd, s_wo)
        a(f"s_add_u32 m0, s{s_lw}, {slot*2048}")
        if n not in (0, NK): a(f"s_add_u32 s{base}, s{base}, 16384")
        else: a("s_nop 0")
        dma(a, vWO, sr_, f"s{base}", [])
        dma(a, vWO2, sr_, f"s{base}", [], imm=1024)
        vm.add(("w", n), 2)
    def issue_x(n):
        slot = n % D
        if n and n % 4 == 0: a(f"s_add_u32 s{s_x0}, s{s_x0}, 4096")
        a(f"buffer_load_dwordx4 {vr(XD+8*slot,4)}, v{vL16}, s[{SWS}:{SWS+3}], s{s_x0} offen offset:{(n%4)*1024}{SC}",
          f"buffer_load_dwordx4 {vr(XD+8*slot+4,4)}, v{vX2}, s[{SWS}:{SWS+3}], s{s_x0} offen offset:{(n%4)*1024}{SC}")
        vm.add(("x", n), 2)
    a(f"v_lshrrev_b32 v{T0}, 5, v0", f"v_bfe_u32 v{T0+2}, v0, 2, 2", f"v_lshl_add_u32 v{T0}, v{T0}, 2, v{T0+2}", f"v_lshlrev_b32 v{T0}, 7, v{T0}",
      f"v_lshrrev_b32 v{T0+2}, 1, v{T0+2}", f"v_lshl_add_u32 v{T0}, v{T0+2}, 6, v{T0}",
      f"v_lshl_add_u32 v{T0}, v{T0+1}, 5, v{T0}", f"v_and_b32 v{T0+2}, 3, v0", f"v_lshl_add_u32 v{T0}, v{T0+2}, 3, v{T0}",
      f"v_add_u32 v{vWR}, s{s_lw}, v{T0}", f"v_xor_b32 v{vWR+1}, 64, v{vWR}")
    for r in range(4): a(f"v_mov_b32 v{V+12+r}, 0", f"v_mov_b32 v{P+4+r}, 0")
    for t in range(2):
        b = S + 16*t; m = T0 + t
        a(f"v_max3_f32 v{m}, v{b}, v{b+1}, v{b+2}")
        for r in range(3, 15, 2): a(f"v_max3_f32 v{m}, v{m}, v{b+r}, v{b+r+1}")
        a(f"v_max_f32 v{m}, v{m}, v{b+15}")
        a(f"v_mov_b32 v{T0+2}, v{m}", "s_nop 1", f"v_permlane32_swap_b32 v{m}, v{T0+2}", "s_nop 1", f"v_max_f32 v{m}, v{m}, v{T0+2}")
    a(f"v_min_f32 v{T0}, v{T0}, v{T0+1}")
    for r in range(16): a(f"v_sub_f32 v{C+r}, 0, v{T0}")
    a("s_waitcnt lgkmcnt(0)", "s_nop 0")
    a(mfma(S, K, Q, C))
    a(f"s_mul_i32 s60, s{S_W}, 14", "s_add_u32 s61, s60, 13", "s_lshr_b32 s60, s60, 2", "s_lshr_b32 s61, s61, 2",
      f"v_and_b32 v{vFO}, 7, v0", f"v_add_u32 v{vFO}, s60, v{vFO}", f"v_min_u32 v{vFO}, s61, v{vFO}",
      f"v_bfe_u32 v{T0}, v0, 3, 1", f"s_lshl_b32 s60, s{s_r64}, 1", f"v_add_u32 v{T0}, s60, v{T0}",
      f"v_lshl_add_u32 v{vFO}, v{T0}, 5, v{vFO}", f"v_lshlrev_b32 v{vFO}, {FS}, v{vFO}")
    a.stamp("loop")
    HMASK = 0x1f1f
    c0 = OPT["dstart"] + 2
    c = [c0 + (n * (31 - c0)) // (NK - 1) for n in range(NK)]
    assert len(set(c)) == NK and c[-1] <= 31
    done = {}
    xnext = [D]
    dq = []
    first_pv = [True, True]
    def phase(t, vb, smf, mid, pend, wait):
        Sb = S + 16*t; Ob = O + 16*t
        for tok in ORDER.split():
            if tok[0] == 'e': r = int(tok[1:]); a(f"v_exp_f32 v{Sb+r}, v{Sb+r}")
            elif tok[0] == 'c':
                k = int(tok[1:]); a(f"v_cvt_pk_bf16_f32 v{P+k}, v{Sb+2*k}, v{Sb+2*k+1}")
                ready = [d for d in dq if d[0] <= 0]
                if ready and (k == 3 or (k == 6 and len(ready) > OPT["dback"])):
                    d = dq.pop(0); a(d[1])
                    if not any(e[2] == d[2] for e in dq): done[d[2]] = True
            elif tok == 'S':
                if wait: a("s_waitcnt lgkmcnt(0)")
                if smf: a(smf)
            elif tok == 'N':
                if pend: a(pend)
            elif tok == 'P':
                a(mfma(Ob, V+8*vb, P, "0" if first_pv[t] else None)); first_pv[t] = False
            elif tok == 'M': mid()
        for d in dq: d[0] -= 1
        return mfma(Ob, V+8*vb+4, P+4)
    pend = None
    for it in range(32):
        vb = it % 2
        def midA():
            if it % 8 == 7 and it < 31:
                ch = it // 8 + 1
                vw(a, vm, lambda t: t == ('c', ch)); a("s_barrier")
                if ch + 1 < 4:
                    issue_chunk(a, (ch + 1) % 2); vm.add(("c", ch + 1), 4)
            if it < 31: a(*rd(it + 1, 1 - vb))
            if it in c:
                n = c.index(it); slot = n % D; p = n % 2
                assert n < 2 or done.get(n - 2), (n, it)
                vw(a, vm, lambda t: t in (('x', n), ('w', n)))
                for cb in range(2):
                    for t in range(2):
                        a(f"ds_read_b64_tr_b16 {vr(WD+8*p+4*cb+2*t,2)}, v{vWR+cb} offset:{slot*2048+t*1024}")
                for i in range(2):
                    for cb in range(2):
                        dq.append([1, mfma(AD+16*(2*i+cb), WD+8*p+4*cb, XD+8*slot+4*i, "0" if n == 0 else None), n])
        def midB():
            if it == 0:
                for n in range(D): issue_w(n)
            if it == 1:
                L = a.newlabel("NOH")
                a(f"s_waitcnt vmcnt({vm.wait_for(lambda t: t == 'h')})", f"s_cmp_eq_u32 s{s_up}, 0", f"s_cbranch_scc1 {L}")
                set_flag(a, s_fh, T0)
                a.label(L)
            if it == OPT["dstart"] - 1: flag_load(a, vm, WS_FH, vFO, HMASK, vFO+1)
            if it == OPT["dstart"]:
                flag_check(a, vm, WS_FH, vFO, HMASK, vFO+1)
                for n in range(D): issue_x(n)
            if it in c and c.index(it) + D < NK + 4: issue_w(c.index(it) + D)
            if xnext[0] < NK and done.get(xnext[0] - D): issue_x(xnext[0]); xnext[0] += 1
            if it == 20:
                a(f"v_and_b32 v{T0}, 31, v0", f"v_lshlrev_b32 v{T0}, 3, v{T0}",
                  f"s_lshl_b32 s60, s{s_qb}, 3", f"s_lshl_b32 s61, s{s_qw}, 1", "s_add_u32 s60, s60, s61", f"s_add_u32 s60, s60, s{s_kh}",
                  "s_lshl_b32 s60, s60, 8", f"s_add_u32 s60, s60, {WS_GG:#x}",
                  f"s_lshl_b32 s61, s{s_r64}, 1", f"s_add_u32 s61, s61, s{s_i}", "s_lshl_b32 s61, s61, 8", f"s_add_u32 s61, s61, {WS_GG:#x}",
                  f"buffer_load_dwordx2 v[{vG1}:{vG1+1}], v{T0}, s[{SWS}:{SWS+3}], s60 offen sc1",
                  f"buffer_load_dwordx2 v[{vG2}:{vG2+1}], v{T0}, s[{SWS}:{SWS+3}], s61 offen sc1")
                vm.add("g", 2)
        a.stamp(f"it{it}")
        pend = phase(0, vb, mfma(S+16, K, Q+4, C), midA, pend, False)
        pend = phase(1, vb, mfma(S, K, Q, C) if it < 31 else None, midB, pend, True)
    a("s_nop 1", pend)
    for d in dq: a(d[1])
    a.stamp("loopend")
    XO = 32768; XDN = 57344
    Lk1 = a.newlabel("ATT_k1"); Lj = a.newlabel("ATT_j")
    a("s_barrier")
    a(f"s_mul_i32 s60, s{S_W}, 3072", f"v_add_u32 v{vKA}, s60, v{vL16}",
      f"s_xor_b32 s60, s{S_W}, 4", "s_mul_i32 s60, s60, 3072", f"v_add_u32 v{vVB}, s60, v{vL16}", "s_nop 3")
    a(f"s_cmp_eq_u32 s{s_kh}, 1", f"s_cbranch_scc1 {Lk1}")
    for j in range(3): a(f"ds_write_b128 v{vKA}, {vr(O+16+4*j,4)} offset:{XO+1024*j}")
    a(f"s_branch {Lj}")
    a.label(Lk1)
    for j in range(3): a(f"ds_write_b128 v{vKA}, {vr(O+4*j,4)} offset:{XO+1024*j}")
    a("s_nop 1")
    for j in range(9): a(f"v_mov_b32 v{O+j}, v{O+16+j}")
    for j in range(4): a(f"v_mov_b32 v{Q+j}, v{Q+4+j}")
    a.label(Lj)
    a(f"s_lshl_b32 s60, s{s_qb}, 3", f"s_lshl_b32 s61, s{s_qw}, 1", "s_add_u32 s60, s60, s61", f"s_add_u32 s60, s60, s{s_kh}",
      "s_lshl_b32 s60, s60, 5", f"s_add_u32 s60, s60, s{s_head}",
      f"s_lshl_b32 s48, s60, {FS}", f"s_add_u32 s48, s48, {WS_FO:#x}",
      "s_lshl_b32 s49, s60, 10", f"s_add_u32 s49, s49, {WS_OF:#x}")
    Lgok = a.newlabel("GOK"); Lgr = a.newlabel("GRE")
    gw = vm.wait_for(lambda t: t == "g")
    if gw is not None: a(f"s_waitcnt vmcnt({gw})")
    a("s_mov_b32 s62, 0x80000")
    a.label(Lgr)
    a(f"v_cmp_ne_u32 vcc, s{S_TAG}, v{vG1+1}", f"v_cmp_ne_u32 s[60:61], s{S_TAG}, v{vG2+1}", "s_or_b64 vcc, vcc, s[60:61]", f"s_cbranch_scc0 {Lgok}",
      f"v_and_b32 v{T0}, 31, v0", f"v_lshlrev_b32 v{T0}, 3, v{T0}",
      f"s_sub_u32 s60, s49, {WS_OF:#x}", "s_lshr_b32 s60, s60, 15", "s_lshl_b32 s60, s60, 8", f"s_add_u32 s60, s60, {WS_GG:#x}",
      f"s_lshl_b32 s61, s{s_r64}, 1", f"s_add_u32 s61, s61, s{s_i}", "s_lshl_b32 s61, s61, 8", f"s_add_u32 s61, s61, {WS_GG:#x}",
      f"buffer_load_dwordx2 v[{vG1}:{vG1+1}], v{T0}, s[{SWS}:{SWS+3}], s60 offen sc1",
      f"buffer_load_dwordx2 v[{vG2}:{vG2+1}], v{T0}, s[{SWS}:{SWS+3}], s61 offen sc1",
      "s_waitcnt vmcnt(0)", "s_sub_u32 s62, s62, 1", f"s_cbranch_scc0 {Lgr}")
    a.label(Lgok)
    a("s_waitcnt lgkmcnt(0)", "s_barrier")
    for j in range(3): a(f"ds_read_b128 {vr(S+4*j,4)}, v{vVB} offset:{XO+1024*j}")
    a("s_waitcnt lgkmcnt(0)")
    for j in range(9): a(f"v_add_f32 v{O+j}, v{O+j}, v{S+j}")
    Lfb = a.newlabel("ATT_fallback"); Lfin = a.newlabel("ATT_fin")
    a(f"v_max3_f32 v{T0}, |v{O}|, |v{O+1}|, |v{O+2}|", f"v_max3_f32 v{T0}, v{T0}, |v{O+3}|, |v{O+4}|",
      f"v_max3_f32 v{T0}, v{T0}, |v{O+5}|, |v{O+6}|", f"v_max_f32 v{T0}, v{T0}, |v{O+7}|")
    a(f"v_add_f32 v{T0+1}, v{O}, v{O+1}")
    for j in range(2, 8): a(f"v_add_f32 v{T0+1}, v{T0+1}, v{O+j}")
    a("s_mov_b32 s62, 0x5d800000", f"v_cmp_nlt_f32 vcc, v{O+8}, s62",
      "s_mov_b32 s62, 0x7e800000", f"v_cmp_nlt_f32 s[60:61], v{T0}, s62",
      "s_or_b64 vcc, vcc, s[60:61]",
      f"v_cmp_u_f32 s[60:61], v{T0+1}, v{T0+1}",
      "s_or_b64 vcc, vcc, s[60:61]",
      f"s_cbranch_scc1 {Lfb}")
    a.label(Lfin)
    a(f"v_rcp_f32 v{T0}, v{O+8}", "s_nop 0", f"v_mul_f32 v{T0}, v{T0}, v{vG1}")
    for j in range(8): a(f"v_mul_f32 v{O+j}, v{O+j}, v{T0}")
    for j in range(4): a(f"v_cvt_pk_bf16_f32 v{P+j}, v{O+2*j}, v{O+2*j+1}")
    a(f"buffer_store_dwordx4 {vr(P,4)}, v{vL16}, s[{SWS}:{SWS+3}], s49 offen{SC}")
    Li1 = a.newlabel("DX_i1"); Lxj = a.newlabel("DX_j")
    a(f"s_lshl_b32 s60, s{S_W}, 13", f"s_add_u32 s60, s60, {XDN}", f"v_add_u32 v{vKA}, s60, v{vL16}", f"v_xor_b32 v{vVB}, 0x2000, v{vKA}" if XDN % 16384 == 0 else "s_nop 0")
    if XDN % 16384:
        a(f"s_xor_b32 s60, s{S_W}, 1", "s_lshl_b32 s60, s60, 13", f"s_add_u32 s60, s60, {XDN}", f"v_add_u32 v{vVB}, s60, v{vL16}")
    a(f"s_cmp_eq_u32 s{s_i}, 1", f"s_cbranch_scc1 {Li1}")
    for j in range(8): a(f"ds_write_b128 v{vKA}, {vr(AD+32+4*j,4)} offset:{1024*j}")
    a(f"s_branch {Lxj}")
    a.label(Li1)
    for j in range(8): a(f"ds_write_b128 v{vKA}, {vr(AD+4*j,4)} offset:{1024*j}")
    a("s_nop 1")
    for j in range(32): a(f"v_mov_b32 v{AD+j}, v{AD+32+j}")
    a.label(Lxj)
    a("s_waitcnt vmcnt(0)")
    set_flag(a, 48, T0)
    a.stamp("oflag")
    a("s_waitcnt lgkmcnt(0)", "s_barrier")
    for j in range(8): a(f"ds_read_b128 {vr(AD+32+4*j,4)}, v{vVB} offset:{1024*j}")
    WO = 64
    a(f"s_lshl_b32 s60, s{s_i}, 13", f"v_subrev_u32 v{vWR}, s60, v{vWR}", f"v_xor_b32 v{vWR+1}, 64, v{vWR}")
    a(f"v_sub_f32 v{vG2}, 1.0, v{vG2}", f"v_cvt_pk_bf16_f32 v{vG2}, v{vG2}, v{vG2}", f"v_lshlrev_b32 v{vG2}, 16, v{vG2}")
    a("s_waitcnt lgkmcnt(0)")
    for st in range(8):
        for cb in range(2):
            for t in range(2):
                a(f"ds_read_b64_tr_b16 {vr(WO+8*st+4*cb+2*t,2)}, v{vWR+cb} offset:{(st//4)*8192+((NK+st%4)%D)*2048+t*1024}")
        if st % 2 == 1: a("s_waitcnt lgkmcnt(6)")
        for j in range(4*st, 4*st+4):
            a(f"v_add_f32 v{AD+j}, v{AD+j}, v{AD+32+j}", f"v_mul_f32 v{AD+j}, v{AD+j}, v{vG2}")
    XF = 32
    a(f"s_lshl_b32 s60, s{s_r64}, 1", f"s_add_u32 s60, s60, s{s_i}",
      "s_lshl_b32 s61, s60, 5", f"s_lshl_b32 s62, s{s_kq}, 3", "s_add_u32 s61, s61, s62",
      "s_lshl_b32 s50, s61, 10", f"s_add_u32 s50, s50, {WS_OF:#x}", "s_add_u32 s51, s50, 4096",
      f"s_lshl_b32 s52, s61, {FS}", f"s_add_u32 s52, s52, {WS_FO:#x}",
      "s_lshl_b32 s53, s60, 15", f"s_lshl_b32 s62, s{s_c64}, 7", "s_add_u32 s53, s53, s62", f"s_lshl_b32 s62, s{s_kq}, 5", "s_add_u32 s53, s53, s62")
    a(f"v_and_b32 v{T0}, 31, v0", f"v_lshlrev_b32 v{T0}, 10, v{T0}", f"v_lshrrev_b32 v{T0+1}, 5, v0", f"v_lshl_add_u32 v{vVA}, v{T0+1}, 4, v{T0}",
      f"v_lshlrev_b32 v{T0}, {FS}, v0",
      f"s_mul_i32 s60, s{s_i}, {4*3*2048}", f"s_add_u32 s60, s60, {XO}", f"v_add_u32 v{vKA}, s60, v{vL16}",
      f"s_mul_i32 s61, s{s_kq}, {3*2048}", f"v_add_u32 v{vVB}, s61, v{vKA}")
    a("s_waitcnt lgkmcnt(0)", "s_barrier")
    a.stamp("prepoll")
    poll(a, 52, T0, 0xff, T0+1, 62)
    a.stamp("polled")
    for st in range(8):
        a(f"buffer_load_dwordx4 {vr(XF+4*st,4)}, v{vL16}, s[{SWS}:{SWS+3}], s{50 if st<4 else 51} offen offset:{(st%4)*1024}{SC}")
    for st in range(8):
        a(f"s_waitcnt vmcnt({7-st})")
        for cb in range(2): a(mfma(AD+16*cb, WO+8*st+4*cb, XF+4*st))
    a.stamp("outmf")
    a("s_nop 7", "s_nop 1")
    KEEP = 16
    Lj = a.newlabel("OUT_j")
    labs = [a.newlabel("OUT_k") for _ in range(4)]
    for kq in range(1, 4): a(f"s_cmp_eq_u32 s{s_kq}, {kq}", f"s_cbranch_scc1 {labs[kq]}")
    for kq in range(4):
        a.label(labs[kq])
        for q in range(4):
            if q == kq: continue
            rank = kq if kq < q else kq - 1
            for h in range(2):
                a(f"ds_write_b128 v{vKA}, {vr(AD+8*q+4*h,4)} offset:{(q*3+rank)*2048+h*1024}")
        for j in range(8): a(f"v_mov_b32 v{KEEP+j}, v{AD+8*kq+j}")
        if kq < 3: a(f"s_branch {Lj}")
    a.label(Lj)
    a("s_waitcnt lgkmcnt(0)", "s_barrier")
    for r in range(3):
        for h in range(2): a(f"ds_read_b128 {vr(XF+8*r+4*h,4)}, v{vVB} offset:{r*2048+h*1024}")
    for r in range(3):
        a(f"s_waitcnt lgkmcnt({4-2*r})")
        for j in range(8): a(f"v_add_f32 v{KEEP+j}, v{KEEP+j}, v{XF+8*r+j}")
    for j in range(4): a(f"v_cvt_pk_bf16_f32 v{24+j}, v{KEEP+2*j}, v{KEEP+2*j+1}")
    a("s_nop 1", "v_permlane32_swap_b32 v24, v26", "v_permlane32_swap_b32 v25, v27",
      f"buffer_store_dwordx4 v[24:27], v{vVA}, s[{SCd}:{SCd+3}], s53 offen")
    a(f"s_branch {end_label}")
    a.label(Lfb)
    L1 = a.newlabel("ATT_fb1"); L2 = a.newlabel("ATT_fb2")
    a(f"s_lshl_b32 s63, s{s_head}, 17", f"s_add_u32 s63, s63, {WS_KV:#x}")
    a(f"v_mov_b32 v{T0}, 0xff800000", "s_mov_b32 s60, s63", "s_mov_b32 s61, 0")
    a.label(L1)
    a(f"buffer_load_dwordx4 {vr(K,4)}, v{vL16}, s[{SWS}:{SWS+3}], s60 offen{SC}", "s_waitcnt vmcnt(0)",
      mfma(S, K, Q, "0"), "s_nop 7", "s_nop 7")
    for r in range(0, 16, 2): a(f"v_max3_f32 v{T0}, v{T0}, v{S+r}, v{S+r+1}")
    a("s_add_u32 s60, s60, 2048", "s_add_u32 s61, s61, 1", "s_cmp_lt_u32 s61, 64", f"s_cbranch_scc1 {L1}")
    a(f"v_mov_b32 v{T0+2}, v{T0}", "s_nop 1", f"v_permlane32_swap_b32 v{T0}, v{T0+2}", "s_nop 1", f"v_max_f32 v{T0}, v{T0}, v{T0+2}")
    for r in range(16): a(f"v_sub_f32 v{C+r}, 0, v{T0}", f"v_mov_b32 v{O+r}, 0")
    a(f"v_lshrrev_b32 v{T0}, 5, v0", f"v_lshlrev_b32 v{T0}, 8, v{T0}", f"v_and_b32 v{T0+1}, 15, v0",
      f"v_lshl_add_u32 v{vVA}, v{T0+1}, 4, v{T0}")
    a("s_mov_b32 s60, s63", "s_mov_b32 s61, 0")
    a.label(L2)
    a(f"buffer_load_dwordx4 {vr(K,4)}, v{vL16}, s[{SWS}:{SWS+3}], s60 offen{SC}",
      f"s_mov_b64 exec, s[{sEX}:{sEX+1}]",
      f"buffer_load_dwordx4 {vr(V,4)}, v{vVA}, s[{SWS}:{SWS+3}], s60 offen offset:1024{SC}",
      f"buffer_load_dwordx4 {vr(V+4,4)}, v{vVA}, s[{SWS}:{SWS+3}], s60 offen offset:1536{SC}",
      "s_mov_b64 exec, -1", "s_waitcnt vmcnt(0)",
      mfma(S, K, Q, C), "s_nop 7", "s_nop 7")
    for r in range(16): a(f"v_exp_f32 v{S+r}, v{S+r}")
    a("s_nop 0")
    for k in range(8): a(f"v_cvt_pk_bf16_f32 v{P+k}, v{S+2*k}, v{S+2*k+1}")
    a("s_nop 1", mfma(O, V, P), mfma(O, V+4, P+4), "s_nop 7", "s_nop 7")
    a("s_add_u32 s60, s60, 2048", "s_add_u32 s61, s61, 1", "s_cmp_lt_u32 s61, 64", f"s_cbranch_scc1 {L2}")
    a(f"s_branch {Lfin}")

def rot_code():
    m = OPT["rot"]
    if m == 0: return ["s_mov_b32 s3, 0"]
    if OPT["map"] == 1:
        base = ["s_and_b32 s3, s60, 6", "s_and_b32 s63, s60, 1", "s_lshl_b32 s63, s63, 2", "s_add_u32 s3, s3, s63"]
        if m == 2: return base
        if m == 1: return ["s_lshl_b32 s3, s61, 1", f"s_add_u32 s3, s3, s{s_rt}"]
        if m == 4: return base + [f"s_add_u32 s63, s61, s{s_rt}", "s_and_b32 s63, s63, 1", "s_lshl_b32 s63, s63, 2", "s_add_u32 s3, s3, s63"]
        if m == 5: return [f"s_add_u32 s63, s61, s{s_rt}", "s_and_b32 s63, s63, 3", "s_lshl_b32 s3, s63, 1", "s_and_b32 s63, s60, 1", "s_add_u32 s3, s3, s63"]
    if m == 1: return [f"s_lshl_b32 s3, s{s_rt}, 1", "s_add_u32 s3, s3, s61", "s_and_b32 s63, s60, 1", "s_add_u32 s3, s3, s63"]
    base = ["s_lshl_b32 s3, s60, 1", "s_and_b32 s63, s60, 4", "s_add_u32 s3, s3, s63"]
    if m == 2: return base
    if m == 3: return base + [f"s_add_u32 s63, s61, s{s_rt}", "s_and_b32 s63, s63, 1", "s_add_u32 s3, s3, s63"]
    if m == 4: return base + [f"s_add_u32 s63, s61, s{s_rt}", "s_and_b32 s63, s63, 1", "s_lshl_b32 s63, s63, 2", "s_add_u32 s3, s3, s63"]

def build(prof=False, as_list=False):
    a = Asm(); a.prof = prof; a.sb = 76
    a('.amdgcn_target "amdgcn-amd-amdhsa--gfx950"')
    a(".text", f".globl {NAME}", ".p2align 8", f".type {NAME},@function")
    a.label(NAME)
    end = "K_end"
    if prof:
        a.plan = PLAN
        a("s_memrealtime s[100:101]", "s_memtime s[76:77]")
        for i in range(1, 12): a(f"s_mov_b32 s{76+2*i}, 0")
    if OPT["spin"]: a("s_memrealtime s[100:101]")
    a("s_cmp_ge_u32 s2, 256", f"s_cbranch_scc1 {end}_x")
    a("s_load_dwordx16 s[4:19], s[0:1], 0", "s_load_dwordx4 s[20:23], s[0:1], 64", "s_load_dwordx2 s[24:25], s[0:1], 80")
    a("v_lshrrev_b32 v1, 6, v0", "s_and_b32 s60, s2, 7", f"v_readfirstlane_b32 s{S_W}, v1", "v_and_b32 v0, 63, v0", f"v_lshlrev_b32 v{vL16}, 4, v0")
    if OPT["map"] == 0:
        a("s_lshr_b32 s61, s2, 3", f"s_and_b32 s{s_rt}, s60, 3", f"s_lshl_b32 s{s_rt}, s{s_rt}, 2", "s_and_b32 s62, s61, 3", f"s_add_u32 s{s_rt}, s{s_rt}, s62",
          "s_lshr_b32 s61, s61, 2", "s_lshr_b32 s62, s60, 2", f"s_lshl_b32 s{s_ct}, s62, 3", f"s_add_u32 s{s_ct}, s{s_ct}, s61",
          f"s_mul_i32 s{s_ft}, s62, 7", "s_min_u32 s63, s61, 6", f"s_add_u32 s{s_ft}, s{s_ft}, s63",
          "s_cmp_lt_u32 s61, 7", f"s_cselect_b32 s{s_up}, 1, 0")
    else:
        a("s_lshr_b32 s61, s2, 3", f"s_and_b32 s{s_rt}, s60, 1", f"s_lshl_b32 s{s_rt}, s{s_rt}, 3", "s_and_b32 s62, s61, 7", f"s_add_u32 s{s_rt}, s{s_rt}, s62",
          "s_lshr_b32 s61, s61, 3", "s_lshr_b32 s62, s60, 1", f"s_lshl_b32 s{s_ct}, s62, 2", f"s_add_u32 s{s_ct}, s{s_ct}, s61",
          f"s_cmp_ge_u32 s{s_ct}, 11", "s_cselect_b32 s63, 1, 0", f"s_sub_u32 s{s_ft}, s{s_ct}, s63", f"s_min_u32 s{s_ft}, s{s_ft}, 13",
          f"s_and_b32 s63, s{s_ct}, 11", "s_cmp_lg_u32 s63, 11", f"s_cselect_b32 s{s_up}, 1, 0")
    a(*rot_code(),
      f"s_and_b32 s{s_rb}, s{S_W}, 3", f"s_lshr_b32 s{s_hf}, s{S_W}, 2",
      f"s_lshl_b32 s{s_row}, s2, 3", f"s_add_u32 s{s_row}, s{s_row}, s{S_W}",
      f"s_lshl_b32 s{s_fq}, s{s_ct}, 4", f"s_add_u32 s{s_fq}, s{s_fq}, s{s_rt}", f"s_lshl_b32 s{s_fq}, s{s_fq}, {FS}", f"s_add_u32 s{s_fq}, s{s_fq}, {WS_FQ:#x}")
    a(f"s_lshl_b32 s{sX}, s{s_rt}, 17", f"s_lshl_b32 s62, s{s_rb}, 15", f"s_add_u32 s{sX}, s{sX}, s62",
      f"s_mul_i32 s{sWq}, s{s_rb}, {16*3072}", f"s_mul_i32 s62, s{s_ct}, 192", f"s_add_u32 s{sWq}, s{sWq}, s62",
      f"s_mul_i32 s{sGU}, s{S_W}, {8*3584}", f"s_lshl_b32 s62, s{s_ft}, 8", f"s_add_u32 s{sGU}, s{sGU}, s62",
      f"s_lshl_b32 s{sLx}, s{s_rb}, 12", f"s_mul_i32 s{sLw}, s{s_rb}, 3072", f"s_lshl_b32 s{sLg}, s{S_W}, 11")
    a(f"s_lshl_b32 s{s_head}, s60, 2", "s_bfe_u32 s62, s2, 0x20003", f"s_add_u32 s{s_head}, s{s_head}, s62", f"s_lshr_b32 s{s_qb}, s2, 5",
      f"s_lshl_b32 s{s_q}, s{s_head}, 6", f"s_lshl_b32 s62, s{s_qb}, 3", f"s_add_u32 s{s_q}, s{s_q}, s62",
      f"s_lshl_b32 s62, s{s_rb}, 1", f"s_add_u32 s{s_q}, s{s_q}, s62", f"s_lshl_b32 s{s_q}, s{s_q}, 10",
      f"s_lshl_b32 s{s_src}, s{s_head}, 17", f"s_add_u32 s{s_src}, s{s_src}, {WS_KV:#x}", f"s_lshl_b32 s62, s{s_hf}, 16", f"s_add_u32 s{s_src}, s{s_src}, s62",
      f"s_lshl_b32 s62, s{s_rb}, 11", f"s_add_u32 s{s_src}, s{s_src}, s62",
      f"s_mul_i32 s{s_lkv}, s{s_hf}, {8*TS}", f"s_mul_i32 s62, s{s_rb}, {TS}", f"s_add_u32 s{s_lkv}, s{s_lkv}, s62", f"s_add_u32 s{s_lkv}, s{s_lkv}, {AB}")
    a("v_lshrrev_b32 v30, 3, v0", "v_and_b32 v31, 7, v0", "v_bfe_u32 v32, v0, 4, 2", "v_xor_b32 v32, v32, v31",
      "v_lshlrev_b32 v30, 10, v30", "v_lshl_add_u32 v11, v32, 4, v30", "v_xor_b32 v12, 64, v11")
    for i in range(3):
        a(f"v_add_u32 v30, {64*i}, v0", "v_mul_u32_u24 v31, 5462, v30", "v_lshrrev_b32 v31, 16, v31",
          "v_mul_u32_u24 v32, 12, v31", "v_sub_u32 v32, v30, v32", "v_mul_u32_u24 v31, 3072, v31", f"v_lshl_add_u32 v{13+i}, v32, 4, v31")
    a("v_lshrrev_b32 v30, 4, v0", "v_and_b32 v31, 15, v0", "v_lshlrev_b32 v32, 1, v30", "v_xor_b32 v31, v31, v32",
      "v_mul_u32_u24 v30, 3584, v30", "v_lshl_add_u32 v28, v31, 4, v30", "v_xor_b32 v31, 8, v31", "v_lshl_add_u32 v29, v31, 4, v30")
    a("s_waitcnt lgkmcnt(0)")
    srd(a, SA, S_X, 2048*1024); srd(a, SBd, S_WQKV, 512*3072)
    srd(a, SWS, S_WS, WS_SIZE); srd(a, SCd, S_WG, 512*3584); srd(a, SD, S_WU, 512*3584)
    L = {k: a.newlabel("CLS") for k in ("10", "11", "01")}
    L_attn = "ATTN"
    a(f"s_cmp_eq_u32 s{s_hf}, 0", f"s_cbranch_scc1 CLS0")
    a(f"s_cmp_ge_u32 s{s_ct}, 10", f"s_cbranch_scc1 {L['11']}")
    gemm_phase(a, 1, False, L_attn)
    a.label(L['11']); gemm_phase(a, 1, True, L_attn)
    a.label("CLS0")
    a(f"s_cmp_ge_u32 s{s_ct}, 11", f"s_cbranch_scc1 {L['01']}")
    gemm_phase(a, 0, False, L_attn)
    a.label(L['01']); gemm_phase(a, 0, True, L_attn)
    a(".p2align 6")
    a.label(L_attn)
    attention_phase(a, end)
    a.label(end)
    if OPT["spin"]:
        a.label("SPIN")
        a("s_memrealtime s[36:37]", "s_waitcnt lgkmcnt(0)", "s_sub_u32 s36, s36, s100", f"s_cmp_lt_u32 s36, {OPT['spin']}", "s_cbranch_scc1 SPIN")
    if prof:
        a("s_waitcnt vmcnt(0) lgkmcnt(0)", "s_memrealtime s[36:37]", "s_memtime s[38:39]",
          "s_getreg_b32 s40, hwreg(HW_REG_XCC_ID)",
          "s_mov_b32 s32, s24", "s_and_b32 s33, s25, 0xffff", "s_mov_b32 s34, 0x2000000", "s_mov_b32 s35, 0x00020000",
          "s_lshl_b32 s41, s2, 3", f"s_add_u32 s41, s41, s{S_W}", "s_lshl_b32 s41, s41, 6",
          f"s_add_u32 s41, s41, {WS_PROF:#x}",
          "s_waitcnt lgkmcnt(0)", "s_sub_u32 s38, s38, s76",
          "v_mov_b32 v4, s100", "v_mov_b32 v5, s36", "v_mov_b32 v6, s38", "v_mov_b32 v7, s40", "v_mov_b32 v8, 0",
          "s_mov_b64 exec, 1",
          "buffer_store_dwordx4 v[4:7], v8, s[32:35], s41 offen")
        for i in range(1, 12): a(f"s_sub_u32 s{76+2*i}, s{76+2*i}, s76", f"v_mov_b32 v{11+i}, s{76+2*i}")
        a("v_mov_b32 v23, 0")
        for q in range(3): a(f"buffer_store_dwordx4 v[{12+4*q}:{15+4*q}], v8, s[32:35], s41 offen offset:{16+16*q}")
    a.label(end + "_x")
    a("s_endpgm")
    desc = f""".section .rodata,"a"
.p2align 6
.amdhsa_kernel {NAME}
  .amdhsa_next_free_vgpr 256
  .amdhsa_next_free_sgpr 102
  .amdhsa_accum_offset 256
  .amdhsa_group_segment_fixed_size 0
  .amdhsa_kernarg_size 88
  .amdhsa_user_sgpr_count 2
  .amdhsa_user_sgpr_kernarg_segment_ptr 1
  .amdhsa_system_sgpr_workgroup_id_x 1
.end_amdhsa_kernel
"""
    k = f"kernel={NAME} " if as_list else ""
    return HEADER + f"; @launch {k}grid=(256,1,1) block=(512,1,1) lds={LDS_BYTES}\n" + a.text() + desc

if __name__ == "__main__":
    out = sys.argv[1]
    for x in sys.argv[2:]:
        if x.startswith("plan="): PLAN[:] = x[5:].split(",")
        elif "=" in x:
            k, v = x.split("="); OPT[k] = int(v)
    open(out, "w").write(build(prof="--prof" in sys.argv, as_list="--list" in sys.argv))
```

```python
import sys
from asmlib import *

NAME = "gated_mix__softmax_full_mha__glu_gated_bilinear__prompt_kernel"
HEADER = open("gated_mix__softmax_full_mha__glu_gated_bilinear__prompt.s.ref").read().split("; Override launch")[0]

WS_QF = 0x000000
WS_KV = 0x200000
WS_OF = 0x600000
WS_HF = 0x800000
WS_GG = 0xF00000
WS_EP = 0xF04000
WS_FQ = 0xF10000
WS_FO = 0xF30000
WS_FH = 0xF70000
WS_SIZE = 0xFB0000
FS = 7
WS_PROF = 0x1800000
QSCALE = 0x3EB8AA3B
LOG2E = 0x3FB8AA3B
LDS_BYTES = 163840

S_X, S_WQKV, S_WO, S_WG, S_WU, S_WD, S_GW, S_OUT, S_DBG, S_WS = 4, 6, 8, 12, 14, 16, 18, 20, 22, 24
S_TAG, S_W = 26, 27
SWS, SA, SBd, SCd, SD = 28, 32, 36, 40, 44
SC = " sc1"
OPT = dict(spin=0, gpf=3, map=0, tlb=0, glate=0, dq=2, dg=2, dswitch=7, qpub=10, rot=2, dbg=0, sleep=2, dstart=6, dback=2)

def srd(a, d, p, nbytes):
    a(f"s_mov_b32 s{d}, s{p}", f"s_and_b32 s{d+1}, s{p+1}, 0xffff",
      f"s_mov_b32 s{d+2}, {hex(nbytes)}", f"s_mov_b32 s{d+3}, 0x00020000")

def dma(a, voff, srd_, soff, pre, imm=0, flags=""):
    for l in pre: a(l)
    o = f" offset:{imm}" if imm else ""
    a(f"buffer_load_dwordx4 v{voff}, s[{srd_}:{srd_+3}], {soff} offen{o}{flags} lds")

def poll(a, s_base, voff, mask, vt, st, staged=True):
    a(f"s_mov_b32 s{st}, 0x80000")
    for stage in range(0 if staged else 1, 2):
        L = a.newlabel("POLL"); Ld = a.newlabel("POLLD")
        if stage == 0: a("s_mov_b64 exec, 1")
        elif mask == (1 << 64) - 1: a("s_mov_b64 exec, -1")
        else: a(f"s_mov_b32 exec_lo, {mask & 0xffffffff:#x}", f"s_mov_b32 exec_hi, {mask >> 32:#x}")
        a.label(L)
        a(f"buffer_load_dword v{vt}, v{voff}, s[{SWS}:{SWS+3}], s{s_base} offen sc1",
          "s_waitcnt vmcnt(0)",
          f"v_cmp_ne_u32 vcc, s{S_TAG}, v{vt}",
          f"s_cbranch_vccz {Ld}",
          "s_mov_b64 exec, vcc",
          f"s_sleep {OPT['sleep']}",
          f"s_sub_u32 s{st}, s{st}, 1",
          f"s_cbranch_scc0 {L}")
        a.label(Ld)
    a("s_mov_b64 exec, -1")

def set_flag(a, s_off, vt):
    a(f"v_mov_b32 v{vt}, 0", f"v_mov_b32 v{vt+1}, s{S_TAG}", "s_mov_b64 exec, 1",
      f"buffer_store_dword v{vt+1}, v{vt}, s[{SWS}:{SWS+3}], s{s_off} offen sc1", "s_mov_b64 exec, -1")

PLAN = ["issued", "qkv", "up", "loop", "loopend", "oflag", "prepoll", "polled", "outmf"]
class VM:
    def __init__(self): self.q = []
    def add(self, tag, n=1): self.q += [tag] * n
    def wait_for(self, pred):
        idx = [i for i, t in enumerate(self.q) if pred(t)]
        if not idx: return None
        n = len(self.q) - 1 - idx[-1]
        self.q = self.q[idx[-1]+1:]
        return n

def vw(a, vm, pred, extra=""):
    n = vm.wait_for(pred)
    if n is not None: a(f"s_waitcnt vmcnt({n}){extra}")
    elif extra: a(f"s_waitcnt{extra}")

SLOT = 32768
TS = 2080; CS = 16*TS; AB = 32768
ORDER = "e0 e1 N e2 e3 c0 e4 e5 c1 S M e6 e7 c2 e8 e9 c3 e10 e11 c4 e12 P e13 c5 e14 e15 c6 c7"

s_rt, s_ct, s_ft, s_rb, s_hf, s_up = 48, 49, 50, 51, 52, 53
sX, sWq, sGU, sLx, sLw, sLg = 54, 55, 56, 57, 58, 59
T1, T2, T3, T4 = 60, 61, 62, 63
s_head, s_qb, s_src, s_lkv, s_q = 64, 65, 66, 67, 68
s_row = 69
s_fq = 70
sGo = 71
XR, ACC, WF = 128, 64, 32
Q, K, V, P, C, S, O = 16, 24, 32, 48, 64, 80, 112
vL16, vKA, vVA, vVB = 1, 2, 3, 4

def gemm_phase(a, hf, swap, L_attn):
    vm = VM()
    vXA, vWA, vGA = 2, 6, 7
    vXO, vWO, vGO, vUO = 11, 13, 28, 29
    vT = 24
    nb = 2 if hf == 0 else 1
    b0 = 0 if hf == 0 else 2
    def issue_groups(n):
        slot = (n % 5) * SLOT
        G = []
        def mk(voff, sr_, pre):
            def f():
                dma(a, voff, sr_, f"s{T1}", pre); vm.add(("u", n))
            return f
        if n < 8:
            if hf == 1:
                pre0 = [f"s_add_u32 s{T2}, s3, {n}", f"s_and_b32 s{T2}, s{T2}, 7", f"s_lshl_b32 s{T3}, s{T2}, 7", f"s_add_u32 s{T3}, s{T3}, s{sX}",
                        f"s_mul_i32 s{T2}, s{T2}, {64*3072}"]
                for jj in range(4):
                    G.append(mk(vXO + jj % 2, SA, (pre0 if jj == 0 else []) + [f"s_add_u32 m0, s{sLx}, {slot + jj*1024}", f"s_add_u32 s{T1}, s{T3}, {jj*8192}"]))
                for i in range(3):
                    G.append(mk(vWO + i, SBd, [f"s_add_u32 m0, s{sLw}, {slot + 16384 + i*1024}", f"s_add_u32 s{T1}, s{sWq}, s{T2}"]))
        else:
            g = n - 8
            pre0 = [f"s_add_u32 s{sGo}, s3, {g}", f"s_and_b32 s{sGo}, s{sGo}, 7", f"s_mul_i32 s{sGo}, s{sGo}, {64*3584}", f"s_add_u32 s{sGo}, s{sGo}, s{sGU}"]
            for h in range(2):
                G.append(mk(vGO, SCd, (pre0 if h == 0 else []) + [f"s_add_u32 m0, s{sLg}, {slot + h*1024}", f"s_add_u32 s{T1}, s{sGo}, {h*4*3584}"]))
                G.append(mk(vUO, SD, [f"s_add_u32 m0, s{sLg}, {slot + 16384 + h*1024}", f"s_add_u32 s{T1}, s{sGo}, {h*4*3584}"]))
        return G
    sched = {n: [] for n in range(-1, 16)}
    nxt = 0
    for n in range(-1, 16):
        dist = OPT["dq"] if n < OPT["dswitch"] else OPT["dg"]
        lim = min(15, n + dist, n + 4)
        while nxt <= lim and len(sched[n]) < (OPT["dq"] if n < 0 else 2):
            sched[n].append(nxt); nxt += 1
    for u in sched[-1]:
        for f in issue_groups(u): f()
    a.stamp("issued")
    if hf == 0 and OPT["tlb"]:
        Ls = [a.newlabel("TW") for _ in range(4)]; Le = a.newlabel("TWE")
        for q in range(1, 4): a(f"s_cmp_eq_u32 s{S_W}, {q}", f"s_cbranch_scc1 {Ls[q]}")
        a("v_mul_u32_u24 v30, 28672, v0", f"buffer_load_dword v31, v30, s[{SCd}:{SCd+3}], 0 offen", f"s_branch {Le}")
        a.label(Ls[1])
        a("v_mul_u32_u24 v30, 28672, v0", f"buffer_load_dword v31, v30, s[{SD}:{SD+3}], 0 offen", f"s_branch {Le}")
        a.label(Ls[2])
        srd(a, 72, S_WD, 1792*1024)
        a("v_mul_u32_u24 v30, 28672, v0", "buffer_load_dword v31, v30, s[72:75], 0 offen")
        srd(a, 72, S_WO, 512*1024)
        a("v_lshlrev_b32 v30, 13, v0", "buffer_load_dword v31, v30, s[72:75], 0 offen", f"s_branch {Le}")
        a.label(Ls[3])
        srd(a, 72, S_OUT, 2048*1024)
        a("v_lshlrev_b32 v30, 15, v0", "buffer_load_dword v31, v30, s[72:75], 0 offen",
          "v_lshlrev_b32 v30, 18, v0", f"buffer_load_dword v31, v30, s[{SWS}:{SWS+3}], 0 offen sc1")
        a.label(Le)
        a("s_waitcnt vmcnt(0)")
    a(f"v_mov_b32 v{vT}, 0", f"s_mov_b32 s{T1}, {WS_EP:#x}",
      f"buffer_load_dword v{vT+1}, v{vT}, s[{SWS}:{SWS+3}], s{T1} offen sc1")
    vm.add("E")
    srd(a, 72, S_GW, 1024)
    a(f"s_lshl_b32 s{T1}, s{s_row}, 10",
      f"buffer_load_dwordx4 v[16:19], v{vL16}, s[72:75], 0 offen",
      f"buffer_load_dwordx4 v[20:23], v{vL16}, s[{SA}:{SA+3}], s{T1} offen")
    vm.add("G", 2)
    a("v_and_b32 v30, 31, v0", "v_lshrrev_b32 v31, 5, v0", "v_bfe_u32 v32, v0, 1, 3", "v_xor_b32 v32, v32, v31",
      f"s_lshl_b32 s{T1}, s{s_rb}, 12", "v_lshlrev_b32 v33, 7, v30", f"v_add_u32 v33, s{T1}, v33")
    for s in range(4): a(f"v_xor_b32 v34, {2*s}, v32", f"v_lshl_add_u32 v{vXA+s}, v34, 4, v33")
    a("v_bfe_u32 v32, v0, 2, 2", "v_lshl_add_u32 v33, v31, 3, v32", "v_mul_u32_u24 v34, 192, v33",
      "v_bfe_u32 v35, v0, 4, 1", "v_lshl_add_u32 v34, v35, 5, v34", "v_and_b32 v36, 3, v0", "v_lshl_add_u32 v34, v36, 3, v34",
      f"v_add_u32 v{vWA}, {16384 + b0*64}, v34")
    a("v_lshlrev_b32 v33, 8, v33", "v_lshl_add_u32 v33, v35, 14, v33", "v_lshl_add_u32 v33, v36, 3, v33", "v_bfe_u32 v32, v0, 2, 3")
    for f in range(4): a(f"v_xor_b32 v34, {4*hf+f}, v32", f"v_lshl_add_u32 v{vGA+f}, v34, 5, v33")
    cur = [0]
    def rebase(n):
        slot = n % 5
        want = (slot // 2) * 2
        if want != cur[0]:
            d = ((want - cur[0]) * SLOT) & 0xffffffff
            regs = (list(range(vXA, vXA+4)) + [vWA] if n < 8 else []) + list(range(vGA, vGA+4))
            for r in regs: a(f"v_add_u32 v{r}, {d:#x}, v{r}")
            cur[0] = want
        return (slot - want) * SLOT
    def reads(n, s, off):
        p = s % 2
        R = []
        if n < 8:
            R.append(f"ds_read_b128 {vr(XR+4*(4*n+s),4)}, v{vXA+s} offset:{off}")
            for b in range(nb):
                for t in range(2):
                    R.append(f"ds_read_b64_tr_b16 {vr(WF+16*p+4*b+2*t,2)}, v{vWA} offset:{off+(16*s+4*t)*192+b*64}")
            return R
        for f in range(4):
            for t in range(2):
                R.append(f"ds_read_b64_tr_b16 {vr(WF+16*p+4*f+2*t,2)}, v{vGA+f} offset:{off+(16*s+4*t)*256}")
        return R
    def mf(n, s):
        p = s % 2
        M = []
        if n < 8:
            x = XR + 4*(4*n+s)
            for b in range(nb):
                c = "0" if (n == 0 and s == 0) else None
                M.append(mfma(ACC+16*b, x, WF+16*p+4*b, c) if swap else mfma(ACC+16*b, WF+16*p+4*b, x, c))
        else:
            x = XR + 4*(4*(n-8)+s)
            for f in range(4): M.append(mfma(ACC+16*f, WF+16*p+4*f, x, "0" if (n == 8 and s == 0) else None))
        return M
    def qkv_epilogue():
        a("s_nop 7", "s_nop 3")
        ST = []
        def mk(line):
            def f(): a(line); vm.add("Q")
            return f
        for b in range(nb):
            o1, o2 = 72 + 2*b, 73 + 2*b
            a(f"s_mul_i32 s{T1}, s{s_ct}, 3", f"s_add_u32 s{T1}, s{T1}, {b0+b}", f"s_and_b32 s{T2}, s{T1}, 15", f"s_lshl_b32 s{T2}, s{T2}, 7",
              f"s_lshl_b32 s{T3}, s{s_rt}, 2", f"s_add_u32 s{T3}, s{T3}, s{s_rb}", f"s_add_u32 s{T2}, s{T2}, s{T3}")
            A = ACC + 16*b; D = 12 + 8*b
            if not swap:
                a(f"s_lshl_b32 s{T3}, s{T2}, 10", f"s_lshl_b32 s{T2}, s{T2}, 11", f"s_add_u32 s{T2}, s{T2}, {WS_KV:#x}",
                  f"s_cmp_lt_u32 s{T1}, 16", f"s_cselect_b32 s{o1}, s{T3}, s{T2}",
                  f"s_cselect_b32 s{T3}, 1, 2", f"s_cselect_b32 s{T4}, {QSCALE:#x}, 1.0",
                  f"s_lshl_b32 s{T3}, s{T3}, 16", f"s_add_u32 s{o2}, s{T3}, s{o1}")
                for r in range(16): a(f"v_mul_f32 v{A+r}, s{T4}, v{A+r}")
                if b == 0: a(f"v_mov_b32 v2, v{vL16}")
            else:
                a(f"s_lshl_b32 s{T2}, s{T2}, 11", f"s_add_u32 s{o1}, s{T2}, {WS_KV+1024:#x}", f"s_add_u32 s{o2}, s{o1}, 512")
                if b == 0:
                    a("v_bfe_u32 v30, v0, 4, 1", "v_lshlrev_b32 v30, 17, v30", "v_lshrrev_b32 v31, 5, v0", "v_lshl_add_u32 v30, v31, 8, v30",
                      "v_and_b32 v31, 15, v0", "v_lshl_add_u32 v2, v31, 4, v30")
            for j in range(8): a(f"v_cvt_pk_bf16_f32 v{D+j}, v{A+2*j}, v{A+2*j+1}")
            ST.append(mk(f"buffer_store_dwordx4 {vr(D,4)}, v2, s[{SWS}:{SWS+3}], s{o1} offen{SC}"))
            ST.append(mk(f"buffer_store_dwordx4 {vr(D+4,4)}, v2, s[{SWS}:{SWS+3}], s{o2} offen{SC}"))
        return ST
    def gate_compute():
        acc = vT + 2
        a(f"s_mov_b32 s{T4}, 0xffff0000")
        for j in range(4):
            a(f"v_lshlrev_b32 v30, 16, v{16+j}", f"v_and_b32 v{16+j}, s{T4}, v{16+j}",
              f"v_lshlrev_b32 v31, 16, v{20+j}", f"v_and_b32 v{20+j}, s{T4}, v{20+j}",
              "v_mul_f32 v30, v30, v31", f"v_mul_f32 v31, v{16+j}, v{20+j}",
              "v_cvt_pk_bf16_f32 v30, v30, v31", f"v_and_b32 v31, s{T4}, v30", "v_lshlrev_b32 v30, 16, v30")
            if j == 0: a(f"v_add_f32 v{acc}, v30, v31")
            else: a(f"v_add_f32 v{acc}, v{acc}, v30", f"v_add_f32 v{acc}, v{acc}, v31")
        for sh in (8, 4, 2, 1):
            a("s_nop 1", f"v_add_f32_dpp v{acc}, v{acc}, v{acc} row_ror:{sh} row_mask:0xf bank_mask:0xf")
        a("s_nop 1")
        for q in range(4): a(f"v_readlane_b32 s{T1+q}, v{acc}, {16*q}")
        a("s_nop 1", f"v_mov_b32 v{acc}, s{T1}", f"v_add_f32 v{acc}, s{T2}, v{acc}", f"v_add_f32 v{acc}, s{T3}, v{acc}", f"v_add_f32 v{acc}, s{T4}, v{acc}")
        a(f"v_cvt_pk_bf16_f32 v{acc}, v{acc}, v{acc}", f"v_lshlrev_b32 v{acc}, 16, v{acc}",
          f"v_mul_f32 v{acc}, {(LOG2E | 0x80000000):#x}, v{acc}", f"v_exp_f32 v{acc}, v{acc}", "s_nop 0",
          f"v_add_f32 v{acc}, 1.0, v{acc}", f"v_rcp_f32 v{acc}, v{acc}", "s_nop 0",
          f"v_cvt_pk_bf16_f32 v{acc}, v{acc}, v{acc}", f"v_lshlrev_b32 v{acc}, 16, v{acc}")
    def tag_finish_and_gate_store():
        acc = vT + 2
        a(f"v_readfirstlane_b32 s{S_TAG}, v{vT+1}", f"v_readfirstlane_b32 s{T1}, v16", "s_nop 3",
          f"s_mul_i32 s{S_TAG}, s{S_TAG}, 1664525", f"s_add_u32 s{S_TAG}, s{S_TAG}, 1013904223", f"s_or_b32 s{S_TAG}, s{S_TAG}, 1",
          f"s_cmp_lg_u32 s{T1}, 0", f"s_cselect_b32 s{S_TAG}, s{T1}, s{S_TAG}",
          f"s_lshl_b32 s{T1}, s{s_row}, 3", f"s_add_u32 s{T1}, s{T1}, {WS_GG:#x}",
          f"v_mov_b32 v{acc+1}, s{S_TAG}", "s_mov_b64 exec, 1",
          f"buffer_store_dwordx2 v[{acc}:{acc+1}], v{vT}, s[{SWS}:{SWS+3}], s{T1} offen sc1", "s_mov_b64 exec, -1")
        vm.add("g")
    def w(pred, extra=""):
        n = vm.wait_for(pred)
        if n is not None: a(f"s_waitcnt vmcnt({n}){extra}")
        elif extra: a(f"s_waitcnt{extra}")
    prev = None
    L_noup = a.newlabel("NOUP")
    for n in range(16):
        if n == 8:
            a("s_waitcnt lgkmcnt(0)"); a(*mf(*prev)); prev = None
            a.stamp("qkv")
            ST = qkv_epilogue()
            if swap:
                a(f"s_branch GPART{hf}")
                return
            a.label(f"GPART{hf}")
            a(f"s_cmp_eq_u32 s{s_up}, 0", f"s_cbranch_scc1 {L_noup}")
            for f in dm: f()
        w(lambda t: t == ("u", n) or (n == OPT["qpub"] and t == "Q"), " lgkmcnt(0)" if n else "")
        a.stamp(f"pre{n}")
        a("s_barrier")
        a.stamp(f"b{n}")
        off = rebase(n)
        dm = [f for u in sched[n] for f in issue_groups(u)]
        if n == 8: dm = ST + dm
        for s in range(4):
            R = reads(n, s, off); M = mf(*prev) if prev else []
            if n < 8:
                a(*R)
                if s == 0 and n < 7:
                    for f in dm: f()
                    dm = []
                if s > 0: a(f"s_waitcnt lgkmcnt({len(R)})")
                if M: a(*M)
            else:
                if s > 0: a("s_waitcnt lgkmcnt(0)")
                nd = (len(dm) + (3 - s)) // (4 - s)
                if s < OPT["glate"]: nd = 0
                for j in range(4):
                    if M: a(M[j])
                    if j < 2: a(*R[4*j:4*j+4])
                    elif nd > 0 and dm:
                        for _ in range((nd + 1) // 2 if j == 2 else nd): dm.pop(0)(); nd -= 1
            if s == 0:
                if n == OPT["qpub"] and hf == 0:
                    Lf = a.newlabel("QF"); a(f"s_cmp_lg_u32 s{S_W}, 0", f"s_cbranch_scc1 {Lf}"); set_flag(a, s_fq, 30); a.label(Lf)
                if n == 13: qflag_load(a, vm)
                if n == 14: attn_prefetch(a, vm, 0)
                if n == 15: attn_prefetch(a, vm, 1)
            prev = (n, s)
            if s == 0 and n == OPT["gpf"] and hf == 0:
                L = a.newlabel("GPF")
                a(f"s_cmp_ge_u32 s{S_W}, 2", f"s_cbranch_scc1 {L}",
                  f"s_lshl_b32 s{T1}, s3, 4", f"s_lshr_b32 s{T2}, s2, 3", f"s_add_u32 s{T1}, s{T1}, s{T2}", f"s_and_b32 s{T1}, s{T1}, 127",
                  f"s_mul_i32 s{T1}, s{T1}, {4*3584}", f"s_bfe_u32 s{T2}, s2, 0x10002", f"s_mul_i32 s{T2}, s{T2}, 1792", f"s_add_u32 s{T1}, s{T1}, s{T2}",
                  "v_lshrrev_b32 v30, 4, v0", "v_mul_u32_u24 v30, 3584, v30", "v_and_b32 v31, 15, v0", "v_min_u32 v31, 13, v31", "v_lshl_add_u32 v30, v31, 7, v30",
                  f"s_cmp_eq_u32 s{S_W}, 0", f"s_cbranch_scc1 {L}_g",
                  f"buffer_load_dword v127, v30, s[{SD}:{SD+3}], s{T1} offen", f"s_branch {L}")
                a.label(L + "_g")
                a(f"buffer_load_dword v127, v30, s[{SCd}:{SCd+3}], s{T1} offen")
                a.label(L)
            if s == 1 and n == (2 if hf == 0 else 3):
                w(lambda t: t == "G"); gate_compute()
                srd(a, 72, S_DBG, 256)
                a(f"buffer_load_dword v16, v{vT}, s[72:75], 0 offen sc1"); vm.add("D")
            if s == 3 and n == 7:
                w(lambda t: t == "D"); tag_finish_and_gate_store()
                if hf == 0:
                    L = a.newlabel("NOUPD")
                    a(f"s_cmp_lg_u32 s{s_row}, 1", f"s_cbranch_scc1 {L}",
                      f"v_mov_b32 v30, s{S_TAG}", f"s_mov_b32 s{T1}, {WS_EP:#x}", "s_mov_b64 exec, 1",
                      f"buffer_store_dword v30, v{vT}, s[72:75], 0 offen sc1", "s_waitcnt vmcnt(0)",
                      f"buffer_store_dword v30, v{vT}, s[{SWS}:{SWS+3}], s{T1} offen sc1", "s_mov_b64 exec, -1", "s_waitcnt vmcnt(0)")
                    a.label(L)
    a("s_waitcnt lgkmcnt(0)"); a(*mf(*prev))
    a.stamp("up")
    a(f"s_lshl_b32 s{T1}, s{s_rt}, 2", f"s_add_u32 s{T1}, s{T1}, s{s_rb}", f"s_mul_i32 s{T1}, s{T1}, 112",
      f"s_lshl_b32 s{T2}, s{s_ft}, 3", f"s_add_u32 s{T1}, s{T1}, s{T2}", f"s_lshl_b32 s{T1}, s{T1}, 10",
      f"s_add_u32 s{T1}, s{T1}, {WS_HF + hf*4096:#x}", "s_nop 4")
    for f in range(4):
        A = ACC + 16*f; D = XR + 16 + 4*f
        for j in range(0, 8, 2): a(f"v_pk_mul_f32 {vr(A+j,2)}, {vr(A+j,2)}, {vr(A+8+j,2)}")
        for j in range(4): a(f"v_cvt_pk_bf16_f32 v{D+j}, v{A+2*j}, v{A+2*j+1}")
        a(f"buffer_store_dwordx4 {vr(D,4)}, v{vL16}, s[{SWS}:{SWS+3}], s{T1} offen offset:{f*1024}{SC}")
    a(f"s_branch {L_attn}")
    a.label(L_noup)
    for f in ST: f()
    a("s_waitcnt vmcnt(0)", "s_barrier")
    if hf == 0:
        Lf = a.newlabel("QF"); a(f"s_cmp_lg_u32 s{S_W}, 0", f"s_cbranch_scc1 {Lf}"); set_flag(a, s_fq, 30); a.label(Lf)
    vm2 = VM(); qflag_load(a, vm2); attn_prefetch(a, vm2, 0); attn_prefetch(a, vm2, 1)
    a("s_waitcnt vmcnt(0)")
    a(f"s_branch {L_attn}")

def issue_chunk(a, cslot):
    for h in range(2):
        a(f"s_add_u32 m0, s{s_lkv}, {cslot*CS + 4*h*TS}")
        if h == 0: a("s_nop 0")
        else: a(f"s_add_u32 s{s_src}, s{s_src}, 8192")
        a(f"buffer_load_dwordx4 v{vL16}, s[{SWS}:{SWS+3}], s{s_src} offen{SC} lds",
          f"buffer_load_dwordx4 v{vL16}, s[{SWS}:{SWS+3}], s{s_src} offen offset:1024{SC} lds")
    a(f"s_add_u32 s{s_src}, s{s_src}, 8192")

QMASK = (1 << 34) - 1
def qflag_load(a, vm):
    a(f"s_lshr_b32 s{T1}, s{s_head}, 1", "v_lshrrev_b32 v30, 4, v0", "v_add_u32 v30, 1, v30", "v_cmp_gt_u32 vcc, 3, v30", "s_nop 1",
      "v_cndmask_b32 v30, 0, v30, vcc", "v_lshlrev_b32 v30, 4, v30", f"v_add_u32 v30, s{T1}, v30",
      "v_mul_u32_u24 v30, 43691, v30", "v_lshrrev_b32 v30, 17, v30",
      "v_and_b32 v31, 15, v0", f"s_lshl_b32 s{T2}, s{s_qb}, 1", f"v_add_u32 v24, s{T2}, v31", "v_cndmask_b32 v31, v24, v31, vcc",
      "v_lshl_add_u32 v30, v30, 4, v31", f"v_lshlrev_b32 v30, {FS}, v30")
    flag_load(a, vm, WS_FQ, 30, QMASK, 31)

def flag_load(a, vm, base, voff, mask, vt):
    a(f"s_mov_b32 s{T1}, {base:#x}", f"s_mov_b32 exec_lo, {mask & 0xffffffff:#x}", f"s_mov_b32 exec_hi, {mask >> 32:#x}",
      f"buffer_load_dword v{vt}, v{voff}, s[{SWS}:{SWS+3}], s{T1} offen sc1", "s_mov_b64 exec, -1")
    vm.add("F")

def flag_check(a, vm, base, voff, mask, vt):
    L = a.newlabel("FOK")
    a(f"s_waitcnt vmcnt({vm.wait_for(lambda t: t == 'F')})",
      f"v_cmp_ne_u32 vcc, s{S_TAG}, v{vt}", f"s_and_b32 vcc_lo, vcc_lo, {mask & 0xffffffff:#x}", f"s_and_b32 vcc_hi, vcc_hi, {mask >> 32:#x}",
      f"s_or_b32 s{T1}, vcc_lo, vcc_hi", f"s_cbranch_scc0 {L}", f"s_mov_b32 s{T1}, {base:#x}")
    poll(a, T1, voff, mask, vt, T2, staged=False)
    a.label(L)

def attn_prefetch(a, vm, which):
    if which == 0:
        flag_check(a, vm, WS_FQ, 30, QMASK, 31)
        a(f"buffer_load_dwordx4 {vr(Q,4)}, v{vL16}, s[{SWS}:{SWS+3}], s{s_q} offen{SC}",
          f"buffer_load_dwordx4 {vr(Q+4,4)}, v{vL16}, s[{SWS}:{SWS+3}], s{s_q} offen offset:1024{SC}")
        vm.add("q", 2)
    issue_chunk(a, which)
    vm.add(("c", which), 4)

def attention_phase(a, end_label):
    vm = VM(); vm.add("q", 2); vm.add(("c", 0), 4); vm.add(("c", 1), 4); vm.add("h", 4)
    T0 = 8
    vWR, vWO = 5, 7
    vG1, vG2, vFO = 28, 30, 56
    AD, XD, WD = 144, 208, 240
    D = 4; NK = 14
    s_qw, s_kh = s_rb, s_hf
    sEX = 54
    s_r64, s_c64, s_x0, s_wd, s_wo, s_lw, s_fh = 56, 57, 58, 59, 71, 72, 73
    s_i, s_kq = 74, 75
    a("s_and_b32 s60, s2, 7", "s_lshr_b32 s61, s2, 3", f"s_lshl_b32 s{s_r64}, s60, 2", "s_and_b32 s60, s61, 3", f"s_add_u32 s{s_r64}, s{s_r64}, s60",
      f"s_lshr_b32 s{s_c64}, s61, 2", f"s_mov_b32 s{sEX}, 0xffff", f"s_mov_b32 s{sEX+1}, 0xffff",
      f"s_and_b32 s{s_i}, s{S_W}, 1", f"s_lshr_b32 s{s_kq}, s{S_W}, 1")
    srd(a, SA, S_WD, 1792*1024); srd(a, SBd, S_WO, 512*1024); srd(a, SCd, S_OUT, 2048*1024)
    a(f"s_mul_i32 s60, s{s_r64}, 224", f"s_mul_i32 s61, s{S_W}, {NK}", "s_add_u32 s60, s60, s61",
      f"s_lshl_b32 s{s_x0}, s60, 10", f"s_add_u32 s{s_x0}, s{s_x0}, {WS_HF:#x}",
      f"s_lshl_b32 s{s_wd}, s61, 14", f"s_lshl_b32 s60, s{s_c64}, 7", f"s_add_u32 s{s_wd}, s{s_wd}, s60",
      f"s_lshl_b32 s{s_wo}, s{S_W}, 16", f"s_add_u32 s{s_wo}, s{s_wo}, s60",
      f"s_lshl_b32 s{s_lw}, s{s_qw}, 13", f"s_lshl_b32 s60, s{s_kh}, 17", f"s_add_u32 s{s_lw}, s{s_lw}, s60")
    a(f"s_lshl_b32 s60, s{s_rt}, 2", f"s_add_u32 s60, s60, s{s_rb}", "s_lshl_b32 s60, s60, 5", f"s_lshl_b32 s61, s{s_ft}, 1", "s_add_u32 s60, s60, s61",
      f"s_add_u32 s60, s60, s{s_hf}", f"s_lshl_b32 s60, s60, {FS}", f"s_add_u32 s{s_fh}, s60, {WS_FH:#x}")
    a(f"v_and_b32 v{T0}, 31, v0", f"v_mul_u32_u24 v{T0}, {TS}, v{T0}", f"v_lshrrev_b32 v{T0+1}, 5, v0", f"v_lshl_add_u32 v{T0}, v{T0+1}, 4, v{T0}",
      f"v_cmp_eq_u32 vcc, 0, v{T0+1}", f"v_mov_b32 v{T0+4}, 0x3f803f80", "s_nop 0", f"v_cndmask_b32 v{T0+4}, 0, v{T0+4}, vcc",
      f"v_mov_b32 v{T0+5}, v{T0+4}", f"v_mov_b32 v{T0+6}, v{T0+4}", f"v_mov_b32 v{T0+7}, v{T0+4}",
      f"ds_write_b128 v{T0}, {vr(T0+4,4)} offset:{AB+2048}")
    a(f"s_mul_i32 s60, s{s_kh}, {8*TS}", f"s_add_u32 s60, s60, {AB}", f"v_add_u32 v{vKA}, s60, v{vL16}",
      f"v_lshlrev_b32 v{T0}, 8, v{T0+1}", f"v_and_b32 v{T0+1}, 15, v0", f"v_lshl_add_u32 v{T0}, v{T0+1}, 4, v{T0}",
      f"v_and_b32 v{T0+1}, 11, v0", f"v_cmp_eq_u32 vcc, 0, v{T0+1}", f"v_mov_b32 v{T0+2}, 16", "s_nop 0",
      f"v_cndmask_b32 v{T0+2}, v{T0+2}, 0, vcc",
      f"v_add_u32 v{T0+3}, 1024, v{T0+2}", f"v_add_u32 v{T0+2}, 512, v{T0+2}",
      f"v_cndmask_b32 v{vVA}, v{T0+3}, v{T0}, s[{sEX}:{sEX+1}]", f"v_cndmask_b32 v{vVB}, v{T0+2}, v{T0}, s[{sEX}:{sEX+1}]",
      f"v_add_u32 v{vVA}, s60, v{vVA}", f"v_add_u32 v{vVB}, s60, v{vVB}")
    def rd(it, vbuf):
        off = ((it // 8) % 2) * CS + (it % 8) * TS
        return [f"ds_read_b128 {vr(K,4)}, v{vKA} offset:{off}",
                f"ds_read_b128 {vr(V+8*vbuf,4)}, v{vVA} offset:{off+1024}",
                f"ds_read_b128 {vr(V+8*vbuf+4,4)}, v{vVB} offset:{off+1536}"]
    a(f"s_waitcnt vmcnt({vm.wait_for(lambda t: t == ('c', 0))}) lgkmcnt(0)", "s_barrier")
    a(f"ds_read_b128 {vr(P,4)}, v{vL16} offset:{AB}")
    a(*rd(0, 0))
    a(f"v_lshrrev_b32 v{T0}, 3, v0", f"v_lshlrev_b32 v{T0}, 10, v{T0}", f"v_bfe_u32 v{T0+1}, v0, 4, 1", f"v_lshlrev_b32 v{T0+2}, 2, v{T0+1}",
      f"v_and_b32 v{T0+3}, 7, v0", f"v_xor_b32 v{T0+2}, v{T0+2}, v{T0+3}", f"v_lshl_add_u32 v{vWO}, v{T0+2}, 4, v{T0}")
    a("s_waitcnt lgkmcnt(3)")
    a(mfma(S, P, Q, "0"), mfma(S+16, P, Q+4, "0"))
    vWO2, vX2 = 58, 59
    a(f"v_add_u32 v{vWO2}, {8192-1024}, v{vWO}", f"v_add_u32 v{vX2}, {112*1024}, v{vL16}")
    def issue_w(n):
        slot = n % D
        sr_, base = (SA, s_wd) if n < NK else (SBd, s_wo)
        a(f"s_add_u32 m0, s{s_lw}, {slot*2048}")
        if n not in (0, NK): a(f"s_add_u32 s{base}, s{base}, 16384")
        else: a("s_nop 0")
        dma(a, vWO, sr_, f"s{base}", [])
        dma(a, vWO2, sr_, f"s{base}", [], imm=1024)
        vm.add(("w", n), 2)
    def issue_x(n):
        slot = n % D
        if n and n % 4 == 0: a(f"s_add_u32 s{s_x0}, s{s_x0}, 4096")
        a(f"buffer_load_dwordx4 {vr(XD+8*slot,4)}, v{vL16}, s[{SWS}:{SWS+3}], s{s_x0} offen offset:{(n%4)*1024}{SC}",
          f"buffer_load_dwordx4 {vr(XD+8*slot+4,4)}, v{vX2}, s[{SWS}:{SWS+3}], s{s_x0} offen offset:{(n%4)*1024}{SC}")
        vm.add(("x", n), 2)
    a(f"v_lshrrev_b32 v{T0}, 5, v0", f"v_bfe_u32 v{T0+2}, v0, 2, 2", f"v_lshl_add_u32 v{T0}, v{T0}, 2, v{T0+2}", f"v_lshlrev_b32 v{T0}, 7, v{T0}",
      f"v_lshrrev_b32 v{T0+2}, 1, v{T0+2}", f"v_lshl_add_u32 v{T0}, v{T0+2}, 6, v{T0}",
      f"v_lshl_add_u32 v{T0}, v{T0+1}, 5, v{T0}", f"v_and_b32 v{T0+2}, 3, v0", f"v_lshl_add_u32 v{T0}, v{T0+2}, 3, v{T0}",
      f"v_add_u32 v{vWR}, s{s_lw}, v{T0}", f"v_xor_b32 v{vWR+1}, 64, v{vWR}")
    for r in range(4): a(f"v_mov_b32 v{V+12+r}, 0", f"v_mov_b32 v{P+4+r}, 0")
    for t in range(2):
        b = S + 16*t; m = T0 + t
        a(f"v_max3_f32 v{m}, v{b}, v{b+1}, v{b+2}")
        for r in range(3, 15, 2): a(f"v_max3_f32 v{m}, v{m}, v{b+r}, v{b+r+1}")
        a(f"v_max_f32 v{m}, v{m}, v{b+15}")
        a(f"v_mov_b32 v{T0+2}, v{m}", "s_nop 1", f"v_permlane32_swap_b32 v{m}, v{T0+2}", "s_nop 1", f"v_max_f32 v{m}, v{m}, v{T0+2}")
    a(f"v_min_f32 v{T0}, v{T0}, v{T0+1}")
    for r in range(16): a(f"v_sub_f32 v{C+r}, 0, v{T0}")
    a("s_waitcnt lgkmcnt(0)", "s_nop 0")
    a(mfma(S, K, Q, C))
    a(f"s_mul_i32 s60, s{S_W}, 14", "s_add_u32 s61, s60, 13", "s_lshr_b32 s60, s60, 2", "s_lshr_b32 s61, s61, 2",
      f"v_and_b32 v{vFO}, 7, v0", f"v_add_u32 v{vFO}, s60, v{vFO}", f"v_min_u32 v{vFO}, s61, v{vFO}",
      f"v_bfe_u32 v{T0}, v0, 3, 1", f"s_lshl_b32 s60, s{s_r64}, 1", f"v_add_u32 v{T0}, s60, v{T0}",
      f"v_lshl_add_u32 v{vFO}, v{T0}, 5, v{vFO}", f"v_lshlrev_b32 v{vFO}, {FS}, v{vFO}")
    a.stamp("loop")
    HMASK = 0x1f1f
    c0 = OPT["dstart"] + 2
    c = [c0 + (n * (31 - c0)) // (NK - 1) for n in range(NK)]
    assert len(set(c)) == NK and c[-1] <= 31
    done = {}
    xnext = [D]
    dq = []
    first_pv = [True, True]
    def phase(t, vb, smf, mid, pend, wait):
        Sb = S + 16*t; Ob = O + 16*t
        for tok in ORDER.split():
            if tok[0] == 'e': r = int(tok[1:]); a(f"v_exp_f32 v{Sb+r}, v{Sb+r}")
            elif tok[0] == 'c':
                k = int(tok[1:]); a(f"v_cvt_pk_bf16_f32 v{P+k}, v{Sb+2*k}, v{Sb+2*k+1}")
                ready = [d for d in dq if d[0] <= 0]
                if ready and (k == 3 or (k == 6 and len(ready) > OPT["dback"])):
                    d = dq.pop(0); a(d[1])
                    if not any(e[2] == d[2] for e in dq): done[d[2]] = True
            elif tok == 'S':
                if wait: a("s_waitcnt lgkmcnt(0)")
                if smf: a(smf)
            elif tok == 'N':
                if pend: a(pend)
            elif tok == 'P':
                a(mfma(Ob, V+8*vb, P, "0" if first_pv[t] else None)); first_pv[t] = False
            elif tok == 'M': mid()
        for d in dq: d[0] -= 1
        return mfma(Ob, V+8*vb+4, P+4)
    pend = None
    for it in range(32):
        vb = it % 2
        def midA():
            if it % 8 == 7 and it < 31:
                ch = it // 8 + 1
                vw(a, vm, lambda t: t == ('c', ch)); a("s_barrier")
                if ch + 1 < 4:
                    issue_chunk(a, (ch + 1) % 2); vm.add(("c", ch + 1), 4)
            if it < 31: a(*rd(it + 1, 1 - vb))
            if it in c:
                n = c.index(it); slot = n % D; p = n % 2
                assert n < 2 or done.get(n - 2), (n, it)
                vw(a, vm, lambda t: t in (('x', n), ('w', n)))
                for cb in range(2):
                    for t in range(2):
                        a(f"ds_read_b64_tr_b16 {vr(WD+8*p+4*cb+2*t,2)}, v{vWR+cb} offset:{slot*2048+t*1024}")
                for i in range(2):
                    for cb in range(2):
                        dq.append([1, mfma(AD+16*(2*i+cb), WD+8*p+4*cb, XD+8*slot+4*i, "0" if n == 0 else None), n])
        def midB():
            if it == 0:
                for n in range(D): issue_w(n)
            if it == 1:
                L = a.newlabel("NOH")
                a(f"s_waitcnt vmcnt({vm.wait_for(lambda t: t == 'h')})", f"s_cmp_eq_u32 s{s_up}, 0", f"s_cbranch_scc1 {L}")
                set_flag(a, s_fh, T0)
                a.label(L)
            if it == OPT["dstart"] - 1: flag_load(a, vm, WS_FH, vFO, HMASK, vFO+1)
            if it == OPT["dstart"]:
                flag_check(a, vm, WS_FH, vFO, HMASK, vFO+1)
                for n in range(D): issue_x(n)
            if it in c and c.index(it) + D < NK + 4: issue_w(c.index(it) + D)
            if xnext[0] < NK and done.get(xnext[0] - D): issue_x(xnext[0]); xnext[0] += 1
            if it == 20:
                a(f"v_and_b32 v{T0}, 31, v0", f"v_lshlrev_b32 v{T0}, 3, v{T0}",
                  f"s_lshl_b32 s60, s{s_qb}, 3", f"s_lshl_b32 s61, s{s_qw}, 1", "s_add_u32 s60, s60, s61", f"s_add_u32 s60, s60, s{s_kh}",
                  "s_lshl_b32 s60, s60, 8", f"s_add_u32 s60, s60, {WS_GG:#x}",
                  f"s_lshl_b32 s61, s{s_r64}, 1", f"s_add_u32 s61, s61, s{s_i}", "s_lshl_b32 s61, s61, 8", f"s_add_u32 s61, s61, {WS_GG:#x}",
                  f"buffer_load_dwordx2 v[{vG1}:{vG1+1}], v{T0}, s[{SWS}:{SWS+3}], s60 offen sc1",
                  f"buffer_load_dwordx2 v[{vG2}:{vG2+1}], v{T0}, s[{SWS}:{SWS+3}], s61 offen sc1")
                vm.add("g", 2)
        a.stamp(f"it{it}")
        pend = phase(0, vb, mfma(S+16, K, Q+4, C), midA, pend, False)
        pend = phase(1, vb, mfma(S, K, Q, C) if it < 31 else None, midB, pend, True)
    a("s_nop 1", pend)
    for d in dq: a(d[1])
    a.stamp("loopend")
    XO = 32768; XDN = 57344
    Lk1 = a.newlabel("ATT_k1"); Lj = a.newlabel("ATT_j")
    a("s_barrier")
    a(f"s_mul_i32 s60, s{S_W}, 3072", f"v_add_u32 v{vKA}, s60, v{vL16}",
      f"s_xor_b32 s60, s{S_W}, 4", "s_mul_i32 s60, s60, 3072", f"v_add_u32 v{vVB}, s60, v{vL16}", "s_nop 3")
    a(f"s_cmp_eq_u32 s{s_kh}, 1", f"s_cbranch_scc1 {Lk1}")
    for j in range(3): a(f"ds_write_b128 v{vKA}, {vr(O+16+4*j,4)} offset:{XO+1024*j}")
    a(f"s_branch {Lj}")
    a.label(Lk1)
    for j in range(3): a(f"ds_write_b128 v{vKA}, {vr(O+4*j,4)} offset:{XO+1024*j}")
    a("s_nop 1")
    for j in range(9): a(f"v_mov_b32 v{O+j}, v{O+16+j}")
    for j in range(4): a(f"v_mov_b32 v{Q+j}, v{Q+4+j}")
    a.label(Lj)
    a(f"s_lshl_b32 s60, s{s_qb}, 3", f"s_lshl_b32 s61, s{s_qw}, 1", "s_add_u32 s60, s60, s61", f"s_add_u32 s60, s60, s{s_kh}",
      "s_lshl_b32 s60, s60, 5", f"s_add_u32 s60, s60, s{s_head}",
      f"s_lshl_b32 s48, s60, {FS}", f"s_add_u32 s48, s48, {WS_FO:#x}",
      "s_lshl_b32 s49, s60, 10", f"s_add_u32 s49, s49, {WS_OF:#x}")
    Lgok = a.newlabel("GOK"); Lgr = a.newlabel("GRE")
    gw = vm.wait_for(lambda t: t == "g")
    if gw is not None: a(f"s_waitcnt vmcnt({gw})")
    a("s_mov_b32 s62, 0x80000")
    a.label(Lgr)
    a(f"v_cmp_ne_u32 vcc, s{S_TAG}, v{vG1+1}", f"v_cmp_ne_u32 s[60:61], s{S_TAG}, v{vG2+1}", "s_or_b64 vcc, vcc, s[60:61]", f"s_cbranch_scc0 {Lgok}",
      f"v_and_b32 v{T0}, 31, v0", f"v_lshlrev_b32 v{T0}, 3, v{T0}",
      f"s_sub_u32 s60, s49, {WS_OF:#x}", "s_lshr_b32 s60, s60, 15", "s_lshl_b32 s60, s60, 8", f"s_add_u32 s60, s60, {WS_GG:#x}",
      f"s_lshl_b32 s61, s{s_r64}, 1", f"s_add_u32 s61, s61, s{s_i}", "s_lshl_b32 s61, s61, 8", f"s_add_u32 s61, s61, {WS_GG:#x}",
      f"buffer_load_dwordx2 v[{vG1}:{vG1+1}], v{T0}, s[{SWS}:{SWS+3}], s60 offen sc1",
      f"buffer_load_dwordx2 v[{vG2}:{vG2+1}], v{T0}, s[{SWS}:{SWS+3}], s61 offen sc1",
      "s_waitcnt vmcnt(0)", "s_sub_u32 s62, s62, 1", f"s_cbranch_scc0 {Lgr}")
    a.label(Lgok)
    a("s_waitcnt lgkmcnt(0)", "s_barrier")
    for j in range(3): a(f"ds_read_b128 {vr(S+4*j,4)}, v{vVB} offset:{XO+1024*j}")
    a("s_waitcnt lgkmcnt(0)")
    for j in range(9): a(f"v_add_f32 v{O+j}, v{O+j}, v{S+j}")
    Lfb = a.newlabel("ATT_fallback"); Lfin = a.newlabel("ATT_fin")
    a(f"v_max3_f32 v{T0}, |v{O}|, |v{O+1}|, |v{O+2}|", f"v_max3_f32 v{T0}, v{T0}, |v{O+3}|, |v{O+4}|",
      f"v_max3_f32 v{T0}, v{T0}, |v{O+5}|, |v{O+6}|", f"v_max_f32 v{T0}, v{T0}, |v{O+7}|")
    a(f"v_add_f32 v{T0+1}, v{O}, v{O+1}")
    for j in range(2, 8): a(f"v_add_f32 v{T0+1}, v{T0+1}, v{O+j}")
    a("s_mov_b32 s62, 0x5d800000", f"v_cmp_nlt_f32 vcc, v{O+8}, s62",
      "s_mov_b32 s62, 0x7e800000", f"v_cmp_nlt_f32 s[60:61], v{T0}, s62",
      "s_or_b64 vcc, vcc, s[60:61]",
      f"v_cmp_u_f32 s[60:61], v{T0+1}, v{T0+1}",
      "s_or_b64 vcc, vcc, s[60:61]",
      f"s_cbranch_scc1 {Lfb}")
    a.label(Lfin)
    a(f"v_rcp_f32 v{T0}, v{O+8}", "s_nop 0", f"v_mul_f32 v{T0}, v{T0}, v{vG1}")
    for j in range(8): a(f"v_mul_f32 v{O+j}, v{O+j}, v{T0}")
    for j in range(4): a(f"v_cvt_pk_bf16_f32 v{P+j}, v{O+2*j}, v{O+2*j+1}")
    a(f"buffer_store_dwordx4 {vr(P,4)}, v{vL16}, s[{SWS}:{SWS+3}], s49 offen{SC}")
    Li1 = a.newlabel("DX_i1"); Lxj = a.newlabel("DX_j")
    a(f"s_lshl_b32 s60, s{S_W}, 13", f"s_add_u32 s60, s60, {XDN}", f"v_add_u32 v{vKA}, s60, v{vL16}", f"v_xor_b32 v{vVB}, 0x2000, v{vKA}" if XDN % 16384 == 0 else "s_nop 0")
    if XDN % 16384:
        a(f"s_xor_b32 s60, s{S_W}, 1", "s_lshl_b32 s60, s60, 13", f"s_add_u32 s60, s60, {XDN}", f"v_add_u32 v{vVB}, s60, v{vL16}")
    a(f"s_cmp_eq_u32 s{s_i}, 1", f"s_cbranch_scc1 {Li1}")
    for j in range(8): a(f"ds_write_b128 v{vKA}, {vr(AD+32+4*j,4)} offset:{1024*j}")
    a(f"s_branch {Lxj}")
    a.label(Li1)
    for j in range(8): a(f"ds_write_b128 v{vKA}, {vr(AD+4*j,4)} offset:{1024*j}")
    a("s_nop 1")
    for j in range(32): a(f"v_mov_b32 v{AD+j}, v{AD+32+j}")
    a.label(Lxj)
    a("s_waitcnt vmcnt(0)")
    set_flag(a, 48, T0)
    a.stamp("oflag")
    a("s_waitcnt lgkmcnt(0)", "s_barrier")
    for j in range(8): a(f"ds_read_b128 {vr(AD+32+4*j,4)}, v{vVB} offset:{1024*j}")
    WO = 64
    a(f"s_lshl_b32 s60, s{s_i}, 13", f"v_subrev_u32 v{vWR}, s60, v{vWR}", f"v_xor_b32 v{vWR+1}, 64, v{vWR}")
    a(f"v_sub_f32 v{vG2}, 1.0, v{vG2}", f"v_cvt_pk_bf16_f32 v{vG2}, v{vG2}, v{vG2}", f"v_lshlrev_b32 v{vG2}, 16, v{vG2}")
    a("s_waitcnt lgkmcnt(0)")
    for st in range(8):
        for cb in range(2):
            for t in range(2):
                a(f"ds_read_b64_tr_b16 {vr(WO+8*st+4*cb+2*t,2)}, v{vWR+cb} offset:{(st//4)*8192+((NK+st%4)%D)*2048+t*1024}")
        if st % 2 == 1: a("s_waitcnt lgkmcnt(6)")
        for j in range(4*st, 4*st+4):
            a(f"v_add_f32 v{AD+j}, v{AD+j}, v{AD+32+j}", f"v_mul_f32 v{AD+j}, v{AD+j}, v{vG2}")
    XF = 32
    a(f"s_lshl_b32 s60, s{s_r64}, 1", f"s_add_u32 s60, s60, s{s_i}",
      "s_lshl_b32 s61, s60, 5", f"s_lshl_b32 s62, s{s_kq}, 3", "s_add_u32 s61, s61, s62",
      "s_lshl_b32 s50, s61, 10", f"s_add_u32 s50, s50, {WS_OF:#x}", "s_add_u32 s51, s50, 4096",
      f"s_lshl_b32 s52, s61, {FS}", f"s_add_u32 s52, s52, {WS_FO:#x}",
      "s_lshl_b32 s53, s60, 15", f"s_lshl_b32 s62, s{s_c64}, 7", "s_add_u32 s53, s53, s62", f"s_lshl_b32 s62, s{s_kq}, 5", "s_add_u32 s53, s53, s62")
    a(f"v_and_b32 v{T0}, 31, v0", f"v_lshlrev_b32 v{T0}, 10, v{T0}", f"v_lshrrev_b32 v{T0+1}, 5, v0", f"v_lshl_add_u32 v{vVA}, v{T0+1}, 4, v{T0}",
      f"v_lshlrev_b32 v{T0}, {FS}, v0",
      f"s_mul_i32 s60, s{s_i}, {4*3*2048}", f"s_add_u32 s60, s60, {XO}", f"v_add_u32 v{vKA}, s60, v{vL16}",
      f"s_mul_i32 s61, s{s_kq}, {3*2048}", f"v_add_u32 v{vVB}, s61, v{vKA}")
    a("s_waitcnt lgkmcnt(0)", "s_barrier")
    a.stamp("prepoll")
    poll(a, 52, T0, 0xff, T0+1, 62)
    a.stamp("polled")
    for st in range(8):
        a(f"buffer_load_dwordx4 {vr(XF+4*st,4)}, v{vL16}, s[{SWS}:{SWS+3}], s{50 if st<4 else 51} offen offset:{(st%4)*1024}{SC}")
    for st in range(8):
        a(f"s_waitcnt vmcnt({7-st})")
        for cb in range(2): a(mfma(AD+16*cb, WO+8*st+4*cb, XF+4*st))
    a.stamp("outmf")
    a("s_nop 7", "s_nop 1")
    KEEP = 16
    Lj = a.newlabel("OUT_j")
    labs = [a.newlabel("OUT_k") for _ in range(4)]
    for kq in range(1, 4): a(f"s_cmp_eq_u32 s{s_kq}, {kq}", f"s_cbranch_scc1 {labs[kq]}")
    for kq in range(4):
        a.label(labs[kq])
        for q in range(4):
            if q == kq: continue
            rank = kq if kq < q else kq - 1
            for h in range(2):
                a(f"ds_write_b128 v{vKA}, {vr(AD+8*q+4*h,4)} offset:{(q*3+rank)*2048+h*1024}")
        for j in range(8): a(f"v_mov_b32 v{KEEP+j}, v{AD+8*kq+j}")
        if kq < 3: a(f"s_branch {Lj}")
    a.label(Lj)
    a("s_waitcnt lgkmcnt(0)", "s_barrier")
    for r in range(3):
        for h in range(2): a(f"ds_read_b128 {vr(XF+8*r+4*h,4)}, v{vVB} offset:{r*2048+h*1024}")
    for r in range(3):
        a(f"s_waitcnt lgkmcnt({4-2*r})")
        for j in range(8): a(f"v_add_f32 v{KEEP+j}, v{KEEP+j}, v{XF+8*r+j}")
    for j in range(4): a(f"v_cvt_pk_bf16_f32 v{24+j}, v{KEEP+2*j}, v{KEEP+2*j+1}")
    a("s_nop 1", "v_permlane32_swap_b32 v24, v26", "v_permlane32_swap_b32 v25, v27",
      f"buffer_store_dwordx4 v[24:27], v{vVA}, s[{SCd}:{SCd+3}], s53 offen")
    a(f"s_branch {end_label}")
    a.label(Lfb)
    L1 = a.newlabel("ATT_fb1"); L2 = a.newlabel("ATT_fb2")
    a(f"s_lshl_b32 s63, s{s_head}, 17", f"s_add_u32 s63, s63, {WS_KV:#x}")
    a(f"v_mov_b32 v{T0}, 0xff800000", "s_mov_b32 s60, s63", "s_mov_b32 s61, 0")
    a.label(L1)
    a(f"buffer_load_dwordx4 {vr(K,4)}, v{vL16}, s[{SWS}:{SWS+3}], s60 offen{SC}", "s_waitcnt vmcnt(0)",
      mfma(S, K, Q, "0"), "s_nop 7", "s_nop 7")
    for r in range(0, 16, 2): a(f"v_max3_f32 v{T0}, v{T0}, v{S+r}, v{S+r+1}")
    a("s_add_u32 s60, s60, 2048", "s_add_u32 s61, s61, 1", "s_cmp_lt_u32 s61, 64", f"s_cbranch_scc1 {L1}")
    a(f"v_mov_b32 v{T0+2}, v{T0}", "s_nop 1", f"v_permlane32_swap_b32 v{T0}, v{T0+2}", "s_nop 1", f"v_max_f32 v{T0}, v{T0}, v{T0+2}")
    for r in range(16): a(f"v_sub_f32 v{C+r}, 0, v{T0}", f"v_mov_b32 v{O+r}, 0")
    a(f"v_lshrrev_b32 v{T0}, 5, v0", f"v_lshlrev_b32 v{T0}, 8, v{T0}", f"v_and_b32 v{T0+1}, 15, v0",
      f"v_lshl_add_u32 v{vVA}, v{T0+1}, 4, v{T0}")
    a("s_mov_b32 s60, s63", "s_mov_b32 s61, 0")
    a.label(L2)
    a(f"buffer_load_dwordx4 {vr(K,4)}, v{vL16}, s[{SWS}:{SWS+3}], s60 offen{SC}",
      f"s_mov_b64 exec, s[{sEX}:{sEX+1}]",
      f"buffer_load_dwordx4 {vr(V,4)}, v{vVA}, s[{SWS}:{SWS+3}], s60 offen offset:1024{SC}",
      f"buffer_load_dwordx4 {vr(V+4,4)}, v{vVA}, s[{SWS}:{SWS+3}], s60 offen offset:1536{SC}",
      "s_mov_b64 exec, -1", "s_waitcnt vmcnt(0)",
      mfma(S, K, Q, C), "s_nop 7", "s_nop 7")
    for r in range(16): a(f"v_exp_f32 v{S+r}, v{S+r}")
    a("s_nop 0")
    for k in range(8): a(f"v_cvt_pk_bf16_f32 v{P+k}, v{S+2*k}, v{S+2*k+1}")
    a("s_nop 1", mfma(O, V, P), mfma(O, V+4, P+4), "s_nop 7", "s_nop 7")
    a("s_add_u32 s60, s60, 2048", "s_add_u32 s61, s61, 1", "s_cmp_lt_u32 s61, 64", f"s_cbranch_scc1 {L2}")
    a(f"s_branch {Lfin}")

def rot_code():
    m = OPT["rot"]
    if m == 0: return ["s_mov_b32 s3, 0"]
    if OPT["map"] == 1:
        base = ["s_and_b32 s3, s60, 6", "s_and_b32 s63, s60, 1", "s_lshl_b32 s63, s63, 2", "s_add_u32 s3, s3, s63"]
        if m == 2: return base
        if m == 1: return ["s_lshl_b32 s3, s61, 1", f"s_add_u32 s3, s3, s{s_rt}"]
        if m == 4: return base + [f"s_add_u32 s63, s61, s{s_rt}", "s_and_b32 s63, s63, 1", "s_lshl_b32 s63, s63, 2", "s_add_u32 s3, s3, s63"]
        if m == 5: return [f"s_add_u32 s63, s61, s{s_rt}", "s_and_b32 s63, s63, 3", "s_lshl_b32 s3, s63, 1", "s_and_b32 s63, s60, 1", "s_add_u32 s3, s3, s63"]
    if m == 1: return [f"s_lshl_b32 s3, s{s_rt}, 1", "s_add_u32 s3, s3, s61", "s_and_b32 s63, s60, 1", "s_add_u32 s3, s3, s63"]
    base = ["s_lshl_b32 s3, s60, 1", "s_and_b32 s63, s60, 4", "s_add_u32 s3, s3, s63"]
    if m == 2: return base
    if m == 3: return base + [f"s_add_u32 s63, s61, s{s_rt}", "s_and_b32 s63, s63, 1", "s_add_u32 s3, s3, s63"]
    if m == 4: return base + [f"s_add_u32 s63, s61, s{s_rt}", "s_and_b32 s63, s63, 1", "s_lshl_b32 s63, s63, 2", "s_add_u32 s3, s3, s63"]

def build(prof=False, as_list=False):
    a = Asm(); a.prof = prof; a.sb = 76
    a('.amdgcn_target "amdgcn-amd-amdhsa--gfx950"')
    a(".text", f".globl {NAME}", ".p2align 8", f".type {NAME},@function")
    a.label(NAME)
    end = "K_end"
    if prof:
        a.plan = PLAN
        a("s_memrealtime s[100:101]", "s_memtime s[76:77]")
        for i in range(1, 12): a(f"s_mov_b32 s{76+2*i}, 0")
    if OPT["spin"]: a("s_memrealtime s[100:101]")
    a("s_cmp_ge_u32 s2, 256", f"s_cbranch_scc1 {end}_x")
    a("s_load_dwordx16 s[4:19], s[0:1], 0", "s_load_dwordx4 s[20:23], s[0:1], 64", "s_load_dwordx2 s[24:25], s[0:1], 80")
    a("v_lshrrev_b32 v1, 6, v0", "s_and_b32 s60, s2, 7", f"v_readfirstlane_b32 s{S_W}, v1", "v_and_b32 v0, 63, v0", f"v_lshlrev_b32 v{vL16}, 4, v0")
    if OPT["map"] == 0:
        a("s_lshr_b32 s61, s2, 3", f"s_and_b32 s{s_rt}, s60, 3", f"s_lshl_b32 s{s_rt}, s{s_rt}, 2", "s_and_b32 s62, s61, 3", f"s_add_u32 s{s_rt}, s{s_rt}, s62",
          "s_lshr_b32 s61, s61, 2", "s_lshr_b32 s62, s60, 2", f"s_lshl_b32 s{s_ct}, s62, 3", f"s_add_u32 s{s_ct}, s{s_ct}, s61",
          f"s_mul_i32 s{s_ft}, s62, 7", "s_min_u32 s63, s61, 6", f"s_add_u32 s{s_ft}, s{s_ft}, s63",
          "s_cmp_lt_u32 s61, 7", f"s_cselect_b32 s{s_up}, 1, 0")
    else:
        a("s_lshr_b32 s61, s2, 3", f"s_and_b32 s{s_rt}, s60, 1", f"s_lshl_b32 s{s_rt}, s{s_rt}, 3", "s_and_b32 s62, s61, 7", f"s_add_u32 s{s_rt}, s{s_rt}, s62",
          "s_lshr_b32 s61, s61, 3", "s_lshr_b32 s62, s60, 1", f"s_lshl_b32 s{s_ct}, s62, 2", f"s_add_u32 s{s_ct}, s{s_ct}, s61",
          f"s_cmp_ge_u32 s{s_ct}, 11", "s_cselect_b32 s63, 1, 0", f"s_sub_u32 s{s_ft}, s{s_ct}, s63", f"s_min_u32 s{s_ft}, s{s_ft}, 13",
          f"s_and_b32 s63, s{s_ct}, 11", "s_cmp_lg_u32 s63, 11", f"s_cselect_b32 s{s_up}, 1, 0")
    a(*rot_code(),
      f"s_and_b32 s{s_rb}, s{S_W}, 3", f"s_lshr_b32 s{s_hf}, s{S_W}, 2",
      f"s_lshl_b32 s{s_row}, s2, 3", f"s_add_u32 s{s_row}, s{s_row}, s{S_W}",
      f"s_lshl_b32 s{s_fq}, s{s_ct}, 4", f"s_add_u32 s{s_fq}, s{s_fq}, s{s_rt}", f"s_lshl_b32 s{s_fq}, s{s_fq}, {FS}", f"s_add_u32 s{s_fq}, s{s_fq}, {WS_FQ:#x}")
    a(f"s_lshl_b32 s{sX}, s{s_rt}, 17", f"s_lshl_b32 s62, s{s_rb}, 15", f"s_add_u32 s{sX}, s{sX}, s62",
      f"s_mul_i32 s{sWq}, s{s_rb}, {16*3072}", f"s_mul_i32 s62, s{s_ct}, 192", f"s_add_u32 s{sWq}, s{sWq}, s62",
      f"s_mul_i32 s{sGU}, s{S_W}, {8*3584}", f"s_lshl_b32 s62, s{s_ft}, 8", f"s_add_u32 s{sGU}, s{sGU}, s62",
      f"s_lshl_b32 s{sLx}, s{s_rb}, 12", f"s_mul_i32 s{sLw}, s{s_rb}, 3072", f"s_lshl_b32 s{sLg}, s{S_W}, 11")
    a(f"s_lshl_b32 s{s_head}, s60, 2", "s_bfe_u32 s62, s2, 0x20003", f"s_add_u32 s{s_head}, s{s_head}, s62", f"s_lshr_b32 s{s_qb}, s2, 5",
      f"s_lshl_b32 s{s_q}, s{s_head}, 6", f"s_lshl_b32 s62, s{s_qb}, 3", f"s_add_u32 s{s_q}, s{s_q}, s62",
      f"s_lshl_b32 s62, s{s_rb}, 1", f"s_add_u32 s{s_q}, s{s_q}, s62", f"s_lshl_b32 s{s_q}, s{s_q}, 10",
      f"s_lshl_b32 s{s_src}, s{s_head}, 17", f"s_add_u32 s{s_src}, s{s_src}, {WS_KV:#x}", f"s_lshl_b32 s62, s{s_hf}, 16", f"s_add_u32 s{s_src}, s{s_src}, s62",
      f"s_lshl_b32 s62, s{s_rb}, 11", f"s_add_u32 s{s_src}, s{s_src}, s62",
      f"s_mul_i32 s{s_lkv}, s{s_hf}, {8*TS}", f"s_mul_i32 s62, s{s_rb}, {TS}", f"s_add_u32 s{s_lkv}, s{s_lkv}, s62", f"s_add_u32 s{s_lkv}, s{s_lkv}, {AB}")
    a("v_lshrrev_b32 v30, 3, v0", "v_and_b32 v31, 7, v0", "v_bfe_u32 v32, v0, 4, 2", "v_xor_b32 v32, v32, v31",
      "v_lshlrev_b32 v30, 10, v30", "v_lshl_add_u32 v11, v32, 4, v30", "v_xor_b32 v12, 64, v11")
    for i in range(3):
        a(f"v_add_u32 v30, {64*i}, v0", "v_mul_u32_u24 v31, 5462, v30", "v_lshrrev_b32 v31, 16, v31",
          "v_mul_u32_u24 v32, 12, v31", "v_sub_u32 v32, v30, v32", "v_mul_u32_u24 v31, 3072, v31", f"v_lshl_add_u32 v{13+i}, v32, 4, v31")
    a("v_lshrrev_b32 v30, 4, v0", "v_and_b32 v31, 15, v0", "v_lshlrev_b32 v32, 1, v30", "v_xor_b32 v31, v31, v32",
      "v_mul_u32_u24 v30, 3584, v30", "v_lshl_add_u32 v28, v31, 4, v30", "v_xor_b32 v31, 8, v31", "v_lshl_add_u32 v29, v31, 4, v30")
    a("s_waitcnt lgkmcnt(0)")
    srd(a, SA, S_X, 2048*1024); srd(a, SBd, S_WQKV, 512*3072)
    srd(a, SWS, S_WS, WS_SIZE); srd(a, SCd, S_WG, 512*3584); srd(a, SD, S_WU, 512*3584)
    if OPT["spin"] and OPT["dbg"] == 7:
        srd(a, 72, S_DBG, 256)
        a("s_not_b32 s60, s100", "v_mov_b32 v30, s60", "v_mov_b32 v31, 8", "s_mov_b64 exec, 1",
          "buffer_atomic_umax v30, v31, s[72:75], 0 offen", "s_mov_b64 exec, -1", "s_waitcnt vmcnt(0)")
    L = {k: a.newlabel("CLS") for k in ("10", "11", "01")}
    L_attn = "ATTN"
    a(f"s_cmp_eq_u32 s{s_hf}, 0", f"s_cbranch_scc1 CLS0")
    a(f"s_cmp_ge_u32 s{s_ct}, 10", f"s_cbranch_scc1 {L['11']}")
    gemm_phase(a, 1, False, L_attn)
    a.label(L['11']); gemm_phase(a, 1, True, L_attn)
    a.label("CLS0")
    a(f"s_cmp_ge_u32 s{s_ct}, 11", f"s_cbranch_scc1 {L['01']}")
    gemm_phase(a, 0, False, L_attn)
    a.label(L['01']); gemm_phase(a, 0, True, L_attn)
    a(".p2align 6")
    a.label(L_attn)
    attention_phase(a, end)
    a.label(end)
    if OPT["spin"]:
        if OPT["dbg"] == 7:
            srd(a, 72, S_DBG, 256)
            a("v_mov_b32 v31, 8", "buffer_load_dword v30, v31, s[72:75], 0 offen sc1", "s_waitcnt vmcnt(0)", "v_readfirstlane_b32 s100, v30", "s_nop 3", "s_not_b32 s100, s100")
        a.label("SPIN")
        a("s_memrealtime s[36:37]", "s_waitcnt lgkmcnt(0)", "s_sub_u32 s36, s36, s100", f"s_cmp_lt_u32 s36, {OPT['spin']}", "s_cbranch_scc1 SPIN")
    if prof:
        a("s_waitcnt vmcnt(0) lgkmcnt(0)", "s_memrealtime s[36:37]", "s_memtime s[38:39]",
          "s_getreg_b32 s40, hwreg(HW_REG_XCC_ID)",
          "s_mov_b32 s32, s24", "s_and_b32 s33, s25, 0xffff", "s_mov_b32 s34, 0x2000000", "s_mov_b32 s35, 0x00020000",
          "s_lshl_b32 s41, s2, 3", f"s_add_u32 s41, s41, s{S_W}", "s_lshl_b32 s41, s41, 6",
          f"s_add_u32 s41, s41, {WS_PROF:#x}",
          "s_waitcnt lgkmcnt(0)", "s_sub_u32 s38, s38, s76",
          "v_mov_b32 v4, s100", "v_mov_b32 v5, s36", "v_mov_b32 v6, s38", "v_mov_b32 v7, s40", "v_mov_b32 v8, 0",
          "s_mov_b64 exec, 1",
          "buffer_store_dwordx4 v[4:7], v8, s[32:35], s41 offen")
        for i in range(1, 12): a(f"s_sub_u32 s{76+2*i}, s{76+2*i}, s76", f"v_mov_b32 v{11+i}, s{76+2*i}")
        a("v_mov_b32 v23, 0")
        for q in range(3): a(f"buffer_store_dwordx4 v[{12+4*q}:{15+4*q}], v8, s[32:35], s41 offen offset:{16+16*q}")
    a.label(end + "_x")
    a("s_endpgm")
    desc = f""".section .rodata,"a"
.p2align 6
.amdhsa_kernel {NAME}
  .amdhsa_next_free_vgpr 256
  .amdhsa_next_free_sgpr 102
  .amdhsa_accum_offset 256
  .amdhsa_group_segment_fixed_size 0
  .amdhsa_kernarg_size 88
  .amdhsa_user_sgpr_count 2
  .amdhsa_user_sgpr_kernarg_segment_ptr 1
  .amdhsa_system_sgpr_workgroup_id_x 1
.end_amdhsa_kernel
"""
    k = f"kernel={NAME} " if as_list else ""
    return HEADER + f"; @launch {k}grid=(256,1,1) block=(512,1,1) lds={LDS_BYTES}\n" + a.text() + desc

if __name__ == "__main__":
    out = sys.argv[1]
    for x in sys.argv[2:]:
        if x.startswith("plan="): PLAN[:] = x[5:].split(",")
        elif "=" in x:
            k, v = x.split("="); OPT[k] = int(v)
    open(out, "w").write(build(prof="--prof" in sys.argv, as_list="--list" in sys.argv))
```

```python
import sys
from asmlib import *

NAME = "gated_mix__softmax_full_mha__glu_gated_bilinear__prompt_kernel"
HEADER = open("gated_mix__softmax_full_mha__glu_gated_bilinear__prompt.s.ref").read().split("; Override launch")[0]

WS_QF = 0x000000
WS_KV = 0x200000
WS_OF = 0x600000
WS_HF = 0x800000
WS_GG = 0xF00000
WS_EP = 0xF04000
WS_FQ = 0xF10000
WS_FO = 0xF30000
WS_FH = 0xF70000
WS_SIZE = 0xFB0000
FS = 7
WS_PROF = 0x1800000
QSCALE = 0x3EB8AA3B
LOG2E = 0x3FB8AA3B
LDS_BYTES = 163840

S_X, S_WQKV, S_WO, S_WG, S_WU, S_WD, S_GW, S_OUT, S_DBG, S_WS = 4, 6, 8, 12, 14, 16, 18, 20, 22, 24
S_TAG, S_W = 26, 27
SWS, SA, SBd, SCd, SD = 28, 32, 36, 40, 44
SC = " sc1"
SEQ = ['QGQQQGQQQQGGGGGG']
OPT = dict(nt=0, early=0, rq=2, rg=8, st2=1, gload=0, qpo=3, qfirst=1, kvs=58, wstart=1, hpub=2, bal=2, dend=28, spin=0, gpf=3, map=0, tlb=0, glate=0, dq=2, dg=2, dswitch=7, qpub=10, rot=2, dbg=0, sleep=2, dstart=6, dback=2)

def srd(a, d, p, nbytes):
    a(f"s_mov_b32 s{d}, s{p}", f"s_and_b32 s{d+1}, s{p+1}, 0xffff",
      f"s_mov_b32 s{d+2}, {hex(nbytes)}", f"s_mov_b32 s{d+3}, 0x00020000")

def dma(a, voff, srd_, soff, pre, imm=0, flags=""):
    for l in pre: a(l)
    o = f" offset:{imm}" if imm else ""
    a(f"buffer_load_dwordx4 v{voff}, s[{srd_}:{srd_+3}], {soff} offen{o}{flags} lds")

def poll(a, s_base, voff, mask, vt, st, staged=True):
    a(f"s_mov_b32 s{st}, 0x80000")
    for stage in range(0 if staged else 1, 2):
        L = a.newlabel("POLL"); Ld = a.newlabel("POLLD")
        if stage == 0: a("s_mov_b64 exec, 1")
        elif mask == (1 << 64) - 1: a("s_mov_b64 exec, -1")
        else: a(f"s_mov_b32 exec_lo, {mask & 0xffffffff:#x}", f"s_mov_b32 exec_hi, {mask >> 32:#x}")
        a.label(L)
        a(f"buffer_load_dword v{vt}, v{voff}, s[{SWS}:{SWS+3}], s{s_base} offen sc1",
          "s_waitcnt vmcnt(0)",
          f"v_cmp_ne_u32 vcc, s{S_TAG}, v{vt}",
          f"s_cbranch_vccz {Ld}",
          "s_mov_b64 exec, vcc",
          f"s_sleep {OPT['sleep']}",
          f"s_sub_u32 s{st}, s{st}, 1",
          f"s_cbranch_scc0 {L}")
        a.label(Ld)
    a("s_mov_b64 exec, -1")

def set_flag(a, s_off, vt):
    a(f"v_mov_b32 v{vt}, 0", f"v_mov_b32 v{vt+1}, s{S_TAG}", "s_mov_b64 exec, 1",
      f"buffer_store_dword v{vt+1}, v{vt}, s[{SWS}:{SWS+3}], s{s_off} offen sc1", "s_mov_b64 exec, -1")

PLAN = ["issued", "qkv", "up", "loop", "loopend", "oflag", "prepoll", "polled", "outmf"]
class VM:
    def __init__(self): self.q = []
    def add(self, tag, n=1): self.q += [tag] * n
    def wait_for(self, pred):
        idx = [i for i, t in enumerate(self.q) if pred(t)]
        if not idx: return None
        n = len(self.q) - 1 - idx[-1]
        self.q = self.q[idx[-1]+1:]
        return n

def vw(a, vm, pred, extra=""):
    n = vm.wait_for(pred)
    if n is not None: a(f"s_waitcnt vmcnt({n}){extra}")
    elif extra: a(f"s_waitcnt{extra}")

SLOT = 32768
TS = 2080; CS = 16*TS; AB = 32768
ORDER = "e0 e1 N e2 e3 c0 e4 e5 c1 S M e6 e7 c2 e8 e9 c3 e10 e11 c4 e12 P e13 c5 e14 e15 c6 c7"

s_rt, s_ct, s_ft, s_rb, s_hf, s_up = 48, 49, 50, 51, 52, 53
sX, sWq, sGU, sLx, sLw, sLg = 54, 55, 56, 57, 58, 59
T1, T2, T3, T4 = 60, 61, 62, 63
s_head, s_qb, s_src, s_lkv, s_q = 64, 65, 66, 67, 68
s_row, s_fq, sGo = 69, 70, 71
sQx, sQw, s_of = 15, 19, 18
sEX = 0
s_r64, s_c64, s_x0, s_wd, s_wo, s_lw, s_fh, s_i, s_kq = 4, 5, 6, 7, 10, 11, 12, 13, 14
s_qw, s_kh = s_rb, s_hf
WF, ACC, ACCQ, XR, STG = 32, 64, 128, 160, 240
NXR = 6
Q, K, S, O, WD, V, P, T0, C = 16, 24, 128, 160, 192, 208, 224, 232, 240
AD, XD = 64, 32
vL16, vKA, vVA, vVB, vWR, vWO, vWO2, vX2, vFO = 1, 2, 3, 4, 5, 11, 12, 13, 14
vX1, vXS, vXR = 7, 8, 9
vG1, vG2 = 28, 30
D = 4; NK = 14
HMASK = 0x1f1f

def late_scalars(a):
    a("s_and_b32 s60, s2, 7", "s_lshr_b32 s61, s2, 3", f"s_lshl_b32 s{s_r64}, s60, 2", "s_and_b32 s60, s61, 3", f"s_add_u32 s{s_r64}, s{s_r64}, s60",
      f"s_lshr_b32 s{s_c64}, s61, 2", f"s_mov_b32 s{sEX}, 0xffff", f"s_mov_b32 s{sEX+1}, 0xffff",
      f"s_and_b32 s{s_i}, s{S_W}, 1", f"s_lshr_b32 s{s_kq}, s{S_W}, 1")
    a(f"s_mul_i32 s60, s{s_r64}, 224", f"s_mul_i32 s61, s{S_W}, {NK}", "s_add_u32 s60, s60, s61",
      f"s_lshl_b32 s{s_x0}, s60, 10", f"s_add_u32 s{s_x0}, s{s_x0}, {WS_HF:#x}",
      f"s_lshl_b32 s{s_wd}, s61, 14", f"s_lshl_b32 s60, s{s_c64}, 7", f"s_add_u32 s{s_wd}, s{s_wd}, s60",
      f"s_lshl_b32 s{s_wo}, s{S_W}, 16", f"s_add_u32 s{s_wo}, s{s_wo}, s60",
      f"s_lshl_b32 s{s_lw}, s{s_qw}, 13", f"s_lshl_b32 s60, s{s_kh}, 17", f"s_add_u32 s{s_lw}, s{s_lw}, s60")
    a(f"s_lshl_b32 s60, s{s_rt}, 2", f"s_add_u32 s60, s60, s{s_rb}", "s_lshl_b32 s60, s60, 5", f"s_lshl_b32 s61, s{s_ft}, 1", "s_add_u32 s60, s60, s61",
      f"s_add_u32 s60, s60, s{s_hf}", f"s_lshl_b32 s60, s60, {FS}", f"s_add_u32 s{s_fh}, s60, {WS_FH:#x}")

    a(f"s_lshl_b32 s60, s{s_qb}, 3", f"s_lshl_b32 s61, s{s_qw}, 1", "s_add_u32 s60, s60, s61", f"s_add_u32 s60, s60, s{s_kh}",
      "s_lshl_b32 s60, s60, 5", f"s_add_u32 s60, s60, s{s_head}", f"s_lshl_b32 s{s_of}, s60, 10", f"s_add_u32 s{s_of}, s{s_of}, {WS_OF:#x}")

def attn_addr_setup(a):
    srd(a, SA, S_WD, 1792*1024); srd(a, SBd, S_WO, 512*1024)
    a(f"s_mul_i32 s60, s{s_kh}, {8*TS}", f"s_add_u32 s60, s60, {AB}", f"v_add_u32 v{vKA}, s60, v{vL16}",
      f"v_lshrrev_b32 v{T0+4}, 5, v0", f"v_lshlrev_b32 v{T0}, 8, v{T0+4}", f"v_and_b32 v{T0+1}, 15, v0", f"v_lshl_add_u32 v{T0}, v{T0+1}, 4, v{T0}",
      f"v_and_b32 v{T0+1}, 11, v0", f"v_cmp_eq_u32 vcc, 0, v{T0+1}", f"v_mov_b32 v{T0+2}, 16", "s_nop 0",
      f"v_cndmask_b32 v{T0+2}, v{T0+2}, 0, vcc",
      f"v_add_u32 v{T0+3}, 1024, v{T0+2}", f"v_add_u32 v{T0+2}, 512, v{T0+2}",
      f"v_cndmask_b32 v{vVA}, v{T0+3}, v{T0}, s[{sEX}:{sEX+1}]", f"v_cndmask_b32 v{vVB}, v{T0+2}, v{T0}, s[{sEX}:{sEX+1}]",
      f"v_add_u32 v{vVA}, s60, v{vVA}", f"v_add_u32 v{vVB}, s60, v{vVB}")
    a(f"v_lshrrev_b32 v{T0}, 3, v0", f"v_lshlrev_b32 v{T0}, 10, v{T0}", f"v_bfe_u32 v{T0+1}, v0, 4, 1", f"v_lshlrev_b32 v{T0+2}, 2, v{T0+1}",
      f"v_and_b32 v{T0+3}, 7, v0", f"v_xor_b32 v{T0+2}, v{T0+2}, v{T0+3}", f"v_lshl_add_u32 v{vWO}, v{T0+2}, 4, v{T0}",
      f"v_add_u32 v{vWO2}, {8192-1024}, v{vWO}", f"s_mul_i32 s60, s{s_i}, {112*1024}", f"v_add_u32 v{vX2}, s60, v{vL16}")
    a(f"v_bfe_u32 v{T0+2}, v0, 2, 2", f"v_lshl_add_u32 v{T0}, v{T0+4}, 2, v{T0+2}", f"v_lshlrev_b32 v{T0}, 7, v{T0}",
      f"v_lshrrev_b32 v{T0+2}, 1, v{T0+2}", f"v_lshl_add_u32 v{T0}, v{T0+2}, 6, v{T0}",
      f"v_lshl_add_u32 v{T0}, v{T0+1}, 5, v{T0}", f"v_and_b32 v{T0+2}, 3, v0", f"v_lshl_add_u32 v{T0}, v{T0+2}, 3, v{T0}",
      f"s_lshl_b32 s60, s{s_kq}, 5", f"v_xor_b32 v{T0}, s60, v{T0}",
      f"v_add_u32 v{vWR}, s{s_lw}, v{T0}", f"v_xor_b32 v{vWR+1}, 64, v{vWR}")
    a(f"s_mul_i32 s60, s{S_W}, 14", "s_add_u32 s61, s60, 13", "s_lshr_b32 s60, s60, 2", "s_lshr_b32 s61, s61, 2",
      f"v_and_b32 v{vFO}, 7, v0", f"v_add_u32 v{vFO}, s60, v{vFO}", f"v_min_u32 v{vFO}, s61, v{vFO}",
      f"v_bfe_u32 v{T0}, v0, 3, 1", f"s_lshl_b32 s60, s{s_r64}, 1", f"v_add_u32 v{T0}, s60, v{T0}",
      f"v_lshl_add_u32 v{vFO}, v{T0}, 5, v{vFO}", f"v_lshlrev_b32 v{vFO}, {FS}, v{vFO}")

def ones_init(a):
    a(f"v_and_b32 v{T0}, 31, v0", f"v_mul_u32_u24 v{T0}, {TS}, v{T0}", f"v_lshrrev_b32 v{T0+1}, 5, v0", f"v_lshl_add_u32 v{T0}, v{T0+1}, 4, v{T0}",
      f"v_cmp_eq_u32 vcc, 0, v{T0+1}", f"v_mov_b32 v{T0+4}, 0x3f803f80", "s_nop 0", f"v_cndmask_b32 v{T0+4}, 0, v{T0+4}, vcc",
      f"v_mov_b32 v{T0+5}, v{T0+4}", f"v_mov_b32 v{T0+6}, v{T0+4}", f"v_mov_b32 v{T0+7}, v{T0+4}",
      f"ds_write_b128 v{T0}, {vr(T0+4,4)} offset:{AB+2048}")

def rd(it, vbuf):
    off = ((it // 8) % 2) * CS + (it % 8) * TS
    return [f"ds_read_b128 {vr(K,4)}, v{vKA} offset:{off}",
            f"ds_read_b128 {vr(V+8*vbuf,4)}, v{vVA} offset:{off+1024}",
            f"ds_read_b128 {vr(V+8*vbuf+4,4)}, v{vVB} offset:{off+1536}"]

def standin(a, part):
    if part == 0:
        a(f"ds_read_b128 {vr(P,4)}, v{vL16} offset:{AB}", *rd(0, 0))
    elif part == 1:
        a(mfma(S, P, Q, "0"), mfma(S+16, P, Q+4, "0"))
    else:
        for t in range(2):
            b = S + 16*t; m = T0 + t
            a(f"v_max3_f32 v{m}, v{b}, v{b+1}, v{b+2}")
            for r in range(3, 15, 2): a(f"v_max3_f32 v{m}, v{m}, v{b+r}, v{b+r+1}")
            a(f"v_max_f32 v{m}, v{m}, v{b+15}")
            a(f"v_mov_b32 v{T0+2}, v{m}", "s_nop 1", f"v_permlane32_swap_b32 v{m}, v{T0+2}", "s_nop 1", f"v_max_f32 v{m}, v{m}, v{T0+2}")
        a(f"v_min_f32 v{T0}, v{T0}, v{T0+1}")
        for r in range(16): a(f"v_sub_f32 v{C+r}, 0, v{T0}")
        a("s_nop 1", mfma(S, K, Q, C))

def unit_groups(a, vm, hf, n, u):
    vXO, vWQ, vGO, vUO = 11, 13, 28, 29
    slot = (n % 5) * SLOT
    typ, k = u
    G = []
    def mk(voff, sr_, pre):
        def f():
            dma(a, voff, sr_, f"s{T1}", pre, flags=" nt" if (OPT["nt"] >> (0 if sr_ == SA else 1 if sr_ == SBd else 2)) & 1 else "")
            if vm: vm.add(("u", n))
        return f
    if typ == "Q":
        pre0 = [f"s_add_u32 s{sQw}, s3, {k}", f"s_and_b32 s{sQw}, s{sQw}, 7", f"s_lshl_b32 s{sQx}, s{sQw}, 7", f"s_add_u32 s{sQx}, s{sQx}, s{sX}",
                f"s_mul_i32 s{sQw}, s{sQw}, {64*3072}"]
        for jj in range(2):
            G.append(mk(vXO + jj, SA, (pre0 if jj == 0 else []) + [f"s_add_u32 m0, s{sLx}, {slot + jj*1024}", f"s_add_u32 s{T1}, s{sQx}, {jj*8192}"]))
        for i in ((0,) if hf == 0 else (1, 2)):
            G.append(mk(vWQ + i, SBd, [f"s_add_u32 m0, s{sLw}, {slot + 16384 + i*1024}", f"s_add_u32 s{T1}, s{sWq}, s{sQw}"]))
    else:
        pre0 = [f"s_add_u32 s{sGo}, s3, {k}", f"s_and_b32 s{sGo}, s{sGo}, 7", f"s_mul_i32 s{sGo}, s{sGo}, {64*3584}", f"s_add_u32 s{sGo}, s{sGo}, s{sGU}"]
        for h in range((4 if hf == 1 else 0) if OPT["gload"] else 2):
            G.append(mk(vGO, SCd, (pre0 if h == 0 else []) + [f"s_add_u32 m0, s{sLg}, {slot + h*1024}", f"s_add_u32 s{T1}, s{sGo}, {h*4*3584}"]))
            G.append(mk(vUO, SD, [f"s_add_u32 m0, s{sLg}, {slot + 16384 + h*1024}", f"s_add_u32 s{T1}, s{sGo}, {h*4*3584}"]))
    return G

def parse_seq(txt):
    seq = []; c = {"Q": 0, "G": 0}
    for ch in txt: seq.append((ch, c[ch])); c[ch] += 1
    return seq

def gemm_phase(a, hf, swap, up, L_attn):
    seq = parse_seq(SEQ[0] if up else "Q"*8)
    N = len(seq)
    vm = VM()
    vm.add(("u", 0), 3 + hf)
    vXA, vWA, vGA = 2, 6, 7
    vT = 24
    nb = 2 if hf == 0 else 1
    b0 = 0 if hf == 0 else 2
    lastQ = max(i for i, u in enumerate(seq) if u[0] == "Q")
    if up:
        for k in range(NXR, 8): assert seq.index(("G", k-NXR)) < seq.index(("Q", k))
        for k in range(8): assert seq.index(("Q", k)) < seq.index(("G", k))
        assert seq.index(("G", 4)) < N-2 and seq.index(("G", 5)) < N-1
    dist = OPT["dq"]
    fifo = [(n, f) for n in range(1, N) for f in unit_groups(a, vm, hf, n, seq[n])]
    def pump(n, cnt, upto=None):
        while fifo and fifo[0][0] <= n + 4 and (cnt > 0 or (upto is not None and fifo[0][0] <= upto)):
            fifo.pop(0)[1](); cnt -= 1
    pump(-1, 0, dist - 1)
    a.stamp("issued")
    a(f"v_mov_b32 v{vT}, 0", f"s_mov_b32 s{T1}, {WS_EP:#x}",
      f"buffer_load_dword v{vT+1}, v{vT}, s[{SWS}:{SWS+3}], s{T1} offen sc1")
    vm.add("E")
    a(f"s_lshl_b32 s{T1}, s{s_row}, 10",
      f"buffer_load_dwordx4 v[16:19], v{vL16}, s[72:75], 0 offen",
      f"buffer_load_dwordx4 v[20:23], v{vL16}, s[{SA}:{SA+3}], s{T1} offen")
    vm.add("G", 2)
    late_scalars(a)
    a("v_and_b32 v30, 31, v0", "v_lshrrev_b32 v31, 5, v0", "v_bfe_u32 v32, v0, 1, 3", "v_xor_b32 v32, v32, v31",
      f"s_lshl_b32 s{T1}, s{s_rb}, 12", "v_lshlrev_b32 v33, 7, v30", f"v_add_u32 v33, s{T1}, v33")
    for s in range(4): a(f"v_xor_b32 v34, {2*s}, v32", f"v_lshl_add_u32 v{vXA+s}, v34, 4, v33")
    a("v_bfe_u32 v32, v0, 2, 2", "v_lshl_add_u32 v33, v31, 3, v32", "v_mul_u32_u24 v34, 192, v33",
      "v_bfe_u32 v35, v0, 4, 1", "v_lshl_add_u32 v34, v35, 5, v34", "v_and_b32 v36, 3, v0", "v_lshl_add_u32 v34, v36, 3, v34",
      f"v_add_u32 v{vWA}, {16384 + b0*64}, v34")
    a("v_lshlrev_b32 v33, 8, v33", "v_lshl_add_u32 v33, v35, 14, v33", "v_lshl_add_u32 v33, v36, 3, v33", "v_bfe_u32 v32, v0, 2, 3")
    for f in range(4): a(f"v_xor_b32 v34, {4*hf+f}, v32", f"v_lshl_add_u32 v{vGA+f}, v34, 5, v33")
    cur = {"Q": 0, "G": 0}
    def rebase(n):
        typ = seq[n][0]; slot = n % 5
        if not (cur[typ] <= slot <= cur[typ] + 1):
            d = ((slot - cur[typ]) * SLOT) & 0xffffffff
            for r in (list(range(vXA, vXA+4)) + [vWA] if typ == "Q" else range(vGA, vGA+4)): a(f"v_add_u32 v{r}, {d:#x}, v{r}")
            cur[typ] = slot
        return (slot - cur[typ]) * SLOT
    def xreg(k, s): return XR + 16*(k % NXR) + 4*s
    def reads(n, s, off):
        typ, k = seq[n]; p = s % 2; R = []
        if typ == "Q":
            R.append(f"ds_read_b128 {vr(xreg(k,s),4)}, v{vXA+s} offset:{off}")
            for b in range(nb):
                for t in range(2):
                    R.append(f"ds_read_b64_tr_b16 {vr(WF+8*s+4*b+2*t,2)}, v{vWA} offset:{off+(16*s+4*t)*192+b*64}")
        else:
            for f in range(4):
                for t in range(2):
                    R.append(f"ds_read_b64_tr_b16 {vr(WF+16*p+4*f+2*t,2)}, v{vGA+f} offset:{off+(16*s+4*t)*256}")
        return R
    def mf(n, s):
        typ, k = seq[n]; p = s % 2; x = xreg(k, s); c = "0" if (k == 0 and s == 0) else None
        if typ == "Q":
            return [mfma(ACCQ+16*b, x, WF+8*s+4*b, c) if swap else mfma(ACCQ+16*b, WF+8*s+4*b, x, c) for b in range(nb)]
        return [mfma(ACC+16*f, WF+16*p+4*f, x, c) for f in range(4)]
    def qkv_epilogue():
        ST = []
        def mk(line):
            def f(): a(line); vm.add("Q")
            return f
        for b in range(nb):
            o1, o2 = 72 + 2*b, 73 + 2*b
            a(f"s_mul_i32 s{T1}, s{s_ct}, 3", f"s_add_u32 s{T1}, s{T1}, {b0+b}", f"s_and_b32 s{T2}, s{T1}, 15", f"s_lshl_b32 s{T2}, s{T2}, 7",
              f"s_lshl_b32 s{T3}, s{s_rt}, 2", f"s_add_u32 s{T3}, s{T3}, s{s_rb}", f"s_add_u32 s{T2}, s{T2}, s{T3}")
            A = ACCQ + 16*b; Dd = A
            if not swap:
                a(f"s_lshl_b32 s{T3}, s{T2}, 10", f"s_lshl_b32 s{T2}, s{T2}, 11", f"s_add_u32 s{T2}, s{T2}, {WS_KV:#x}",
                  f"s_cmp_lt_u32 s{T1}, 16", f"s_cselect_b32 s{o1}, s{T3}, s{T2}",
                  f"s_cselect_b32 s{T3}, 1, 2", f"s_cselect_b32 s{T4}, {QSCALE:#x}, 1.0",
                  f"s_lshl_b32 s{T3}, s{T3}, 16", f"s_add_u32 s{o2}, s{T3}, s{o1}")
                for r in range(16): a(f"v_mul_f32 v{A+r}, s{T4}, v{A+r}")
                va = vL16
            else:
                a(f"s_lshl_b32 s{T2}, s{T2}, 11", f"s_add_u32 s{o1}, s{T2}, {WS_KV+1024:#x}", f"s_add_u32 s{o2}, s{o1}, 512")
                if b == 0:
                    a("v_bfe_u32 v30, v0, 4, 1", "v_lshlrev_b32 v30, 17, v30", "v_lshrrev_b32 v31, 5, v0", "v_lshl_add_u32 v30, v31, 8, v30",
                      "v_and_b32 v31, 15, v0", "v_lshl_add_u32 v15, v31, 4, v30")
                va = 15
            for j in range(8): a(f"v_cvt_pk_bf16_f32 v{Dd+j}, v{A+2*j}, v{A+2*j+1}")
            ST.append(mk(f"buffer_store_dwordx4 {vr(Dd,4)}, v{va}, s[{SWS}:{SWS+3}], s{o1} offen{SC}"))
            ST.append(mk(f"buffer_store_dwordx4 {vr(Dd+4,4)}, v{va}, s[{SWS}:{SWS+3}], s{o2} offen{SC}"))
        return ST
    def gate_compute():
        acc = vT + 2
        a(f"s_mov_b32 s{T4}, 0xffff0000")
        for j in range(4):
            a(f"v_lshlrev_b32 v30, 16, v{16+j}", f"v_and_b32 v{16+j}, s{T4}, v{16+j}",
              f"v_lshlrev_b32 v31, 16, v{20+j}", f"v_and_b32 v{20+j}, s{T4}, v{20+j}",
              "v_mul_f32 v30, v30, v31", f"v_mul_f32 v31, v{16+j}, v{20+j}",
              "v_cvt_pk_bf16_f32 v30, v30, v31", f"v_and_b32 v31, s{T4}, v30", "v_lshlrev_b32 v30, 16, v30")
            if j == 0: a(f"v_add_f32 v{acc}, v30, v31")
            else: a(f"v_add_f32 v{acc}, v{acc}, v30", f"v_add_f32 v{acc}, v{acc}, v31")
        for sh in (8, 4, 2, 1):
            a("s_nop 1", f"v_add_f32_dpp v{acc}, v{acc}, v{acc} row_ror:{sh} row_mask:0xf bank_mask:0xf")
        a("s_nop 1")
        for q in range(4): a(f"v_readlane_b32 s{T1+q}, v{acc}, {16*q}")
        a("s_nop 1", f"v_mov_b32 v{acc}, s{T1}", f"v_add_f32 v{acc}, s{T2}, v{acc}", f"v_add_f32 v{acc}, s{T3}, v{acc}", f"v_add_f32 v{acc}, s{T4}, v{acc}")
        a(f"v_cvt_pk_bf16_f32 v{acc}, v{acc}, v{acc}", f"v_lshlrev_b32 v{acc}, 16, v{acc}",
          f"v_mul_f32 v{acc}, {(LOG2E | 0x80000000):#x}, v{acc}", f"v_exp_f32 v{acc}, v{acc}", "s_nop 0",
          f"v_add_f32 v{acc}, 1.0, v{acc}", f"v_rcp_f32 v{acc}, v{acc}", "s_nop 0",
          f"v_cvt_pk_bf16_f32 v{acc}, v{acc}, v{acc}", f"v_lshlrev_b32 v{acc}, 16, v{acc}")
    def tag_finish_and_gate_store():
        acc = vT + 2
        a(f"v_readfirstlane_b32 s{S_TAG}, v{vT+1}", f"v_readfirstlane_b32 s{T1}, v16", "s_nop 3",
          f"s_mul_i32 s{S_TAG}, s{S_TAG}, 1664525", f"s_add_u32 s{S_TAG}, s{S_TAG}, 1013904223", f"s_or_b32 s{S_TAG}, s{S_TAG}, 1",
          f"s_cmp_lg_u32 s{T1}, 0", f"s_cselect_b32 s{S_TAG}, s{T1}, s{S_TAG}",
          f"s_lshl_b32 s{T1}, s{s_row}, 3", f"s_add_u32 s{T1}, s{T1}, {WS_GG:#x}",
          f"v_mov_b32 v{acc+1}, s{S_TAG}", "s_mov_b64 exec, 1",
          f"buffer_store_dwordx2 v[{acc}:{acc+1}], v{vT}, s[{SWS}:{SWS+3}], s{T1} offen sc1", "s_mov_b64 exec, -1")
        vm.add("g")
        for j in range(4): a(f"v_mov_b32 v{20+j}, -1")
        a(f"buffer_store_dwordx4 v[20:23], v{vL16}, s[{SWS}:{SWS+3}], s{s_of} offen{SC}")
        vm.add("P")
    def publish_q():
        if hf == 0:
            Lf = a.newlabel("QF"); a(f"s_cmp_lg_u32 s{S_W}, 0", f"s_cbranch_scc1 {Lf}"); set_flag(a, s_fq, 30)
            a(f"s_lshl_b32 s{T1}, s2, {FS}", f"s_add_u32 s{T1}, s{T1}, {WS_FO:#x}"); set_flag(a, T1, 30)
            a.label(Lf)
    prev = None; ST = []
    gpos = [i for i, u in enumerate(seq) if u[0] == 'G'] if up else [1, 2]
    qpub = lastQ + OPT['qpo']
    for n in range(N):
        typ = seq[n][0]
        vw(a, vm, lambda t: t == ("u", n) or (n == qpub and t == "Q") or (n == N-1 and up and OPT["early"] and t == ("c", 0)), " lgkmcnt(0)" if n else "")
        a.stamp(f"pre{n}")
        a("s_barrier")
        a.stamp(f"b{n}")
        off = rebase(n)
        for s in range(4):
            if typ == "Q":
                nr = 1 + 2*nb
                if s == 0:
                    M = mf(*prev) if prev else []
                    a(*reads(n, 0, off)); a(*M[:2]) if M else None
                    a(*reads(n, 1, off)); a(*M[2:]) if len(M) > 2 else None
                    a(*reads(n, 2, off))
                    if 4*nr > 15: a(f"s_waitcnt lgkmcnt({15 - nr})")
                    a(*reads(n, 3, off))
                    pump(n, OPT["rq"])
                else:
                    a(f"s_waitcnt lgkmcnt({(4-s)*nr})"); a(*mf(n, s-1))
                    pump(n, 0, n + dist if s == 3 else None)
            else:
                R = reads(n, s, off); M = mf(*prev) if prev else []
                if s > 0: a("s_waitcnt lgkmcnt(0)")
                rg = OPT["rg"] // 4 + (1 if s < OPT["rg"] % 4 else 0)
                for j in range(max(len(M), 2)):
                    if j < len(M): a(M[j])
                    if j < 2: a(*R[4*j:4*j+4])
                    if j == 2:
                        if ST: ST.pop(0)()
                        pump(n, rg // 2)
                if ST and OPT["st2"]: ST.pop(0)()
                pump(n, rg - (rg // 2 if len(M) > 2 else 0), n + dist if s == 3 else None)
            prev = (n, s)
            if n == lastQ + 1 and s == 1:
                a.stamp("qkv")
                ST = qkv_epilogue()
            if n == qpub and s == 0:
                assert not ST
                publish_q()
            if (n, s) == ((gpos[0], 1) if hf == 0 else (gpos[0], 3)):
                vw(a, vm, lambda t: t == "G"); gate_compute()
                srd(a, 72, S_DBG, 256)
                a(f"buffer_load_dword v16, v{vT}, s[72:75], 0 offen sc1"); vm.add("D")
            if s == 2 and n == 6:
                vw(a, vm, lambda t: t == "D"); tag_finish_and_gate_store()
                if hf == 0:
                    L = a.newlabel("NOUPD")
                    a(f"s_cmp_lg_u32 s{s_row}, 1", f"s_cbranch_scc1 {L}",
                      f"v_mov_b32 v30, s{S_TAG}", f"s_mov_b32 s{T1}, {WS_EP:#x}", "s_mov_b64 exec, 1",
                      f"buffer_store_dword v30, v{vT}, s[72:75], 0 offen sc1", "s_waitcnt vmcnt(0)",
                      f"buffer_store_dword v30, v{vT}, s[{SWS}:{SWS+3}], s{T1} offen sc1", "s_mov_b64 exec, -1", "s_waitcnt vmcnt(0)")
                    a.label(L)
            if up:
                kv = OPT["kvs"]
                if 4*n+s == kv - 3: qflag_load(a, vm)
                if 4*n+s == kv: attn_prefetch(a, vm, 0)
                if n == N-2 and s == 1: attn_addr_setup(a)
                if n == N-2 and s == 2: ones_init(a)
                if OPT["early"]:
                    if n == N-1 and s == 0: standin(a, 0); attn_prefetch(a, vm, 1)
                    if n == N-1 and s == 1: standin(a, 1)
                    if n == N-1 and s == 3: standin(a, 2)
    a("s_waitcnt lgkmcnt(0)"); a(*mf(*prev))
    if up:
        a.stamp("up")
        a(f"s_lshl_b32 s{T1}, s{s_rt}, 2", f"s_add_u32 s{T1}, s{T1}, s{s_rb}", f"s_mul_i32 s{T1}, s{T1}, 112",
          f"s_lshl_b32 s{T2}, s{s_ft}, 3", f"s_add_u32 s{T1}, s{T1}, s{T2}", f"s_lshl_b32 s{T1}, s{T1}, 10",
          f"s_add_u32 s{T1}, s{T1}, {WS_HF + hf*4096:#x}", "s_nop 4")
        if not OPT["early"]:
            vw(a, vm, lambda t: t == ("c", 0)); a("s_barrier")
            a.stamp("kv")
            standin(a, 0); attn_prefetch(a, vm, 1)
        for f in range(4):
            A = ACC + 16*f
            for j in range(0, 8, 2): a(f"v_pk_mul_f32 {vr(A+j,2)}, {vr(A+j,2)}, {vr(A+8+j,2)}")
            for j in range(4): a(f"v_cvt_pk_bf16_f32 v{A+8+j}, v{A+2*j}, v{A+2*j+1}")
            a(f"buffer_store_dwordx4 {vr(A+8,4)}, v{vL16}, s[{SWS}:{SWS+3}], s{T1} offen offset:{f*1024}{SC}")
            if not OPT["early"]:
                if f == 0: a("s_waitcnt lgkmcnt(0)"); standin(a, 1)
                if f == 2: standin(a, 2)
        if not OPT["early"]: a("s_nop 3")
        vm.add("h", 4)
        assert vm.q == [("c", 1)]*4 + ["h"]*4, vm.q
    else:
        a("s_nop 7", "s_nop 3")
        for f in qkv_epilogue(): f()
        a("s_waitcnt vmcnt(0)", "s_barrier")
        publish_q()
        vm = VM(); qflag_load(a, vm); attn_addr_setup(a); ones_init(a); attn_prefetch(a, vm, 0); attn_prefetch(a, vm, 1)
        a("s_waitcnt vmcnt(0) lgkmcnt(0)", "s_barrier")
        standin(a, 0); a("s_waitcnt lgkmcnt(0)"); standin(a, 1); a("s_nop 7", "s_nop 3"); standin(a, 2); a("s_nop 7", "s_nop 3")
    a(f"s_branch {L_attn}")

def issue_chunk(a, cslot):
    for h in range(2):
        a(f"s_add_u32 m0, s{s_lkv}, {cslot*CS + 4*h*TS}")
        if h == 0: a("s_nop 0")
        else: a(f"s_add_u32 s{s_src}, s{s_src}, 8192")
        a(f"buffer_load_dwordx4 v{vL16}, s[{SWS}:{SWS+3}], s{s_src} offen{SC} lds",
          f"buffer_load_dwordx4 v{vL16}, s[{SWS}:{SWS+3}], s{s_src} offen offset:1024{SC} lds")
    a(f"s_add_u32 s{s_src}, s{s_src}, 8192")

QMASK = (1 << 34) - 1
def qflag_load(a, vm):
    a(f"s_lshr_b32 s{T1}, s{s_head}, 1", "v_lshrrev_b32 v30, 4, v0", "v_add_u32 v30, 1, v30", "v_cmp_gt_u32 vcc, 3, v30", "s_nop 1",
      "v_cndmask_b32 v30, 0, v30, vcc", "v_lshlrev_b32 v30, 4, v30", f"v_add_u32 v30, s{T1}, v30",
      "v_mul_u32_u24 v30, 43691, v30", "v_lshrrev_b32 v30, 17, v30",
      "v_and_b32 v31, 15, v0", f"s_lshl_b32 s{T2}, s{s_qb}, 1", f"v_add_u32 v24, s{T2}, v31", "v_cndmask_b32 v31, v24, v31, vcc",
      "v_lshl_add_u32 v30, v30, 4, v31", f"v_lshlrev_b32 v30, {FS}, v30")
    flag_load(a, vm, WS_FQ, 30, QMASK, 31)

def flag_load(a, vm, base, voff, mask, vt):
    a(f"s_mov_b32 s{T1}, {base:#x}", f"s_mov_b32 exec_lo, {mask & 0xffffffff:#x}", f"s_mov_b32 exec_hi, {mask >> 32:#x}",
      f"buffer_load_dword v{vt}, v{voff}, s[{SWS}:{SWS+3}], s{T1} offen sc1", "s_mov_b64 exec, -1")
    vm.add("F")

def flag_check(a, vm, base, voff, mask, vt):
    L = a.newlabel("FOK")
    a(f"s_waitcnt vmcnt({vm.wait_for(lambda t: t == 'F')})",
      f"v_cmp_ne_u32 vcc, s{S_TAG}, v{vt}", f"s_and_b32 vcc_lo, vcc_lo, {mask & 0xffffffff:#x}", f"s_and_b32 vcc_hi, vcc_hi, {mask >> 32:#x}",
      f"s_or_b32 s{T1}, vcc_lo, vcc_hi", f"s_cbranch_scc0 {L}", f"s_mov_b32 s{T1}, {base:#x}")
    poll(a, T1, voff, mask, vt, T2, staged=False)
    a.label(L)

def attn_prefetch(a, vm, which):
    if which == 0:
        flag_check(a, vm, WS_FQ, 30, QMASK, 31)
        a(f"s_xor_b32 s{T1}, s{s_q}, 1024",
          f"buffer_load_dwordx4 {vr(Q,4)}, v{vL16}, s[{SWS}:{SWS+3}], s{T1} offen{SC}",
          f"buffer_load_dwordx4 {vr(Q+4,4)}, v{vL16}, s[{SWS}:{SWS+3}], s{s_q} offen{SC}")
        vm.add("q", 2)
    issue_chunk(a, which)
    vm.add(("c", which), 4)

def attention_phase(a, end_label):
    vm = VM(); vm.add(("c", 1), 4); vm.add("h", 4)
    def issue_w(n):
        slot = n % D
        sr_, base = (SA, s_wd) if n < NK else (SBd, s_wo)
        a(f"s_add_u32 m0, s{s_lw}, {slot*2048}")
        if n not in (0, NK): a(f"s_add_u32 s{base}, s{base}, 16384")
        else: a("s_nop 0")
        fl = " nt" if OPT["nt"] & 8 else ""
        dma(a, vWO, sr_, f"s{base}", [], flags=fl)
        dma(a, vWO2, sr_, f"s{base}", [], imm=1024, flags=fl)
        vm.add(("w", n), 2)
    def issue_x(n):
        slot = n % D
        if n and n % 4 == 0: a(f"s_add_u32 s{s_x0}, s{s_x0}, 4096")
        a(f"buffer_load_dwordx4 {vr(XD+8*slot,4)}, v{vX1}, s[{SWS}:{SWS+3}], s{s_x0} offen offset:{(n%4)*1024}{SC}",
          f"buffer_load_dwordx4 {vr(XD+8*slot+4,4)}, v{vX2}, s[{SWS}:{SWS+3}], s{s_x0} offen offset:{(n%4)*1024}{SC}")
        vm.add(("x", n), 2)
    a.stamp("loop")
    c0 = OPT["dstart"] + 2
    c = [c0 + (n * (OPT['dend'] - c0)) // (NK - 1) for n in range(NK)]
    assert len(set(c)) == NK and c[-1] <= 31
    done = {}
    xnext = [D]
    dq = []
    first_pv = [True, True]
    XO = AB + 2*CS; XDN = 32768
    def gate_check():
        Lgok = a.newlabel("GOK"); Lgr = a.newlabel("GRE")
        vw(a, vm, lambda t: t == "g")
        a("s_mov_b32 s62, 0x80000")
        a.label(Lgr)
        a(f"v_cmp_ne_u32 vcc, s{S_TAG}, v{vG1+1}", f"v_cmp_ne_u32 s[60:61], s{S_TAG}, v{vG2+1}", "s_or_b64 vcc, vcc, s[60:61]", f"s_cbranch_scc0 {Lgok}",
          f"v_and_b32 v{T0}, 31, v0", f"v_lshlrev_b32 v{T0}, 3, v{T0}",
          f"s_sub_u32 s60, s{s_of}, {WS_OF:#x}", "s_lshr_b32 s60, s60, 15", "s_lshl_b32 s60, s60, 8", f"s_add_u32 s60, s60, {WS_GG:#x}",
          f"s_lshl_b32 s61, s{s_r64}, 1", f"s_add_u32 s61, s61, s{s_i}", "s_lshl_b32 s61, s61, 8", f"s_add_u32 s61, s61, {WS_GG:#x}",
          f"buffer_load_dwordx2 v[{vG1}:{vG1+1}], v{T0}, s[{SWS}:{SWS+3}], s60 offen sc1",
          f"buffer_load_dwordx2 v[{vG2}:{vG2+1}], v{T0}, s[{SWS}:{SWS+3}], s61 offen sc1",
          "s_waitcnt vmcnt(0)", "s_sub_u32 s62, s62, 1", f"s_cbranch_scc0 {Lgr}")
        a.label(Lgok)
        a(f"v_sub_f32 v{vG2}, 1.0, v{vG2}", f"v_cvt_pk_bf16_f32 v{vG2}, v{vG2}, v{vG2}", f"v_lshlrev_b32 v{vG2}, 16, v{vG2}")
    last = [False]
    def phase(t, vb, smf, mid, pend, wait):
        Sb = S + 16*t; Ob = O + 16*t
        for tok in ORDER.split():
            if tok[0] == 'e': r = int(tok[1:]); a(f"v_exp_f32 v{Sb+r}, v{Sb+r}")
            elif tok[0] == 'c':
                k = int(tok[1:]); a(f"v_cvt_pk_bf16_f32 v{P+k}, v{Sb+2*k}, v{Sb+2*k+1}")
                if last[0] and k == 4:
                    a(f"ds_write_b128 v{vXS}, {vr(O,4)}", f"ds_write_b128 v{vXS}, {vr(O+4,4)} offset:1024",
                      f"v_lshrrev_b32 v{T0}, 2, v{vL16}", f"v_sub_u32 v{T0+1}, v{vXS}, v{vL16}", f"v_add_u32 v{T0+1}, v{T0+1}, v{T0}",
                      f"ds_write_b32 v{T0+1}, v{O+8} offset:2048",
                      f"v_sub_u32 v{T0+2}, v{vXR}, v{vL16}", f"v_add_u32 v{T0+2}, v{T0+2}, v{T0}")
                ready = [d for d in dq if d[0] <= 0]
                if ready and (k == 3 or (k == 6 and len(ready) > OPT["dback"])):
                    d = dq.pop(0); a(d[1])
                    if not any(e[2] == d[2] for e in dq): done[d[2]] = True
            elif tok == 'S':
                if wait: a("s_waitcnt lgkmcnt(0)")
                if smf: a(smf)
            elif tok == 'N':
                if pend: a(pend)
            elif tok == 'P':
                a(mfma(Ob, V+8*vb, P, "0" if first_pv[t] else None)); first_pv[t] = False
            elif tok == 'M': mid()
        for d in dq: d[0] -= 1
        return mfma(Ob, V+8*vb+4, P+4)
    pend = None
    for it in range(32):
        vb = it % 2
        def midA():
            if it % 8 == 7 and it < 31:
                ch = it // 8 + 1
                vw(a, vm, lambda t: t == ('c', ch)); a("s_barrier")
                if ch + 1 < 4:
                    issue_chunk(a, (ch + 1) % 2); vm.add(("c", ch + 1), 4)
            if it < 31: a(*rd(it + 1, 1 - vb))
            if it in c:
                n = c.index(it); slot = n % D; p = n % 2
                assert n < 2 or done.get(n - 2), (n, it)
                vw(a, vm, lambda t: t in (('x', n), ('w', n)))
                for cb in range(2):
                    for t in range(2):
                        a(f"ds_read_b64_tr_b16 {vr(WD+8*p+4*cb+2*t,2)}, v{vWR+cb} offset:{slot*2048+t*1024}")
                for i in range(2):
                    for cb in range(2):
                        dq.append([1, mfma(AD+16*(2*i+cb), WD+8*p+4*cb, XD+8*slot+4*i, "0" if n == 0 else None), n])
        def midB():
            if OPT["wstart"] <= it < OPT["wstart"] + D:
                if it == OPT["wstart"] and OPT["early"]: a("s_barrier")
                issue_w(it - OPT["wstart"])
            if it == OPT["hpub"]:
                L = a.newlabel("NOH")
                a(f"s_waitcnt vmcnt({vm.wait_for(lambda t: t == 'h')})", f"s_cmp_eq_u32 s{s_up}, 0", f"s_cbranch_scc1 {L}")
                set_flag(a, s_fh, T0)
                a.label(L)
            if it == OPT["dstart"] - 1: flag_load(a, vm, WS_FH, vFO, HMASK, vFO+1)
            if it == OPT["dstart"]:
                flag_check(a, vm, WS_FH, vFO, HMASK, vFO+1)
                for n in range(D): issue_x(n)
            if it in c and c.index(it) + D < NK + 4: issue_w(c.index(it) + D)
            if xnext[0] < NK and done.get(xnext[0] - D): issue_x(xnext[0]); xnext[0] += 1
            if it == 0:
                a(f"s_xor_b32 s60, s{s_i}, 1", f"s_mul_i32 s60, s60, {112*1024}", f"v_add_u32 v{vX1}, s60, v{vL16}",
                  f"s_mul_i32 s60, s{S_W}, 2560", f"s_add_u32 s60, s60, {XO}", f"v_add_u32 v{vXS}, s60, v{vL16}",
                  f"s_xor_b32 s60, s{S_W}, 4", "s_mul_i32 s60, s60, 2560", f"s_add_u32 s60, s60, {XO}", f"v_add_u32 v{vXR}, s60, v{vL16}")
            if it == 22:
                a(f"s_lshl_b32 s60, s{s_kq}, 1", f"s_lshr_b32 s61, s{s_r64}, 2", "s_lshl_b32 s61, s61, 5", "s_add_u32 s60, s60, s61",
                  f"v_bfe_u32 v{vFO}, v0, 2, 1", f"v_and_b32 v{T0}, 3, v0", f"v_lshl_add_u32 v{vFO}, v{T0}, 3, v{vFO}", f"v_add_u32 v{vFO}, s60, v{vFO}",
                  f"v_lshlrev_b32 v{vFO}, {FS}, v{vFO}")
                flag_load(a, vm, WS_FO, vFO, 0xff, vFO+1)
            if it == 24: flag_check(a, vm, WS_FO, vFO, 0xff, vFO+1); gate_check()
            if it == 20:
                a(f"v_and_b32 v{T0}, 31, v0", f"v_lshlrev_b32 v{T0}, 3, v{T0}",
                  f"s_lshl_b32 s60, s{s_qb}, 3", f"s_lshl_b32 s61, s{s_qw}, 1", "s_add_u32 s60, s60, s61", f"s_add_u32 s60, s60, s{s_kh}",
                  "s_lshl_b32 s60, s60, 8", f"s_add_u32 s60, s60, {WS_GG:#x}",
                  f"s_lshl_b32 s61, s{s_r64}, 1", f"s_add_u32 s61, s61, s{s_i}", "s_lshl_b32 s61, s61, 8", f"s_add_u32 s61, s61, {WS_GG:#x}",
                  f"buffer_load_dwordx2 v[{vG1}:{vG1+1}], v{T0}, s[{SWS}:{SWS+3}], s60 offen sc1",
                  f"buffer_load_dwordx2 v[{vG2}:{vG2+1}], v{T0}, s[{SWS}:{SWS+3}], s61 offen sc1")
                vm.add("g", 2)
        a.stamp(f"it{it}")
        if OPT["bal"] == 1: a(f"s_setprio {3 - it % 4}")
        if OPT["bal"] == 2 and it % 2 == 0: a(f"s_setprio {3 - (it % 8) // 2}")
        pend = phase(0, vb, mfma(S+16, K, Q+4, C), midA, pend, False)
        last[0] = it == 31
        pend = phase(1, vb, mfma(S, K, Q, C) if it < 31 else None, midB, pend, True)
    a("s_nop 1", pend)
    for d in dq: a(d[1])
    a.stamp("loopend")
    OK_ = O + 16; QK_ = Q + 4
    a("s_waitcnt lgkmcnt(0)", "s_barrier")
    a(f"ds_read_b128 {vr(S,4)}, v{vXR}", f"ds_read_b128 {vr(S+4,4)}, v{vXR} offset:1024", f"ds_read_b32 v{S+8}, v{T0+2} offset:2048")
    a(f"s_lshl_b32 s60, s{S_W}, 13", f"s_add_u32 s60, s60, {XDN}", f"v_add_u32 v{vKA}, s60, v{vL16}", f"v_xor_b32 v{vVB}, 0x2000, v{vKA}",
      "s_mov_b32 s62, 0x5d800000", "s_mov_b32 s63, 0x7e800000", "s_nop 1")
    a("s_waitcnt lgkmcnt(0)")
    for j in range(9): a(f"v_add_f32 v{OK_+j}, v{OK_+j}, v{S+j}")
    Lfb = a.newlabel("ATT_fallback"); Lfin = a.newlabel("ATT_fin")
    a(f"v_add_f32 v{T0}, |v{OK_}|, |v{OK_+1}|", f"v_add_f32 v{T0+1}, |v{OK_+2}|, |v{OK_+3}|",
      f"v_add_f32 v{T0+2}, |v{OK_+4}|, |v{OK_+5}|", f"v_add_f32 v{T0+3}, |v{OK_+6}|, |v{OK_+7}|",
      f"v_add_f32 v{T0}, v{T0}, v{T0+1}", f"v_add_f32 v{T0+2}, v{T0+2}, v{T0+3}", f"v_cmp_nlt_f32 vcc, v{OK_+8}, s62",
      f"v_add_f32 v{T0}, v{T0}, v{T0+2}",
      f"v_cmp_nlt_f32 s[60:61], v{T0}, s63",
      "s_or_b64 vcc, vcc, s[60:61]",
      f"s_cbranch_scc1 {Lfb}")
    a.label(Lfin)
    a(f"v_rcp_f32 v{T0}, v{OK_+8}", "s_nop 0", f"v_mul_f32 v{T0}, v{T0}, v{vG1}")
    for j in range(8): a(f"v_mul_f32 v{OK_+j}, v{OK_+j}, v{T0}")
    for j in range(4): a(f"v_cvt_pk_bf16_f32 v{P+j}, v{OK_+2*j}, v{OK_+2*j+1}")
    for j in range(4): a(f"v_min_u32 v{P+j}, -2, v{P+j}")
    a(f"buffer_store_dwordx4 {vr(P,4)}, v{vL16}, s[{SWS}:{SWS+3}], s{s_of} offen{SC}")
    a.stamp("oflag")
    AK = AD + 32
    for j in range(8): a(f"ds_write_b128 v{vKA}, {vr(AD+4*j,4)} offset:{1024*j}")
    WO = 128; XF = 32
    srd(a, SCd, S_OUT, 2048*1024)
    a(f"s_lshl_b32 s60, s{s_i}, 13", f"v_subrev_u32 v{vWR}, s60, v{vWR}", f"v_xor_b32 v{vWR+1}, 64, v{vWR}")
    a(f"s_lshl_b32 s60, s{s_r64}, 1", f"s_add_u32 s60, s60, s{s_i}",
      "s_lshl_b32 s61, s60, 5", f"s_lshl_b32 s62, s{s_kq}, 3", "s_add_u32 s61, s61, s62",
      "s_lshl_b32 s50, s61, 10", f"s_add_u32 s50, s50, {WS_OF:#x}", "s_add_u32 s51, s50, 4096",
      "s_lshl_b32 s53, s60, 15", f"s_lshl_b32 s62, s{s_c64}, 7", "s_add_u32 s53, s53, s62", f"s_lshl_b32 s62, s{s_kq}, 5", "s_add_u32 s53, s53, s62")
    PB = 98304 - 49152
    a(f"v_and_b32 v{T0}, 31, v0", f"v_lshlrev_b32 v{T0}, 10, v{T0}", f"v_lshrrev_b32 v{T0+1}, 5, v0", f"v_lshl_add_u32 v{vVA}, v{T0+1}, 4, v{T0}",
      f"s_mul_i32 s60, s{s_i}, {4*3*2048}", f"s_add_u32 s60, s60, {PB}")
    for j in range(4):
        a(f"s_xor_b32 s61, s{s_kq}, {j}", f"s_mul_i32 s61, s61, {3*2048}", "s_add_u32 s61, s61, s60", f"v_add_u32 v{T0+4+j}, s61, v{vL16}")
    a("s_waitcnt vmcnt(1) lgkmcnt(0)", "s_barrier")
    for j in range(8): a(f"ds_read_b128 {vr(AD+4*j,4)}, v{vVB} offset:{1024*j}")
    def xload(st): return f"buffer_load_dwordx4 {vr(XF+4*st,4)}, v{vL16}, s[{SWS}:{SWS+3}], s{50 if st<4 else 51} offen offset:{(st%4)*1024}{SC}"
    a("s_waitcnt lgkmcnt(0)")
    for st in range(8):
        for cb in range(2):
            for t in range(2):
                a(f"ds_read_b64_tr_b16 {vr(WO+8*st+4*cb+2*t,2)}, v{vWR+cb} offset:{(st//4)*8192+((NK+st%4)%D)*2048+t*1024}")
        if st % 2 == 1: a("s_waitcnt lgkmcnt(6)")
        for j in range(4*st, 4*st+4):
            a(f"v_add_f32 v{AK+j}, v{AK+j}, v{AD+j}", f"v_mul_f32 v{AK+j}, v{AK+j}, v{vG2}")
    a.stamp("prepoll")
    for st in range(8): a(xload(st))
    a("s_mov_b32 s62, 0x80000", "s_waitcnt lgkmcnt(0)", "s_barrier")
    for st in range(8):
        Lr = a.newlabel("XR"); Lo = a.newlabel("XO")
        x = XF + 4*st
        a(f"s_waitcnt vmcnt({7-st})")
        a.label(Lr)
        a(f"v_max3_u32 v{T0}, v{x}, v{x+1}, v{x+2}", f"v_max_u32 v{T0}, v{T0}, v{x+3}", f"v_cmp_eq_u32 vcc, -1, v{T0}",
          f"s_cbranch_vccz {Lo}",
          f"s_sleep {OPT['sleep']}", xload(st), "s_waitcnt vmcnt(0)", "s_sub_u32 s62, s62, 1", f"s_cbranch_scc0 {Lr}")
        a.label(Lo)
        for cb in range(2): a(mfma(AK+16*cb, WO+8*st+4*cb, x))
    a.stamp("outmf")
    a("s_nop 7", "s_nop 1")
    for j in (1, 2, 3):
        for h in range(2): a(f"ds_write_b128 v{T0+4+j}, {vr(AK+8*j+4*h,4)} offset:{(j-1)*2048+h*1024}")
    a("s_waitcnt lgkmcnt(0)", "s_barrier")
    for r in range(3):
        for h in range(2): a(f"ds_read_b128 {vr(XF+8*r+4*h,4)}, v{T0+4} offset:{r*2048+h*1024}")
    for r in range(3):
        a(f"s_waitcnt lgkmcnt({4-2*r})")
        for j in range(8): a(f"v_add_f32 v{AK+j}, v{AK+j}, v{XF+8*r+j}")
    for j in range(4): a(f"v_cvt_pk_bf16_f32 v{24+j}, v{AK+2*j}, v{AK+2*j+1}")
    a("s_nop 1", "v_permlane32_swap_b32 v24, v26", "v_permlane32_swap_b32 v25, v27",
      f"buffer_store_dwordx4 v[24:27], v{vVA}, s[{SCd}:{SCd+3}], s53 offen")
    a(f"s_branch {end_label}")
    a.label(Lfb)
    L1 = a.newlabel("ATT_fb1"); L2 = a.newlabel("ATT_fb2")
    a(f"s_lshl_b32 s63, s{s_head}, 17", f"s_add_u32 s63, s63, {WS_KV:#x}")
    a(f"v_mov_b32 v{T0}, 0xff800000", "s_mov_b32 s60, s63", "s_mov_b32 s61, 0")
    a.label(L1)
    a(f"buffer_load_dwordx4 {vr(K,4)}, v{vL16}, s[{SWS}:{SWS+3}], s60 offen{SC}", "s_waitcnt vmcnt(0)",
      mfma(S, K, QK_, "0"), "s_nop 7", "s_nop 7")
    for r in range(0, 16, 2): a(f"v_max3_f32 v{T0}, v{T0}, v{S+r}, v{S+r+1}")
    a("s_add_u32 s60, s60, 2048", "s_add_u32 s61, s61, 1", "s_cmp_lt_u32 s61, 64", f"s_cbranch_scc1 {L1}")
    a(f"v_mov_b32 v{T0+2}, v{T0}", "s_nop 1", f"v_permlane32_swap_b32 v{T0}, v{T0+2}", "s_nop 1", f"v_max_f32 v{T0}, v{T0}, v{T0+2}")
    for r in range(16): a(f"v_sub_f32 v{C+r}, 0, v{T0}", f"v_mov_b32 v{OK_+r}, 0")
    a(f"v_lshrrev_b32 v{T0}, 5, v0", f"v_lshlrev_b32 v{T0}, 8, v{T0}", f"v_and_b32 v{T0+1}, 15, v0",
      f"v_lshl_add_u32 v{vVA}, v{T0+1}, 4, v{T0}")
    a("s_mov_b32 s60, s63", "s_mov_b32 s61, 0")
    a.label(L2)
    a(f"buffer_load_dwordx4 {vr(K,4)}, v{vL16}, s[{SWS}:{SWS+3}], s60 offen{SC}",
      f"s_mov_b64 exec, s[{sEX}:{sEX+1}]",
      f"buffer_load_dwordx4 {vr(V,4)}, v{vVA}, s[{SWS}:{SWS+3}], s60 offen offset:1024{SC}",
      f"buffer_load_dwordx4 {vr(V+4,4)}, v{vVA}, s[{SWS}:{SWS+3}], s60 offen offset:1536{SC}",
      "s_mov_b64 exec, -1", "s_waitcnt vmcnt(0)",
      mfma(S, K, QK_, C), "s_nop 7", "s_nop 7")
    for r in range(16): a(f"v_exp_f32 v{S+r}, v{S+r}")
    a("s_nop 0")
    for k in range(8): a(f"v_cvt_pk_bf16_f32 v{P+k}, v{S+2*k}, v{S+2*k+1}")
    a("s_nop 1", mfma(OK_, V, P), mfma(OK_, V+4, P+4), "s_nop 7", "s_nop 7")
    a("s_add_u32 s60, s60, 2048", "s_add_u32 s61, s61, 1", "s_cmp_lt_u32 s61, 64", f"s_cbranch_scc1 {L2}")
    a(f"s_branch {Lfin}")

def rot_code():
    m = OPT["rot"]
    if m == 0: return ["s_mov_b32 s3, 0"]
    if OPT["map"] == 1:
        base = ["s_and_b32 s3, s60, 6", "s_and_b32 s63, s60, 1", "s_lshl_b32 s63, s63, 2", "s_add_u32 s3, s3, s63"]
        if m == 2: return base
        if m == 1: return ["s_lshl_b32 s3, s61, 1", f"s_add_u32 s3, s3, s{s_rt}"]
        if m == 4: return base + [f"s_add_u32 s63, s61, s{s_rt}", "s_and_b32 s63, s63, 1", "s_lshl_b32 s63, s63, 2", "s_add_u32 s3, s3, s63"]
        if m == 5: return [f"s_add_u32 s63, s61, s{s_rt}", "s_and_b32 s63, s63, 3", "s_lshl_b32 s3, s63, 1", "s_and_b32 s63, s60, 1", "s_add_u32 s3, s3, s63"]
    if m == 1: return [f"s_lshl_b32 s3, s{s_rt}, 1", "s_add_u32 s3, s3, s61", "s_and_b32 s63, s60, 1", "s_add_u32 s3, s3, s63"]
    base = ["s_lshl_b32 s3, s60, 1", "s_and_b32 s63, s60, 4", "s_add_u32 s3, s3, s63"]
    if m == 2: return base
    if m == 3: return base + [f"s_add_u32 s63, s61, s{s_rt}", "s_and_b32 s63, s63, 1", "s_add_u32 s3, s3, s63"]
    if m == 4: return base + [f"s_add_u32 s63, s61, s{s_rt}", "s_and_b32 s63, s63, 1", "s_lshl_b32 s63, s63, 2", "s_add_u32 s3, s3, s63"]

def build(prof=False, as_list=False):
    a = Asm(); a.prof = prof; a.sb = 76
    a('.amdgcn_target "amdgcn-amd-amdhsa--gfx950"')
    a(".text", f".globl {NAME}", ".p2align 8", f".type {NAME},@function")
    a.label(NAME)
    end = "K_end"
    if prof:
        a.plan = PLAN
        a("s_memrealtime s[100:101]", "s_memtime s[76:77]")
        for i in range(1, 12): a(f"s_mov_b32 s{76+2*i}, 0")
    if OPT["spin"]: a("s_memrealtime s[100:101]")
    a("s_cmp_ge_u32 s2, 256", f"s_cbranch_scc1 {end}_x")
    a("s_load_dwordx16 s[4:19], s[0:1], 0", "s_load_dwordx4 s[20:23], s[0:1], 64", "s_load_dwordx2 s[24:25], s[0:1], 80")
    a("v_lshrrev_b32 v1, 6, v0", "s_and_b32 s60, s2, 7", f"v_readfirstlane_b32 s{S_W}, v1", "v_and_b32 v0, 63, v0", f"v_lshlrev_b32 v{vL16}, 4, v0")
    if OPT["map"] == 0:
        a("s_lshr_b32 s61, s2, 3", f"s_and_b32 s{s_rt}, s60, 3", f"s_lshl_b32 s{s_rt}, s{s_rt}, 2", "s_and_b32 s62, s61, 3", f"s_add_u32 s{s_rt}, s{s_rt}, s62",
          "s_lshr_b32 s61, s61, 2", "s_lshr_b32 s62, s60, 2", f"s_lshl_b32 s{s_ct}, s62, 3", f"s_add_u32 s{s_ct}, s{s_ct}, s61",
          f"s_mul_i32 s{s_ft}, s62, 7", "s_min_u32 s63, s61, 6", f"s_add_u32 s{s_ft}, s{s_ft}, s63",
          "s_cmp_lt_u32 s61, 7", f"s_cselect_b32 s{s_up}, 1, 0")
    else:
        a("s_lshr_b32 s61, s2, 3", f"s_and_b32 s{s_rt}, s60, 1", f"s_lshl_b32 s{s_rt}, s{s_rt}, 3", "s_and_b32 s62, s61, 7", f"s_add_u32 s{s_rt}, s{s_rt}, s62",
          "s_lshr_b32 s61, s61, 3", "s_lshr_b32 s62, s60, 1", f"s_lshl_b32 s{s_ct}, s62, 2", f"s_add_u32 s{s_ct}, s{s_ct}, s61",
          f"s_cmp_ge_u32 s{s_ct}, 11", "s_cselect_b32 s63, 1, 0", f"s_sub_u32 s{s_ft}, s{s_ct}, s63", f"s_min_u32 s{s_ft}, s{s_ft}, 13",
          f"s_and_b32 s63, s{s_ct}, 11", "s_cmp_lg_u32 s63, 11", f"s_cselect_b32 s{s_up}, 1, 0")
    a(*rot_code(),
      f"s_and_b32 s{s_rb}, s{S_W}, 3", f"s_lshr_b32 s{s_hf}, s{S_W}, 2",
      f"s_lshl_b32 s{s_row}, s2, 3", f"s_add_u32 s{s_row}, s{s_row}, s{S_W}",
      f"s_lshl_b32 s{s_fq}, s{s_ct}, 4", f"s_add_u32 s{s_fq}, s{s_fq}, s{s_rt}", f"s_lshl_b32 s{s_fq}, s{s_fq}, {FS}", f"s_add_u32 s{s_fq}, s{s_fq}, {WS_FQ:#x}")
    a(f"s_lshl_b32 s{sX}, s{s_rt}, 17", f"s_lshl_b32 s62, s{S_W}, 14", f"s_add_u32 s{sX}, s{sX}, s62",
      f"s_mul_i32 s{sWq}, s{s_rb}, {16*3072}", f"s_mul_i32 s62, s{s_ct}, 192", f"s_add_u32 s{sWq}, s{sWq}, s62",
      f"s_mul_i32 s{sGU}, s{s_rb}, {16*3584}" if OPT["gload"] else f"s_mul_i32 s{sGU}, s{S_W}, {8*3584}", f"s_lshl_b32 s62, s{s_ft}, 8", f"s_add_u32 s{sGU}, s{sGU}, s62",
      f"s_lshl_b32 s{sLx}, s{S_W}, 11", f"s_mul_i32 s{sLw}, s{s_rb}, 3072", f"s_lshl_b32 s{sLg}, s{s_rb}, 12" if OPT["gload"] else f"s_lshl_b32 s{sLg}, s{S_W}, 11")
    a(f"s_lshl_b32 s{s_head}, s60, 2", "s_bfe_u32 s62, s2, 0x20003", f"s_add_u32 s{s_head}, s{s_head}, s62", f"s_lshr_b32 s{s_qb}, s2, 5",
      f"s_lshl_b32 s{s_q}, s{s_head}, 6", f"s_lshl_b32 s62, s{s_qb}, 3", f"s_add_u32 s{s_q}, s{s_q}, s62",
      f"s_lshl_b32 s62, s{s_rb}, 1", f"s_add_u32 s{s_q}, s{s_q}, s62", f"s_add_u32 s{s_q}, s{s_q}, s{s_hf}", f"s_lshl_b32 s{s_q}, s{s_q}, 10",
      f"s_lshl_b32 s{s_src}, s{s_head}, 17", f"s_add_u32 s{s_src}, s{s_src}, {WS_KV:#x}", f"s_lshl_b32 s62, s{s_hf}, 16", f"s_add_u32 s{s_src}, s{s_src}, s62",
      f"s_lshl_b32 s62, s{s_rb}, 11", f"s_add_u32 s{s_src}, s{s_src}, s62",
      f"s_mul_i32 s{s_lkv}, s{s_hf}, {8*TS}", f"s_mul_i32 s62, s{s_rb}, {TS}", f"s_add_u32 s{s_lkv}, s{s_lkv}, s62", f"s_add_u32 s{s_lkv}, s{s_lkv}, {AB}")
    a("v_lshrrev_b32 v30, 3, v0", "v_and_b32 v31, 7, v0", "v_bfe_u32 v32, v0, 4, 2", "v_xor_b32 v32, v32, v31",
      "v_lshlrev_b32 v30, 10, v30", "v_lshl_add_u32 v11, v32, 4, v30", "v_xor_b32 v12, 64, v11")
    for i in range(3):
        a(f"v_add_u32 v30, {64*i}, v0", "v_mul_u32_u24 v31, 5462, v30", "v_lshrrev_b32 v31, 16, v31",
          "v_mul_u32_u24 v32, 12, v31", "v_sub_u32 v32, v30, v32", "v_mul_u32_u24 v31, 3072, v31", f"v_lshl_add_u32 v{13+i}, v32, 4, v31")
    a("v_lshrrev_b32 v30, 4, v0", "v_and_b32 v31, 15, v0", "v_lshlrev_b32 v32, 1, v30", "v_xor_b32 v31, v31, v32",
      "v_mul_u32_u24 v30, 3584, v30", "v_lshl_add_u32 v28, v31, 4, v30", "v_xor_b32 v31, 8, v31", "v_lshl_add_u32 v29, v31, 4, v30")
    a("s_waitcnt lgkmcnt(0)")
    srd(a, SA, S_X, 2048*1024); srd(a, SBd, S_WQKV, 512*3072)
    if OPT["spin"] and OPT["dbg"] == 7:
        srd(a, 72, S_DBG, 256)
        a("s_not_b32 s60, s100", "v_mov_b32 v30, s60", "v_mov_b32 v31, 8", "s_mov_b64 exec, 1",
          "buffer_atomic_umax v30, v31, s[72:75], 0 offen", "s_mov_b64 exec, -1", "s_waitcnt vmcnt(0)")
    L_attn = "ATTN"
    srd(a, SD, S_WU, 512*3584); srd(a, 72, S_GW, 1024)
    g0 = unit_groups(a, None, 0, 0, ("Q", 0)); g1 = unit_groups(a, None, 1, 0, ("Q", 0))
    g0[0](); g0[1]()
    a(f"s_cmp_eq_u32 s{s_hf}, 0", "s_cbranch_scc1 PRO0")
    g1[2](); g1[3]()
    a("s_branch PRO1")
    a.label("PRO0")
    g0[2]()
    a.label("PRO1")
    srd(a, SWS, S_WS, WS_SIZE); srd(a, SCd, S_WG, 512*3584)
    a(f"s_sub_u32 s60, 11, s{s_hf}", f"s_cmp_ge_u32 s{s_ct}, s60", "s_cselect_b32 s60, 2, 0", f"s_lshl_b32 s61, s{s_hf}, 2", "s_add_u32 s60, s60, s61",
      f"s_xor_b32 s61, s{s_up}, 1", "s_add_u32 s60, s60, s61")
    order = [4, 0, 6, 2, 5, 1, 7, 3]
    for c in order[1:]: a(f"s_cmp_eq_u32 s60, {c}", f"s_cbranch_scc1 CLS{c}")
    for c in order:
        a.label(f"CLS{c}")
        gemm_phase(a, c >> 2, bool(c & 2), not (c & 1), L_attn)
    a(".p2align 6")
    a.label(L_attn)
    attention_phase(a, end)
    a.label(end)
    if OPT["spin"]:
        if OPT["dbg"] == 7:
            srd(a, 72, S_DBG, 256)
            a("v_mov_b32 v31, 8", "buffer_load_dword v30, v31, s[72:75], 0 offen sc1", "s_waitcnt vmcnt(0)", "v_readfirstlane_b32 s100, v30", "s_nop 3", "s_not_b32 s100, s100")
        a.label("SPIN")
        a("s_memrealtime s[36:37]", "s_waitcnt lgkmcnt(0)", "s_sub_u32 s36, s36, s100", f"s_cmp_lt_u32 s36, {OPT['spin']}", "s_cbranch_scc1 SPIN")
    if prof:
        a("s_waitcnt vmcnt(0) lgkmcnt(0)", "s_memrealtime s[36:37]", "s_memtime s[38:39]",
          "s_getreg_b32 s40, hwreg(HW_REG_XCC_ID)",
          "s_mov_b32 s32, s24", "s_and_b32 s33, s25, 0xffff", "s_mov_b32 s34, 0x2000000", "s_mov_b32 s35, 0x00020000",
          "s_lshl_b32 s41, s2, 3", f"s_add_u32 s41, s41, s{S_W}", "s_lshl_b32 s41, s41, 6",
          f"s_add_u32 s41, s41, {WS_PROF:#x}",
          "s_waitcnt lgkmcnt(0)", "s_sub_u32 s38, s38, s76",
          "v_mov_b32 v4, s100", "v_mov_b32 v5, s36", "v_mov_b32 v6, s38", "v_mov_b32 v7, s40", "v_mov_b32 v8, 0",
          "s_mov_b64 exec, 1",
          "buffer_store_dwordx4 v[4:7], v8, s[32:35], s41 offen")
        for i in range(1, 12): a(f"s_sub_u32 s{76+2*i}, s{76+2*i}, s76", f"v_mov_b32 v{11+i}, s{76+2*i}")
        a("v_mov_b32 v23, 0")
        for q in range(3): a(f"buffer_store_dwordx4 v[{12+4*q}:{15+4*q}], v8, s[32:35], s41 offen offset:{16+16*q}")
    a.label(end + "_x")
    a("s_endpgm")
    desc = f""".section .rodata,"a"
.p2align 6
.amdhsa_kernel {NAME}
  .amdhsa_next_free_vgpr 256
  .amdhsa_next_free_sgpr 102
  .amdhsa_accum_offset 256
  .amdhsa_group_segment_fixed_size 0
  .amdhsa_kernarg_size 88
  .amdhsa_user_sgpr_count 2
  .amdhsa_user_sgpr_kernarg_segment_ptr 1
  .amdhsa_system_sgpr_workgroup_id_x 1
.end_amdhsa_kernel
"""
    k = f"kernel={NAME} " if as_list else ""
    return HEADER + f"; @launch {k}grid=(256,1,1) block=(512,1,1) lds={LDS_BYTES}\n" + a.text() + desc

if __name__ == "__main__":
    out = sys.argv[1]
    for x in sys.argv[2:]:
        if x.startswith("seq="): SEQ[0] = x[4:]
        elif x.startswith("plan="): PLAN[:] = x[5:].split(",")
        elif "=" in x:
            k, v = x.split("="); OPT[k] = int(v)
    open(out, "w").write(build(prof="--prof" in sys.argv, as_list="--list" in sys.argv))
```

```python
import sys
from asmlib import *

NAME = "gated_mix__softmax_full_mha__glu_gated_bilinear__prompt_kernel"
HEADER = open("gated_mix__softmax_full_mha__glu_gated_bilinear__prompt.s.ref").read().split("; Override launch")[0]

WS_QF = 0x000000
WS_KV = 0x200000
WS_OF = 0x600000
WS_HF = 0x800000
WS_GG = 0xF00000
WS_EP = 0xF04000
WS_FQ = 0xF10000
WS_FO = 0xF30000
WS_FH = 0xF70000
WS_SIZE = 0xFB0000
FS = 7
WS_PROF = 0x1800000
QSCALE = 0x3EB8AA3B
LOG2E = 0x3FB8AA3B
LDS_BYTES = 163840

S_X, S_WQKV, S_WO, S_WG, S_WU, S_WD, S_GW, S_OUT, S_DBG, S_WS = 4, 6, 8, 12, 14, 16, 18, 20, 22, 24
S_TAG, S_W = 26, 27
SWS, SA, SBd, SCd, SD = 28, 32, 36, 40, 44
SC = " sc1"
SEQ = ['QGQQQGQQQQGGGGGG']
OPT = dict(xre=8, nt=0, early=0, rq=2, rg=8, st2=1, gload=0, qpo=3, qfirst=1, kvs=58, wstart=1, hpub=2, bal=2, dend=29, spin=0, gpf=3, map=0, tlb=0, glate=0, dq=2, dg=2, dswitch=7, qpub=10, rot=2, dbg=0, sleep=2, dstart=8, dback=2)

def srd(a, d, p, nbytes):
    a(f"s_mov_b32 s{d}, s{p}", f"s_and_b32 s{d+1}, s{p+1}, 0xffff",
      f"s_mov_b32 s{d+2}, {hex(nbytes)}", f"s_mov_b32 s{d+3}, 0x00020000")

def dma(a, voff, srd_, soff, pre, imm=0, flags=""):
    for l in pre: a(l)
    o = f" offset:{imm}" if imm else ""
    a(f"buffer_load_dwordx4 v{voff}, s[{srd_}:{srd_+3}], {soff} offen{o}{flags} lds")

def poll(a, s_base, voff, mask, vt, st, staged=True):
    a(f"s_mov_b32 s{st}, 0x80000")
    for stage in range(0 if staged else 1, 2):
        L = a.newlabel("POLL"); Ld = a.newlabel("POLLD")
        if stage == 0: a("s_mov_b64 exec, 1")
        elif mask == (1 << 64) - 1: a("s_mov_b64 exec, -1")
        else: a(f"s_mov_b32 exec_lo, {mask & 0xffffffff:#x}", f"s_mov_b32 exec_hi, {mask >> 32:#x}")
        a.label(L)
        a(f"buffer_load_dword v{vt}, v{voff}, s[{SWS}:{SWS+3}], s{s_base} offen sc1",
          "s_waitcnt vmcnt(0)",
          f"v_cmp_ne_u32 vcc, s{S_TAG}, v{vt}",
          f"s_cbranch_vccz {Ld}",
          "s_mov_b64 exec, vcc",
          f"s_sleep {OPT['sleep']}",
          f"s_sub_u32 s{st}, s{st}, 1",
          f"s_cbranch_scc0 {L}")
        a.label(Ld)
    a("s_mov_b64 exec, -1")

def set_flag(a, s_off, vt):
    a(f"v_mov_b32 v{vt}, 0", f"v_mov_b32 v{vt+1}, s{S_TAG}", "s_mov_b64 exec, 1",
      f"buffer_store_dword v{vt+1}, v{vt}, s[{SWS}:{SWS+3}], s{s_off} offen sc1", "s_mov_b64 exec, -1")

PLAN = ["issued", "qkv", "up", "loop", "loopend", "oflag", "prepoll", "polled", "outmf"]
class VM:
    def __init__(self): self.q = []
    def add(self, tag, n=1): self.q += [tag] * n
    def wait_for(self, pred):
        idx = [i for i, t in enumerate(self.q) if pred(t)]
        if not idx: return None
        n = len(self.q) - 1 - idx[-1]
        self.q = self.q[idx[-1]+1:]
        return n

def vw(a, vm, pred, extra=""):
    n = vm.wait_for(pred)
    if n is not None: a(f"s_waitcnt vmcnt({n}){extra}")
    elif extra: a(f"s_waitcnt{extra}")

SLOT = 32768
TS = 2080; CS = 16*TS; AB = 32768
ORDER = "e0 e1 N e2 e3 c0 e4 e5 c1 S M e6 e7 c2 e8 e9 c3 e10 e11 c4 e12 P e13 c5 e14 e15 c6 c7"

s_rt, s_ct, s_ft, s_rb, s_hf, s_up = 48, 49, 50, 51, 52, 53
sX, sWq, sGU, sLx, sLw, sLg = 54, 55, 56, 57, 58, 59
T1, T2, T3, T4 = 60, 61, 62, 63
s_head, s_qb, s_src, s_lkv, s_q = 64, 65, 66, 67, 68
s_row, s_fq, sGo = 69, 70, 71
sQx, sQw, s_of = 15, 19, 18
sEX = 0
s_r64, s_c64, s_x0, s_wd, s_wo, s_lw, s_fh, s_i, s_kq = 4, 5, 6, 7, 10, 11, 12, 13, 14
s_qw, s_kh = s_rb, s_hf
WF, ACC, ACCQ, XR, STG = 32, 64, 128, 160, 240
NXR = 6
Q, K, S, O, WD, V, P, T0, C = 16, 24, 128, 160, 192, 208, 224, 232, 240
AD, XD = 64, 32
vL16, vKA, vVA, vVB, vWR, vWO, vWO2, vX2, vFO = 1, 2, 3, 4, 5, 11, 12, 13, 14
vX1, vXS, vXR = 7, 8, 9
vG1, vG2 = 28, 30
D = 4; NK = 14
HMASK = 0x1f1f

def late_scalars(a):
    a("s_and_b32 s60, s2, 7", "s_lshr_b32 s61, s2, 3", f"s_lshl_b32 s{s_r64}, s60, 2", "s_and_b32 s60, s61, 3", f"s_add_u32 s{s_r64}, s{s_r64}, s60",
      f"s_lshr_b32 s{s_c64}, s61, 2", f"s_mov_b32 s{sEX}, 0xffff", f"s_mov_b32 s{sEX+1}, 0xffff",
      f"s_and_b32 s{s_i}, s{S_W}, 1", f"s_lshr_b32 s{s_kq}, s{S_W}, 1")
    a(f"s_mul_i32 s60, s{s_r64}, 224", f"s_mul_i32 s61, s{S_W}, {NK}", "s_add_u32 s60, s60, s61",
      f"s_lshl_b32 s{s_x0}, s60, 10", f"s_add_u32 s{s_x0}, s{s_x0}, {WS_HF:#x}",
      f"s_lshl_b32 s{s_wd}, s61, 14", f"s_lshl_b32 s60, s{s_c64}, 7", f"s_add_u32 s{s_wd}, s{s_wd}, s60",
      f"s_lshl_b32 s{s_wo}, s{S_W}, 16", f"s_add_u32 s{s_wo}, s{s_wo}, s60",
      f"s_lshl_b32 s{s_lw}, s{s_qw}, 13", f"s_lshl_b32 s60, s{s_kh}, 17", f"s_add_u32 s{s_lw}, s{s_lw}, s60")
    a(f"s_lshl_b32 s60, s{s_rt}, 2", f"s_add_u32 s60, s60, s{s_rb}", "s_lshl_b32 s60, s60, 5", f"s_lshl_b32 s61, s{s_ft}, 1", "s_add_u32 s60, s60, s61",
      f"s_add_u32 s60, s60, s{s_hf}", f"s_lshl_b32 s60, s60, {FS}", f"s_add_u32 s{s_fh}, s60, {WS_FH:#x}")

    a(f"s_lshl_b32 s60, s{s_qb}, 3", f"s_lshl_b32 s61, s{s_qw}, 1", "s_add_u32 s60, s60, s61", f"s_add_u32 s60, s60, s{s_kh}",
      "s_lshl_b32 s60, s60, 5", f"s_add_u32 s60, s60, s{s_head}", f"s_lshl_b32 s{s_of}, s60, 10", f"s_add_u32 s{s_of}, s{s_of}, {WS_OF:#x}")

def attn_addr_setup(a):
    srd(a, SA, S_WD, 1792*1024); srd(a, SBd, S_WO, 512*1024)
    a(f"s_mul_i32 s60, s{s_kh}, {8*TS}", f"s_add_u32 s60, s60, {AB}", f"v_add_u32 v{vKA}, s60, v{vL16}",
      f"v_lshrrev_b32 v{T0+4}, 5, v0", f"v_lshlrev_b32 v{T0}, 8, v{T0+4}", f"v_and_b32 v{T0+1}, 15, v0", f"v_lshl_add_u32 v{T0}, v{T0+1}, 4, v{T0}",
      f"v_and_b32 v{T0+1}, 11, v0", f"v_cmp_eq_u32 vcc, 0, v{T0+1}", f"v_mov_b32 v{T0+2}, 16", "s_nop 0",
      f"v_cndmask_b32 v{T0+2}, v{T0+2}, 0, vcc",
      f"v_add_u32 v{T0+3}, 1024, v{T0+2}", f"v_add_u32 v{T0+2}, 512, v{T0+2}",
      f"v_cndmask_b32 v{vVA}, v{T0+3}, v{T0}, s[{sEX}:{sEX+1}]", f"v_cndmask_b32 v{vVB}, v{T0+2}, v{T0}, s[{sEX}:{sEX+1}]",
      f"v_add_u32 v{vVA}, s60, v{vVA}", f"v_add_u32 v{vVB}, s60, v{vVB}")
    a(f"v_lshrrev_b32 v{T0}, 3, v0", f"v_lshlrev_b32 v{T0}, 10, v{T0}", f"v_bfe_u32 v{T0+1}, v0, 4, 1", f"v_lshlrev_b32 v{T0+2}, 2, v{T0+1}",
      f"v_and_b32 v{T0+3}, 7, v0", f"v_xor_b32 v{T0+2}, v{T0+2}, v{T0+3}", f"v_lshl_add_u32 v{vWO}, v{T0+2}, 4, v{T0}",
      f"v_add_u32 v{vWO2}, {8192-1024}, v{vWO}", f"s_mul_i32 s60, s{s_i}, {112*1024}", f"v_add_u32 v{vX2}, s60, v{vL16}")
    a(f"v_bfe_u32 v{T0+2}, v0, 2, 2", f"v_lshl_add_u32 v{T0}, v{T0+4}, 2, v{T0+2}", f"v_lshlrev_b32 v{T0}, 7, v{T0}",
      f"v_lshrrev_b32 v{T0+2}, 1, v{T0+2}", f"v_lshl_add_u32 v{T0}, v{T0+2}, 6, v{T0}",
      f"v_lshl_add_u32 v{T0}, v{T0+1}, 5, v{T0}", f"v_and_b32 v{T0+2}, 3, v0", f"v_lshl_add_u32 v{T0}, v{T0+2}, 3, v{T0}",
      f"s_lshl_b32 s60, s{s_kq}, 5", f"v_xor_b32 v{T0}, s60, v{T0}",
      f"v_add_u32 v{vWR}, s{s_lw}, v{T0}", f"v_xor_b32 v{vWR+1}, 64, v{vWR}")
    a(f"s_mul_i32 s60, s{S_W}, 14", "s_add_u32 s61, s60, 13", "s_lshr_b32 s60, s60, 2", "s_lshr_b32 s61, s61, 2",
      f"v_and_b32 v{vFO}, 7, v0", f"v_add_u32 v{vFO}, s60, v{vFO}", f"v_min_u32 v{vFO}, s61, v{vFO}",
      f"v_bfe_u32 v{T0}, v0, 3, 1", f"s_lshl_b32 s60, s{s_r64}, 1", f"v_add_u32 v{T0}, s60, v{T0}",
      f"v_lshl_add_u32 v{vFO}, v{T0}, 5, v{vFO}", f"v_lshlrev_b32 v{vFO}, {FS}, v{vFO}")

def ones_init(a):
    a(f"v_and_b32 v{T0}, 31, v0", f"v_mul_u32_u24 v{T0}, {TS}, v{T0}", f"v_lshrrev_b32 v{T0+1}, 5, v0", f"v_lshl_add_u32 v{T0}, v{T0+1}, 4, v{T0}",
      f"v_cmp_eq_u32 vcc, 0, v{T0+1}", f"v_mov_b32 v{T0+4}, 0x3f803f80", "s_nop 0", f"v_cndmask_b32 v{T0+4}, 0, v{T0+4}, vcc",
      f"v_mov_b32 v{T0+5}, v{T0+4}", f"v_mov_b32 v{T0+6}, v{T0+4}", f"v_mov_b32 v{T0+7}, v{T0+4}",
      f"ds_write_b128 v{T0}, {vr(T0+4,4)} offset:{AB+2048}")

def rd(it, vbuf):
    off = ((it // 8) % 2) * CS + (it % 8) * TS
    return [f"ds_read_b128 {vr(K,4)}, v{vKA} offset:{off}",
            f"ds_read_b128 {vr(V+8*vbuf,4)}, v{vVA} offset:{off+1024}",
            f"ds_read_b128 {vr(V+8*vbuf+4,4)}, v{vVB} offset:{off+1536}"]

def standin(a, part):
    if part == 0:
        a(f"ds_read_b128 {vr(P,4)}, v{vL16} offset:{AB}", *rd(0, 0))
    elif part == 1:
        a(mfma(S, P, Q, "0"), mfma(S+16, P, Q+4, "0"))
    else:
        for t in range(2):
            b = S + 16*t; m = T0 + t
            a(f"v_max3_f32 v{m}, v{b}, v{b+1}, v{b+2}")
            for r in range(3, 15, 2): a(f"v_max3_f32 v{m}, v{m}, v{b+r}, v{b+r+1}")
            a(f"v_max_f32 v{m}, v{m}, v{b+15}")
            a(f"v_mov_b32 v{T0+2}, v{m}", "s_nop 1", f"v_permlane32_swap_b32 v{m}, v{T0+2}", "s_nop 1", f"v_max_f32 v{m}, v{m}, v{T0+2}")
        a(f"v_min_f32 v{T0}, v{T0}, v{T0+1}")
        for r in range(16): a(f"v_sub_f32 v{C+r}, 0, v{T0}")
        a("s_nop 1", mfma(S, K, Q, C))

def unit_groups(a, vm, hf, n, u):
    vXO, vWQ, vGO, vUO = 11, 13, 28, 29
    slot = (n % 5) * SLOT
    typ, k = u
    G = []
    def mk(voff, sr_, pre):
        def f():
            dma(a, voff, sr_, f"s{T1}", pre, flags=" nt" if (OPT["nt"] >> (0 if sr_ == SA else 1 if sr_ == SBd else 2)) & 1 else "")
            if vm: vm.add(("u", n))
        return f
    if typ == "Q":
        pre0 = [f"s_add_u32 s{sQw}, s3, {k}", f"s_and_b32 s{sQw}, s{sQw}, 7", f"s_lshl_b32 s{sQx}, s{sQw}, 7", f"s_add_u32 s{sQx}, s{sQx}, s{sX}",
                f"s_mul_i32 s{sQw}, s{sQw}, {64*3072}"]
        for jj in range(2):
            G.append(mk(vXO + jj, SA, (pre0 if jj == 0 else []) + [f"s_add_u32 m0, s{sLx}, {slot + jj*1024}", f"s_add_u32 s{T1}, s{sQx}, {jj*8192}"]))
        for i in ((0,) if hf == 0 else (1, 2)):
            G.append(mk(vWQ + i, SBd, [f"s_add_u32 m0, s{sLw}, {slot + 16384 + i*1024}", f"s_add_u32 s{T1}, s{sWq}, s{sQw}"]))
    else:
        pre0 = [f"s_add_u32 s{sGo}, s3, {k}", f"s_and_b32 s{sGo}, s{sGo}, 7", f"s_mul_i32 s{sGo}, s{sGo}, {64*3584}", f"s_add_u32 s{sGo}, s{sGo}, s{sGU}"]
        for h in range((4 if hf == 1 else 0) if OPT["gload"] else 2):
            G.append(mk(vGO, SCd, (pre0 if h == 0 else []) + [f"s_add_u32 m0, s{sLg}, {slot + h*1024}", f"s_add_u32 s{T1}, s{sGo}, {h*4*3584}"]))
            G.append(mk(vUO, SD, [f"s_add_u32 m0, s{sLg}, {slot + 16384 + h*1024}", f"s_add_u32 s{T1}, s{sGo}, {h*4*3584}"]))
    return G

def parse_seq(txt):
    seq = []; c = {"Q": 0, "G": 0}
    for ch in txt: seq.append((ch, c[ch])); c[ch] += 1
    return seq

def gemm_phase(a, hf, swap, up, L_attn):
    seq = parse_seq(SEQ[0] if up else "Q"*8)
    N = len(seq)
    vm = VM()
    vm.add(("u", 0), 3 + hf)
    vXA, vWA, vGA = 2, 6, 7
    vT = 24
    nb = 2 if hf == 0 else 1
    b0 = 0 if hf == 0 else 2
    lastQ = max(i for i, u in enumerate(seq) if u[0] == "Q")
    if up:
        for k in range(NXR, 8): assert seq.index(("G", k-NXR)) < seq.index(("Q", k))
        for k in range(8): assert seq.index(("Q", k)) < seq.index(("G", k))
        assert seq.index(("G", 4)) < N-2 and seq.index(("G", 5)) < N-1
    dist = OPT["dq"]
    fifo = [(n, f) for n in range(1, N) for f in unit_groups(a, vm, hf, n, seq[n])]
    def pump(n, cnt, upto=None):
        while fifo and fifo[0][0] <= n + 4 and (cnt > 0 or (upto is not None and fifo[0][0] <= upto)):
            fifo.pop(0)[1](); cnt -= 1
    pump(-1, 0, dist - 1)
    a.stamp("issued")
    a(f"v_mov_b32 v{vT}, 0", f"s_mov_b32 s{T1}, {WS_EP:#x}",
      f"buffer_load_dword v{vT+1}, v{vT}, s[{SWS}:{SWS+3}], s{T1} offen sc1")
    vm.add("E")
    a(f"s_lshl_b32 s{T1}, s{s_row}, 10",
      f"buffer_load_dwordx4 v[16:19], v{vL16}, s[72:75], 0 offen",
      f"buffer_load_dwordx4 v[20:23], v{vL16}, s[{SA}:{SA+3}], s{T1} offen")
    vm.add("G", 2)
    late_scalars(a)
    a("v_and_b32 v30, 31, v0", "v_lshrrev_b32 v31, 5, v0", "v_bfe_u32 v32, v0, 1, 3", "v_xor_b32 v32, v32, v31",
      f"s_lshl_b32 s{T1}, s{s_rb}, 12", "v_lshlrev_b32 v33, 7, v30", f"v_add_u32 v33, s{T1}, v33")
    for s in range(4): a(f"v_xor_b32 v34, {2*s}, v32", f"v_lshl_add_u32 v{vXA+s}, v34, 4, v33")
    a("v_bfe_u32 v32, v0, 2, 2", "v_lshl_add_u32 v33, v31, 3, v32", "v_mul_u32_u24 v34, 192, v33",
      "v_bfe_u32 v35, v0, 4, 1", "v_lshl_add_u32 v34, v35, 5, v34", "v_and_b32 v36, 3, v0", "v_lshl_add_u32 v34, v36, 3, v34",
      f"v_add_u32 v{vWA}, {16384 + b0*64}, v34")
    a("v_lshlrev_b32 v33, 8, v33", "v_lshl_add_u32 v33, v35, 14, v33", "v_lshl_add_u32 v33, v36, 3, v33", "v_bfe_u32 v32, v0, 2, 3")
    for f in range(4): a(f"v_xor_b32 v34, {4*hf+f}, v32", f"v_lshl_add_u32 v{vGA+f}, v34, 5, v33")
    cur = {"Q": 0, "G": 0}
    def rebase(n):
        typ = seq[n][0]; slot = n % 5
        if not (cur[typ] <= slot <= cur[typ] + 1):
            d = ((slot - cur[typ]) * SLOT) & 0xffffffff
            for r in (list(range(vXA, vXA+4)) + [vWA] if typ == "Q" else range(vGA, vGA+4)): a(f"v_add_u32 v{r}, {d:#x}, v{r}")
            cur[typ] = slot
        return (slot - cur[typ]) * SLOT
    def xreg(k, s): return XR + 16*(k % NXR) + 4*s
    def reads(n, s, off):
        typ, k = seq[n]; p = s % 2; R = []
        if typ == "Q":
            R.append(f"ds_read_b128 {vr(xreg(k,s),4)}, v{vXA+s} offset:{off}")
            for b in range(nb):
                for t in range(2):
                    R.append(f"ds_read_b64_tr_b16 {vr(WF+8*s+4*b+2*t,2)}, v{vWA} offset:{off+(16*s+4*t)*192+b*64}")
        else:
            for f in range(4):
                for t in range(2):
                    R.append(f"ds_read_b64_tr_b16 {vr(WF+16*p+4*f+2*t,2)}, v{vGA+f} offset:{off+(16*s+4*t)*256}")
        return R
    def mf(n, s):
        typ, k = seq[n]; p = s % 2; x = xreg(k, s); c = "0" if (k == 0 and s == 0) else None
        if typ == "Q":
            return [mfma(ACCQ+16*b, x, WF+8*s+4*b, c) if swap else mfma(ACCQ+16*b, WF+8*s+4*b, x, c) for b in range(nb)]
        return [mfma(ACC+16*f, WF+16*p+4*f, x, c) for f in range(4)]
    def qkv_epilogue():
        ST = []
        def mk(line):
            def f(): a(line); vm.add("Q")
            return f
        for b in range(nb):
            o1, o2 = 72 + 2*b, 73 + 2*b
            a(f"s_mul_i32 s{T1}, s{s_ct}, 3", f"s_add_u32 s{T1}, s{T1}, {b0+b}", f"s_and_b32 s{T2}, s{T1}, 15", f"s_lshl_b32 s{T2}, s{T2}, 7",
              f"s_lshl_b32 s{T3}, s{s_rt}, 2", f"s_add_u32 s{T3}, s{T3}, s{s_rb}", f"s_add_u32 s{T2}, s{T2}, s{T3}")
            A = ACCQ + 16*b; Dd = A
            if not swap:
                a(f"s_lshl_b32 s{T3}, s{T2}, 10", f"s_lshl_b32 s{T2}, s{T2}, 11", f"s_add_u32 s{T2}, s{T2}, {WS_KV:#x}",
                  f"s_cmp_lt_u32 s{T1}, 16", f"s_cselect_b32 s{o1}, s{T3}, s{T2}",
                  f"s_cselect_b32 s{T3}, 1, 2", f"s_cselect_b32 s{T4}, {QSCALE:#x}, 1.0",
                  f"s_lshl_b32 s{T3}, s{T3}, 16", f"s_add_u32 s{o2}, s{T3}, s{o1}")
                for r in range(16): a(f"v_mul_f32 v{A+r}, s{T4}, v{A+r}")
                va = vL16
            else:
                a(f"s_lshl_b32 s{T2}, s{T2}, 11", f"s_add_u32 s{o1}, s{T2}, {WS_KV+1024:#x}", f"s_add_u32 s{o2}, s{o1}, 512")
                if b == 0:
                    a("v_bfe_u32 v30, v0, 4, 1", "v_lshlrev_b32 v30, 17, v30", "v_lshrrev_b32 v31, 5, v0", "v_lshl_add_u32 v30, v31, 8, v30",
                      "v_and_b32 v31, 15, v0", "v_lshl_add_u32 v15, v31, 4, v30")
                va = 15
            for j in range(8): a(f"v_cvt_pk_bf16_f32 v{Dd+j}, v{A+2*j}, v{A+2*j+1}")
            ST.append(mk(f"buffer_store_dwordx4 {vr(Dd,4)}, v{va}, s[{SWS}:{SWS+3}], s{o1} offen{SC}"))
            ST.append(mk(f"buffer_store_dwordx4 {vr(Dd+4,4)}, v{va}, s[{SWS}:{SWS+3}], s{o2} offen{SC}"))
        return ST
    def gate_compute():
        acc = vT + 2
        a(f"s_mov_b32 s{T4}, 0xffff0000")
        for j in range(4):
            a(f"v_lshlrev_b32 v30, 16, v{16+j}", f"v_and_b32 v{16+j}, s{T4}, v{16+j}",
              f"v_lshlrev_b32 v31, 16, v{20+j}", f"v_and_b32 v{20+j}, s{T4}, v{20+j}",
              "v_mul_f32 v30, v30, v31", f"v_mul_f32 v31, v{16+j}, v{20+j}",
              "v_cvt_pk_bf16_f32 v30, v30, v31", f"v_and_b32 v31, s{T4}, v30", "v_lshlrev_b32 v30, 16, v30")
            if j == 0: a(f"v_add_f32 v{acc}, v30, v31")
            else: a(f"v_add_f32 v{acc}, v{acc}, v30", f"v_add_f32 v{acc}, v{acc}, v31")
        for sh in (8, 4, 2, 1):
            a("s_nop 1", f"v_add_f32_dpp v{acc}, v{acc}, v{acc} row_ror:{sh} row_mask:0xf bank_mask:0xf")
        a("s_nop 1")
        for q in range(4): a(f"v_readlane_b32 s{T1+q}, v{acc}, {16*q}")
        a("s_nop 1", f"v_mov_b32 v{acc}, s{T1}", f"v_add_f32 v{acc}, s{T2}, v{acc}", f"v_add_f32 v{acc}, s{T3}, v{acc}", f"v_add_f32 v{acc}, s{T4}, v{acc}")
        a(f"v_cvt_pk_bf16_f32 v{acc}, v{acc}, v{acc}", f"v_lshlrev_b32 v{acc}, 16, v{acc}",
          f"v_mul_f32 v{acc}, {(LOG2E | 0x80000000):#x}, v{acc}", f"v_exp_f32 v{acc}, v{acc}", "s_nop 0",
          f"v_add_f32 v{acc}, 1.0, v{acc}", f"v_rcp_f32 v{acc}, v{acc}", "s_nop 0",
          f"v_cvt_pk_bf16_f32 v{acc}, v{acc}, v{acc}", f"v_lshlrev_b32 v{acc}, 16, v{acc}")
    def tag_finish_and_gate_store():
        acc = vT + 2
        a(f"v_readfirstlane_b32 s{S_TAG}, v{vT+1}", f"v_readfirstlane_b32 s{T1}, v16", "s_nop 3",
          f"s_mul_i32 s{S_TAG}, s{S_TAG}, 1664525", f"s_add_u32 s{S_TAG}, s{S_TAG}, 1013904223", f"s_or_b32 s{S_TAG}, s{S_TAG}, 1",
          f"s_cmp_lg_u32 s{T1}, 0", f"s_cselect_b32 s{S_TAG}, s{T1}, s{S_TAG}",
          f"s_lshl_b32 s{T1}, s{s_row}, 3", f"s_add_u32 s{T1}, s{T1}, {WS_GG:#x}",
          f"v_mov_b32 v{acc+1}, s{S_TAG}", "s_mov_b64 exec, 1",
          f"buffer_store_dwordx2 v[{acc}:{acc+1}], v{vT}, s[{SWS}:{SWS+3}], s{T1} offen sc1", "s_mov_b64 exec, -1")
        vm.add("g")
        for j in range(4): a(f"v_mov_b32 v{20+j}, -1")
        a(f"buffer_store_dwordx4 v[20:23], v{vL16}, s[{SWS}:{SWS+3}], s{s_of} offen{SC}")
        vm.add("P")
    def publish_q():
        if hf == 0:
            Lf = a.newlabel("QF"); a(f"s_cmp_lg_u32 s{S_W}, 0", f"s_cbranch_scc1 {Lf}"); set_flag(a, s_fq, 30)
            a(f"s_lshl_b32 s{T1}, s2, {FS}", f"s_add_u32 s{T1}, s{T1}, {WS_FO:#x}"); set_flag(a, T1, 30)
            a.label(Lf)
    prev = None; ST = []
    gpos = [i for i, u in enumerate(seq) if u[0] == 'G'] if up else [1, 2]
    qpub = lastQ + OPT['qpo']
    for n in range(N):
        typ = seq[n][0]
        vw(a, vm, lambda t: t == ("u", n) or (n == qpub and t == "Q") or (n == N-1 and up and OPT["early"] and t == ("c", 0)), " lgkmcnt(0)" if n else "")
        a.stamp(f"pre{n}")
        a("s_barrier")
        a.stamp(f"b{n}")
        off = rebase(n)
        for s in range(4):
            if typ == "Q":
                nr = 1 + 2*nb
                if s == 0:
                    M = mf(*prev) if prev else []
                    a(*reads(n, 0, off)); a(*M[:2]) if M else None
                    a(*reads(n, 1, off)); a(*M[2:]) if len(M) > 2 else None
                    a(*reads(n, 2, off))
                    if 4*nr > 15: a(f"s_waitcnt lgkmcnt({15 - nr})")
                    a(*reads(n, 3, off))
                    pump(n, OPT["rq"])
                else:
                    a(f"s_waitcnt lgkmcnt({(4-s)*nr})"); a(*mf(n, s-1))
                    pump(n, 0, n + dist if s == 3 else None)
            else:
                R = reads(n, s, off); M = mf(*prev) if prev else []
                if s > 0: a("s_waitcnt lgkmcnt(0)")
                rg = OPT["rg"] // 4 + (1 if s < OPT["rg"] % 4 else 0)
                for j in range(max(len(M), 2)):
                    if j < len(M): a(M[j])
                    if j < 2: a(*R[4*j:4*j+4])
                    if j == 2:
                        if ST: ST.pop(0)()
                        pump(n, rg // 2)
                if ST and OPT["st2"]: ST.pop(0)()
                pump(n, rg - (rg // 2 if len(M) > 2 else 0), n + dist if s == 3 else None)
            prev = (n, s)
            if n == lastQ + 1 and s == 1:
                a.stamp("qkv")
                ST = qkv_epilogue()
            if n == qpub and s == 0:
                assert not ST
                publish_q()
            if (n, s) == ((gpos[0], 1) if hf == 0 else (gpos[0], 3)):
                vw(a, vm, lambda t: t == "G"); gate_compute()
                srd(a, 72, S_DBG, 256)
                a(f"buffer_load_dword v16, v{vT}, s[72:75], 0 offen sc1"); vm.add("D")
            if s == 2 and n == 6:
                vw(a, vm, lambda t: t == "D"); tag_finish_and_gate_store()
                if hf == 0:
                    L = a.newlabel("NOUPD")
                    a(f"s_cmp_lg_u32 s{s_row}, 1", f"s_cbranch_scc1 {L}",
                      f"v_mov_b32 v30, s{S_TAG}", f"s_mov_b32 s{T1}, {WS_EP:#x}", "s_mov_b64 exec, 1",
                      f"buffer_store_dword v30, v{vT}, s[72:75], 0 offen sc1", "s_waitcnt vmcnt(0)",
                      f"buffer_store_dword v30, v{vT}, s[{SWS}:{SWS+3}], s{T1} offen sc1", "s_mov_b64 exec, -1", "s_waitcnt vmcnt(0)")
                    a.label(L)
            if up:
                kv = OPT["kvs"]
                if 4*n+s == kv - 3: qflag_load(a, vm)
                if 4*n+s == kv: attn_prefetch(a, vm, 0)
                if n == N-2 and s == 1: attn_addr_setup(a)
                if n == N-2 and s == 2: ones_init(a)
                if OPT["early"]:
                    if n == N-1 and s == 0: standin(a, 0); attn_prefetch(a, vm, 1)
                    if n == N-1 and s == 1: standin(a, 1)
                    if n == N-1 and s == 3: standin(a, 2)
    a("s_waitcnt lgkmcnt(0)"); a(*mf(*prev))
    if up:
        a.stamp("up")
        if OPT["bal"]: a("s_setprio 3")
        a(f"s_lshl_b32 s{T1}, s{s_rt}, 2", f"s_add_u32 s{T1}, s{T1}, s{s_rb}", f"s_mul_i32 s{T1}, s{T1}, 112",
          f"s_lshl_b32 s{T2}, s{s_ft}, 3", f"s_add_u32 s{T1}, s{T1}, s{T2}", f"s_lshl_b32 s{T1}, s{T1}, 10",
          f"s_add_u32 s{T1}, s{T1}, {WS_HF + hf*4096:#x}", "s_nop 4")
        if not OPT["early"]:
            vw(a, vm, lambda t: t == ("c", 0)); a("s_barrier")
            a.stamp("kv")
            standin(a, 0); attn_prefetch(a, vm, 1)
        for f in range(4):
            A = ACC + 16*f
            for j in range(0, 8, 2): a(f"v_pk_mul_f32 {vr(A+j,2)}, {vr(A+j,2)}, {vr(A+8+j,2)}")
            for j in range(4): a(f"v_cvt_pk_bf16_f32 v{A+8+j}, v{A+2*j}, v{A+2*j+1}")
            a(f"buffer_store_dwordx4 {vr(A+8,4)}, v{vL16}, s[{SWS}:{SWS+3}], s{T1} offen offset:{f*1024}{SC}")
            if not OPT["early"]:
                if f == 0: a("s_waitcnt lgkmcnt(0)"); standin(a, 1)
                if f == 2: standin(a, 2)
        if not OPT["early"]: a("s_nop 3")
        vm.add("h", 4)
        assert vm.q == [("c", 1)]*4 + ["h"]*4, vm.q
    else:
        a("s_nop 7", "s_nop 3")
        for f in qkv_epilogue(): f()
        a("s_waitcnt vmcnt(0)", "s_barrier")
        publish_q()
        vm = VM(); qflag_load(a, vm); attn_addr_setup(a); ones_init(a); attn_prefetch(a, vm, 0); attn_prefetch(a, vm, 1)
        a("s_waitcnt vmcnt(0) lgkmcnt(0)", "s_barrier")
        standin(a, 0); a("s_waitcnt lgkmcnt(0)"); standin(a, 1); a("s_nop 7", "s_nop 3"); standin(a, 2); a("s_nop 7", "s_nop 3")
    a(f"s_branch {L_attn}")

def issue_chunk(a, cslot):
    for h in range(2):
        a(f"s_add_u32 m0, s{s_lkv}, {cslot*CS + 4*h*TS}")
        if h == 0: a("s_nop 0")
        else: a(f"s_add_u32 s{s_src}, s{s_src}, 8192")
        a(f"buffer_load_dwordx4 v{vL16}, s[{SWS}:{SWS+3}], s{s_src} offen{SC} lds",
          f"buffer_load_dwordx4 v{vL16}, s[{SWS}:{SWS+3}], s{s_src} offen offset:1024{SC} lds")
    a(f"s_add_u32 s{s_src}, s{s_src}, 8192")

QMASK = (1 << 34) - 1
def qflag_load(a, vm):
    a(f"s_lshr_b32 s{T1}, s{s_head}, 1", "v_lshrrev_b32 v30, 4, v0", "v_add_u32 v30, 1, v30", "v_cmp_gt_u32 vcc, 3, v30", "s_nop 1",
      "v_cndmask_b32 v30, 0, v30, vcc", "v_lshlrev_b32 v30, 4, v30", f"v_add_u32 v30, s{T1}, v30",
      "v_mul_u32_u24 v30, 43691, v30", "v_lshrrev_b32 v30, 17, v30",
      "v_and_b32 v31, 15, v0", f"s_lshl_b32 s{T2}, s{s_qb}, 1", f"v_add_u32 v24, s{T2}, v31", "v_cndmask_b32 v31, v24, v31, vcc",
      "v_lshl_add_u32 v30, v30, 4, v31", f"v_lshlrev_b32 v30, {FS}, v30")
    flag_load(a, vm, WS_FQ, 30, QMASK, 31)

def flag_load(a, vm, base, voff, mask, vt):
    a(f"s_mov_b32 s{T1}, {base:#x}", f"s_mov_b32 exec_lo, {mask & 0xffffffff:#x}", f"s_mov_b32 exec_hi, {mask >> 32:#x}",
      f"buffer_load_dword v{vt}, v{voff}, s[{SWS}:{SWS+3}], s{T1} offen sc1", "s_mov_b64 exec, -1")
    vm.add("F")

def flag_check(a, vm, base, voff, mask, vt):
    L = a.newlabel("FOK")
    a(f"s_waitcnt vmcnt({vm.wait_for(lambda t: t == 'F')})",
      f"v_cmp_ne_u32 vcc, s{S_TAG}, v{vt}", f"s_and_b32 vcc_lo, vcc_lo, {mask & 0xffffffff:#x}", f"s_and_b32 vcc_hi, vcc_hi, {mask >> 32:#x}",
      f"s_or_b32 s{T1}, vcc_lo, vcc_hi", f"s_cbranch_scc0 {L}", f"s_mov_b32 s{T1}, {base:#x}")
    poll(a, T1, voff, mask, vt, T2, staged=False)
    a.label(L)

def attn_prefetch(a, vm, which):
    if which == 0:
        flag_check(a, vm, WS_FQ, 30, QMASK, 31)
        a(f"s_xor_b32 s{T1}, s{s_q}, 1024",
          f"buffer_load_dwordx4 {vr(Q,4)}, v{vL16}, s[{SWS}:{SWS+3}], s{T1} offen{SC}",
          f"buffer_load_dwordx4 {vr(Q+4,4)}, v{vL16}, s[{SWS}:{SWS+3}], s{s_q} offen{SC}")
        vm.add("q", 2)
    issue_chunk(a, which)
    vm.add(("c", which), 4)

def attention_phase(a, end_label):
    vm = VM(); vm.add(("c", 1), 4); vm.add("h", 4)
    def issue_w(n):
        slot = n % D
        sr_, base = (SA, s_wd) if n < NK else (SBd, s_wo)
        a(f"s_add_u32 m0, s{s_lw}, {slot*2048}")
        if n not in (0, NK): a(f"s_add_u32 s{base}, s{base}, 16384")
        else: a("s_nop 0")
        fl = " nt" if OPT["nt"] & 8 else ""
        dma(a, vWO, sr_, f"s{base}", [], flags=fl)
        dma(a, vWO2, sr_, f"s{base}", [], imm=1024, flags=fl)
        vm.add(("w", n), 2)
    def issue_x(n):
        slot = n % D
        if n and n % 4 == 0: a(f"s_add_u32 s{s_x0}, s{s_x0}, 4096")
        a(f"buffer_load_dwordx4 {vr(XD+8*slot,4)}, v{vX1}, s[{SWS}:{SWS+3}], s{s_x0} offen offset:{(n%4)*1024}{SC}",
          f"buffer_load_dwordx4 {vr(XD+8*slot+4,4)}, v{vX2}, s[{SWS}:{SWS+3}], s{s_x0} offen offset:{(n%4)*1024}{SC}")
        vm.add(("x", n), 2)
    a.stamp("loop")
    c0 = OPT["dstart"] + 2
    c = [c0 + (n * (OPT['dend'] - c0)) // (NK - 1) for n in range(NK)]
    assert len(set(c)) == NK and c[-1] <= 31
    done = {}
    xnext = [D]
    dq = []
    first_pv = [True, True]
    XO = AB + 2*CS; XDN = 32768
    def gate_check():
        Lgok = a.newlabel("GOK"); Lgr = a.newlabel("GRE")
        vw(a, vm, lambda t: t == "g")
        a("s_mov_b32 s62, 0x80000")
        a.label(Lgr)
        a(f"v_cmp_ne_u32 vcc, s{S_TAG}, v{vG1+1}", f"v_cmp_ne_u32 s[60:61], s{S_TAG}, v{vG2+1}", "s_or_b64 vcc, vcc, s[60:61]", f"s_cbranch_scc0 {Lgok}",
          f"v_and_b32 v{T0}, 31, v0", f"v_lshlrev_b32 v{T0}, 3, v{T0}",
          f"s_sub_u32 s60, s{s_of}, {WS_OF:#x}", "s_lshr_b32 s60, s60, 15", "s_lshl_b32 s60, s60, 8", f"s_add_u32 s60, s60, {WS_GG:#x}",
          f"s_lshl_b32 s61, s{s_r64}, 1", f"s_add_u32 s61, s61, s{s_i}", "s_lshl_b32 s61, s61, 8", f"s_add_u32 s61, s61, {WS_GG:#x}",
          f"buffer_load_dwordx2 v[{vG1}:{vG1+1}], v{T0}, s[{SWS}:{SWS+3}], s60 offen sc1",
          f"buffer_load_dwordx2 v[{vG2}:{vG2+1}], v{T0}, s[{SWS}:{SWS+3}], s61 offen sc1",
          "s_waitcnt vmcnt(0)", "s_sub_u32 s62, s62, 1", f"s_cbranch_scc0 {Lgr}")
        a.label(Lgok)
        a(f"v_sub_f32 v{vG2}, 1.0, v{vG2}", f"v_cvt_pk_bf16_f32 v{vG2}, v{vG2}, v{vG2}", f"v_lshlrev_b32 v{vG2}, 16, v{vG2}")
    last = [False]
    def phase(t, vb, smf, mid, pend, wait):
        Sb = S + 16*t; Ob = O + 16*t
        for tok in ORDER.split():
            if tok[0] == 'e': r = int(tok[1:]); a(f"v_exp_f32 v{Sb+r}, v{Sb+r}")
            elif tok[0] == 'c':
                k = int(tok[1:]); a(f"v_cvt_pk_bf16_f32 v{P+k}, v{Sb+2*k}, v{Sb+2*k+1}")
                if last[0] and k == 4:
                    a(f"ds_write_b128 v{vXS}, {vr(O,4)}", f"ds_write_b128 v{vXS}, {vr(O+4,4)} offset:1024",
                      f"v_lshrrev_b32 v{T0}, 2, v{vL16}", f"v_sub_u32 v{T0+1}, v{vXS}, v{vL16}", f"v_add_u32 v{T0+1}, v{T0+1}, v{T0}",
                      f"ds_write_b32 v{T0+1}, v{O+8} offset:2048",
                      f"v_sub_u32 v{T0+2}, v{vXR}, v{vL16}", f"v_add_u32 v{T0+2}, v{T0+2}, v{T0}")
                ready = [d for d in dq if d[0] <= 0]
                if ready and (k == 3 or (k == 6 and len(ready) > OPT["dback"])):
                    d = dq.pop(0); a(d[1])
                    if not any(e[2] == d[2] for e in dq): done[d[2]] = True
            elif tok == 'S':
                if wait: a("s_waitcnt lgkmcnt(0)")
                if smf: a(smf)
            elif tok == 'N':
                if pend: a(pend)
            elif tok == 'P':
                a(mfma(Ob, V+8*vb, P, "0" if first_pv[t] else None)); first_pv[t] = False
            elif tok == 'M': mid()
        for d in dq: d[0] -= 1
        return mfma(Ob, V+8*vb+4, P+4)
    pend = None
    for it in range(32):
        vb = it % 2
        def midA():
            if it % 8 == 7 and it < 31:
                ch = it // 8 + 1
                vw(a, vm, lambda t: t == ('c', ch)); a("s_barrier")
                if ch + 1 < 4:
                    issue_chunk(a, (ch + 1) % 2); vm.add(("c", ch + 1), 4)
            if it < 31: a(*rd(it + 1, 1 - vb))
            if it in c:
                n = c.index(it); slot = n % D; p = n % 2
                assert n < 2 or done.get(n - 2), (n, it)
                vw(a, vm, lambda t: t in (('x', n), ('w', n)))
                for cb in range(2):
                    for t in range(2):
                        a(f"ds_read_b64_tr_b16 {vr(WD+8*p+4*cb+2*t,2)}, v{vWR+cb} offset:{slot*2048+t*1024}")
                for i in range(2):
                    for cb in range(2):
                        dq.append([1, mfma(AD+16*(2*i+cb), WD+8*p+4*cb, XD+8*slot+4*i, "0" if n == 0 else None), n])
        def midB():
            if OPT["wstart"] <= it < OPT["wstart"] + D:
                if it == OPT["wstart"] and OPT["early"]: a("s_barrier")
                issue_w(it - OPT["wstart"])
            if it == OPT["hpub"]:
                L = a.newlabel("NOH")
                a(f"s_waitcnt vmcnt({vm.wait_for(lambda t: t == 'h')})", f"s_cmp_eq_u32 s{s_up}, 0", f"s_cbranch_scc1 {L}")
                set_flag(a, s_fh, T0)
                a.label(L)
            if it == OPT["dstart"] - 1: flag_load(a, vm, WS_FH, vFO, HMASK, vFO+1)
            if it == OPT["dstart"]:
                flag_check(a, vm, WS_FH, vFO, HMASK, vFO+1)
                for n in range(D): issue_x(n)
            if it in c and c.index(it) + D < NK + 4: issue_w(c.index(it) + D)
            if xnext[0] < NK and done.get(xnext[0] - D): issue_x(xnext[0]); xnext[0] += 1
            if it == 0:
                a(f"s_xor_b32 s60, s{s_i}, 1", f"s_mul_i32 s60, s60, {112*1024}", f"v_add_u32 v{vX1}, s60, v{vL16}",
                  f"s_mul_i32 s60, s{S_W}, 2560", f"s_add_u32 s60, s60, {XO}", f"v_add_u32 v{vXS}, s60, v{vL16}",
                  f"s_xor_b32 s60, s{S_W}, 4", "s_mul_i32 s60, s60, 2560", f"s_add_u32 s60, s60, {XO}", f"v_add_u32 v{vXR}, s60, v{vL16}")
            if it == 30:
                assert c[-1] < 30
                srd(a, SCd, S_OUT, 2048*1024)
                a(f"s_lshl_b32 s60, s{s_i}, 13", f"v_subrev_u32 v{vWR}, s60, v{vWR}", f"v_xor_b32 v{vWR+1}, 64, v{vWR}")
                a(f"s_lshl_b32 s60, s{s_r64}, 1", f"s_add_u32 s60, s60, s{s_i}",
                  "s_lshl_b32 s61, s60, 5", f"s_lshl_b32 s62, s{s_kq}, 3", "s_add_u32 s61, s61, s62",
                  "s_lshl_b32 s54, s61, 10", f"s_add_u32 s54, s54, {WS_OF:#x}", "s_add_u32 s55, s54, 4096",
                  "s_lshl_b32 s56, s60, 15", f"s_lshl_b32 s62, s{s_c64}, 7", "s_add_u32 s56, s56, s62", f"s_lshl_b32 s62, s{s_kq}, 5", "s_add_u32 s56, s56, s62")
            if it == 22:
                a(f"s_lshl_b32 s60, s{s_kq}, 1", f"s_lshr_b32 s61, s{s_r64}, 2", "s_lshl_b32 s61, s61, 5", "s_add_u32 s60, s60, s61",
                  f"v_bfe_u32 v{vFO}, v0, 2, 1", f"v_and_b32 v{T0}, 3, v0", f"v_lshl_add_u32 v{vFO}, v{T0}, 3, v{vFO}", f"v_add_u32 v{vFO}, s60, v{vFO}",
                  f"v_lshlrev_b32 v{vFO}, {FS}, v{vFO}")
                flag_load(a, vm, WS_FO, vFO, 0xff, vFO+1)
            if it == 24: flag_check(a, vm, WS_FO, vFO, 0xff, vFO+1); gate_check()
            if it == 20:
                a(f"v_and_b32 v{T0}, 31, v0", f"v_lshlrev_b32 v{T0}, 3, v{T0}",
                  f"s_lshl_b32 s60, s{s_qb}, 3", f"s_lshl_b32 s61, s{s_qw}, 1", "s_add_u32 s60, s60, s61", f"s_add_u32 s60, s60, s{s_kh}",
                  "s_lshl_b32 s60, s60, 8", f"s_add_u32 s60, s60, {WS_GG:#x}",
                  f"s_lshl_b32 s61, s{s_r64}, 1", f"s_add_u32 s61, s61, s{s_i}", "s_lshl_b32 s61, s61, 8", f"s_add_u32 s61, s61, {WS_GG:#x}",
                  f"buffer_load_dwordx2 v[{vG1}:{vG1+1}], v{T0}, s[{SWS}:{SWS+3}], s60 offen sc1",
                  f"buffer_load_dwordx2 v[{vG2}:{vG2+1}], v{T0}, s[{SWS}:{SWS+3}], s61 offen sc1")
                vm.add("g", 2)
        a.stamp(f"it{it}")
        if OPT["bal"] == 1: a(f"s_setprio {3 - it % 4}")
        if OPT["bal"] == 2:
            if it < 8:
                if it in (0, 2, 5): a(f"s_setprio {2 - (0, 2, 5).index(it)}")
            elif it % 2 == 0: a(f"s_setprio {3 - (it % 8) // 2}")
        pend = phase(0, vb, mfma(S+16, K, Q+4, C), midA, pend, False)
        last[0] = it == 31
        pend = phase(1, vb, mfma(S, K, Q, C) if it < 31 else None, midB, pend, True)
    a("s_nop 1", pend)
    for d in dq: a(d[1])
    a.stamp("loopend")
    OK_ = O + 16; QK_ = Q + 4
    a("s_waitcnt vmcnt(0) lgkmcnt(0)", "s_barrier")
    a(f"ds_read_b128 {vr(S,4)}, v{vXR}", f"ds_read_b128 {vr(S+4,4)}, v{vXR} offset:1024", f"ds_read_b32 v{S+8}, v{T0+2} offset:2048")
    a(f"s_lshl_b32 s60, s{S_W}, 13", f"s_add_u32 s60, s60, {XDN}", f"v_add_u32 v{vKA}, s60, v{vL16}", f"v_xor_b32 v{vVB}, 0x2000, v{vKA}",
      "s_mov_b32 s62, 0x5d800000", "s_mov_b32 s63, 0x7e800000", "s_nop 1")
    a("s_waitcnt lgkmcnt(0)")
    for j in range(9): a(f"v_add_f32 v{OK_+j}, v{OK_+j}, v{S+j}")
    Lfb = a.newlabel("ATT_fallback"); Lfin = a.newlabel("ATT_fin")
    a(f"v_add_f32 v{T0}, |v{OK_}|, |v{OK_+1}|", f"v_add_f32 v{T0+1}, |v{OK_+2}|, |v{OK_+3}|",
      f"v_add_f32 v{T0+2}, |v{OK_+4}|, |v{OK_+5}|", f"v_add_f32 v{T0+3}, |v{OK_+6}|, |v{OK_+7}|",
      f"v_add_f32 v{T0}, v{T0}, v{T0+1}", f"v_add_f32 v{T0+2}, v{T0+2}, v{T0+3}", f"v_cmp_nlt_f32 vcc, v{OK_+8}, s62",
      f"v_add_f32 v{T0}, v{T0}, v{T0+2}",
      f"v_cmp_nlt_f32 s[60:61], v{T0}, s63",
      "s_or_b64 vcc, vcc, s[60:61]",
      f"s_cbranch_scc1 {Lfb}")
    a.label(Lfin)
    a(f"v_rcp_f32 v{T0}, v{OK_+8}", "s_nop 0", f"v_mul_f32 v{T0}, v{T0}, v{vG1}")
    for j in range(8): a(f"v_mul_f32 v{OK_+j}, v{OK_+j}, v{T0}")
    for j in range(4): a(f"v_cvt_pk_bf16_f32 v{P+j}, v{OK_+2*j}, v{OK_+2*j+1}")
    for j in range(4): a(f"v_min_u32 v{P+j}, -2, v{P+j}")
    a(f"buffer_store_dwordx4 {vr(P,4)}, v{vL16}, s[{SWS}:{SWS+3}], s{s_of} offen{SC}")
    a.stamp("oflag")
    AK = AD + 32
    WO = 128; XF = 32
    def xload(st): return f"buffer_load_dwordx4 {vr(XF+4*st,4)}, v{vL16}, s[{SWS}:{SWS+3}], s{54 if st<4 else 55} offen offset:{(st%4)*1024}{SC}"
    for st in range(8):
        a(f"ds_write_b128 v{vKA}, {vr(AD+4*st,4)} offset:{1024*st}")
    for st in range(8):
        if st % 2 == 0: a("s_waitcnt lgkmcnt(6)")
        for cb in range(2):
            for t in range(2):
                a(f"ds_read_b64_tr_b16 {vr(WO+8*st+4*cb+2*t,2)}, v{vWR+cb} offset:{(st//4)*8192+((NK+st%4)%D)*2048+t*1024}")
        for j in range(4*st, 4*st+4): a(f"v_mul_f32 v{AK+j}, v{AK+j}, v{vG2}")
    a(f"v_and_b32 v{T0}, 31, v0", f"v_lshlrev_b32 v{T0}, 10, v{T0}", f"v_lshrrev_b32 v{T0+1}, 5, v0", f"v_lshl_add_u32 v{vVA}, v{T0+1}, 4, v{T0}",
      f"s_lshl_b32 s60, s{s_i}, 17")
    for j in range(4):
        a(f"s_xor_b32 s61, s{s_kq}, {j}", f"s_mul_i32 s61, s61, {3*2048}", "s_add_u32 s61, s61, s60", f"v_add_u32 v{T0+4+j}, s61, v{vL16}")
    a("s_mov_b32 s62, 0x80000", "s_waitcnt lgkmcnt(0)", "s_barrier")
    for j in range(8): a(f"ds_read_b128 {vr(AD+4*j,4)}, v{vVB} offset:{1024*j}")
    for st in range(8): a(xload(st))
    for j in range(8):
        a(f"s_waitcnt lgkmcnt({7-j})")
        for r in range(4*j, 4*j+4): a(f"v_fma_f32 v{AK+r}, v{AD+r}, v{vG2}, v{AK+r}")
    a.stamp("prepoll")
    for st in range(8):
        Lr = a.newlabel("XR"); Lo = a.newlabel("XO")
        x = XF + 4*st
        a(f"s_waitcnt vmcnt({7-st})")
        a.label(Lr)
        a(f"v_max3_u32 v{T0}, v{x}, v{x+1}, v{x+2}", f"v_max_u32 v{T0}, v{T0}, v{x+3}", f"v_cmp_eq_u32 vcc, -1, v{T0}",
          f"s_cbranch_vccz {Lo}",
          f"s_sleep {OPT['sleep']}", *[xload(q) for q in range(st, min(8, st + OPT["xre"]))], "s_waitcnt vmcnt(0)", "s_sub_u32 s62, s62, 1", f"s_cbranch_scc0 {Lr}")
        a.label(Lo)
        for cb in range(2): a(mfma(AK+16*cb, WO+8*st+4*cb, x))
    a.stamp("outmf")
    a("s_nop 7", "s_nop 1")
    for j in (1, 2, 3):
        for h in range(2): a(f"ds_write_b128 v{T0+4+j}, {vr(AK+8*j+4*h,4)} offset:{(j-1)*2048+h*1024}")
    a("s_waitcnt lgkmcnt(0)", "s_barrier")
    for r in range(3):
        for h in range(2): a(f"ds_read_b128 {vr(XF+8*r+4*h,4)}, v{T0+4} offset:{r*2048+h*1024}")
    for r in range(3):
        a(f"s_waitcnt lgkmcnt({4-2*r})")
        for j in range(8): a(f"v_add_f32 v{AK+j}, v{AK+j}, v{XF+8*r+j}")
    for j in range(4): a(f"v_cvt_pk_bf16_f32 v{24+j}, v{AK+2*j}, v{AK+2*j+1}")
    a("s_nop 1", "v_permlane32_swap_b32 v24, v26", "v_permlane32_swap_b32 v25, v27",
      f"buffer_store_dwordx4 v[24:27], v{vVA}, s[{SCd}:{SCd+3}], s56 offen")
    a(f"s_branch {end_label}")
    a.label(Lfb)
    L1 = a.newlabel("ATT_fb1"); L2 = a.newlabel("ATT_fb2")
    a(f"s_lshl_b32 s63, s{s_head}, 17", f"s_add_u32 s63, s63, {WS_KV:#x}")
    a(f"v_mov_b32 v{T0}, 0xff800000", "s_mov_b32 s60, s63", "s_mov_b32 s61, 0")
    a.label(L1)
    a(f"buffer_load_dwordx4 {vr(K,4)}, v{vL16}, s[{SWS}:{SWS+3}], s60 offen{SC}", "s_waitcnt vmcnt(0)",
      mfma(S, K, QK_, "0"), "s_nop 7", "s_nop 7")
    for r in range(0, 16, 2): a(f"v_max3_f32 v{T0}, v{T0}, v{S+r}, v{S+r+1}")
    a("s_add_u32 s60, s60, 2048", "s_add_u32 s61, s61, 1", "s_cmp_lt_u32 s61, 64", f"s_cbranch_scc1 {L1}")
    a(f"v_mov_b32 v{T0+2}, v{T0}", "s_nop 1", f"v_permlane32_swap_b32 v{T0}, v{T0+2}", "s_nop 1", f"v_max_f32 v{T0}, v{T0}, v{T0+2}")
    for r in range(16): a(f"v_sub_f32 v{C+r}, 0, v{T0}", f"v_mov_b32 v{OK_+r}, 0")
    a(f"v_lshrrev_b32 v{T0}, 5, v0", f"v_lshlrev_b32 v{T0}, 8, v{T0}", f"v_and_b32 v{T0+1}, 15, v0",
      f"v_lshl_add_u32 v{vVA}, v{T0+1}, 4, v{T0}")
    a("s_mov_b32 s60, s63", "s_mov_b32 s61, 0")
    a.label(L2)
    a(f"buffer_load_dwordx4 {vr(K,4)}, v{vL16}, s[{SWS}:{SWS+3}], s60 offen{SC}",
      f"s_mov_b64 exec, s[{sEX}:{sEX+1}]",
      f"buffer_load_dwordx4 {vr(V,4)}, v{vVA}, s[{SWS}:{SWS+3}], s60 offen offset:1024{SC}",
      f"buffer_load_dwordx4 {vr(V+4,4)}, v{vVA}, s[{SWS}:{SWS+3}], s60 offen offset:1536{SC}",
      "s_mov_b64 exec, -1", "s_waitcnt vmcnt(0)",
      mfma(S, K, QK_, C), "s_nop 7", "s_nop 7")
    for r in range(16): a(f"v_exp_f32 v{S+r}, v{S+r}")
    a("s_nop 0")
    for k in range(8): a(f"v_cvt_pk_bf16_f32 v{P+k}, v{S+2*k}, v{S+2*k+1}")
    a("s_nop 1", mfma(OK_, V, P), mfma(OK_, V+4, P+4), "s_nop 7", "s_nop 7")
    a("s_add_u32 s60, s60, 2048", "s_add_u32 s61, s61, 1", "s_cmp_lt_u32 s61, 64", f"s_cbranch_scc1 {L2}")
    a(f"s_branch {Lfin}")

def rot_code():
    m = OPT["rot"]
    if m == 0: return ["s_mov_b32 s3, 0"]
    if OPT["map"] == 1:
        base = ["s_and_b32 s3, s60, 6", "s_and_b32 s63, s60, 1", "s_lshl_b32 s63, s63, 2", "s_add_u32 s3, s3, s63"]
        if m == 2: return base
        if m == 1: return ["s_lshl_b32 s3, s61, 1", f"s_add_u32 s3, s3, s{s_rt}"]
        if m == 4: return base + [f"s_add_u32 s63, s61, s{s_rt}", "s_and_b32 s63, s63, 1", "s_lshl_b32 s63, s63, 2", "s_add_u32 s3, s3, s63"]
        if m == 5: return [f"s_add_u32 s63, s61, s{s_rt}", "s_and_b32 s63, s63, 3", "s_lshl_b32 s3, s63, 1", "s_and_b32 s63, s60, 1", "s_add_u32 s3, s3, s63"]
    if m == 1: return [f"s_lshl_b32 s3, s{s_rt}, 1", "s_add_u32 s3, s3, s61", "s_and_b32 s63, s60, 1", "s_add_u32 s3, s3, s63"]
    base = ["s_lshl_b32 s3, s60, 1", "s_and_b32 s63, s60, 4", "s_add_u32 s3, s3, s63"]
    if m == 2: return base
    if m == 3: return base + [f"s_add_u32 s63, s61, s{s_rt}", "s_and_b32 s63, s63, 1", "s_add_u32 s3, s3, s63"]
    if m == 4: return base + [f"s_add_u32 s63, s61, s{s_rt}", "s_and_b32 s63, s63, 1", "s_lshl_b32 s63, s63, 2", "s_add_u32 s3, s3, s63"]

def build(prof=False, as_list=False):
    a = Asm(); a.prof = prof; a.sb = 76
    a('.amdgcn_target "amdgcn-amd-amdhsa--gfx950"')
    a(".text", f".globl {NAME}", ".p2align 8", f".type {NAME},@function")
    a.label(NAME)
    end = "K_end"
    if prof:
        a.plan = PLAN
        a("s_memrealtime s[100:101]", "s_memtime s[76:77]")
        for i in range(1, 12): a(f"s_mov_b32 s{76+2*i}, 0")
    if OPT["spin"]: a("s_memrealtime s[100:101]")
    a("s_cmp_ge_u32 s2, 256", f"s_cbranch_scc1 {end}_x")
    a("s_load_dwordx16 s[4:19], s[0:1], 0", "s_load_dwordx4 s[20:23], s[0:1], 64", "s_load_dwordx2 s[24:25], s[0:1], 80")
    a("v_lshrrev_b32 v1, 6, v0", "s_and_b32 s60, s2, 7", f"v_readfirstlane_b32 s{S_W}, v1", "v_and_b32 v0, 63, v0", f"v_lshlrev_b32 v{vL16}, 4, v0")
    if OPT["map"] == 0:
        a("s_lshr_b32 s61, s2, 3", f"s_and_b32 s{s_rt}, s60, 3", f"s_lshl_b32 s{s_rt}, s{s_rt}, 2", "s_and_b32 s62, s61, 3", f"s_add_u32 s{s_rt}, s{s_rt}, s62",
          "s_lshr_b32 s61, s61, 2", "s_lshr_b32 s62, s60, 2", f"s_lshl_b32 s{s_ct}, s62, 3", f"s_add_u32 s{s_ct}, s{s_ct}, s61",
          f"s_mul_i32 s{s_ft}, s62, 7", "s_min_u32 s63, s61, 6", f"s_add_u32 s{s_ft}, s{s_ft}, s63",
          "s_cmp_lt_u32 s61, 7", f"s_cselect_b32 s{s_up}, 1, 0")
    else:
        a("s_lshr_b32 s61, s2, 3", f"s_and_b32 s{s_rt}, s60, 1", f"s_lshl_b32 s{s_rt}, s{s_rt}, 3", "s_and_b32 s62, s61, 7", f"s_add_u32 s{s_rt}, s{s_rt}, s62",
          "s_lshr_b32 s61, s61, 3", "s_lshr_b32 s62, s60, 1", f"s_lshl_b32 s{s_ct}, s62, 2", f"s_add_u32 s{s_ct}, s{s_ct}, s61",
          f"s_cmp_ge_u32 s{s_ct}, 11", "s_cselect_b32 s63, 1, 0", f"s_sub_u32 s{s_ft}, s{s_ct}, s63", f"s_min_u32 s{s_ft}, s{s_ft}, 13",
          f"s_and_b32 s63, s{s_ct}, 11", "s_cmp_lg_u32 s63, 11", f"s_cselect_b32 s{s_up}, 1, 0")
    a(*rot_code(),
      f"s_and_b32 s{s_rb}, s{S_W}, 3", f"s_lshr_b32 s{s_hf}, s{S_W}, 2",
      f"s_lshl_b32 s{s_row}, s2, 3", f"s_add_u32 s{s_row}, s{s_row}, s{S_W}",
      f"s_lshl_b32 s{s_fq}, s{s_ct}, 4", f"s_add_u32 s{s_fq}, s{s_fq}, s{s_rt}", f"s_lshl_b32 s{s_fq}, s{s_fq}, {FS}", f"s_add_u32 s{s_fq}, s{s_fq}, {WS_FQ:#x}")
    a(f"s_lshl_b32 s{sX}, s{s_rt}, 17", f"s_lshl_b32 s62, s{S_W}, 14", f"s_add_u32 s{sX}, s{sX}, s62",
      f"s_mul_i32 s{sWq}, s{s_rb}, {16*3072}", f"s_mul_i32 s62, s{s_ct}, 192", f"s_add_u32 s{sWq}, s{sWq}, s62",
      f"s_mul_i32 s{sGU}, s{s_rb}, {16*3584}" if OPT["gload"] else f"s_mul_i32 s{sGU}, s{S_W}, {8*3584}", f"s_lshl_b32 s62, s{s_ft}, 8", f"s_add_u32 s{sGU}, s{sGU}, s62",
      f"s_lshl_b32 s{sLx}, s{S_W}, 11", f"s_mul_i32 s{sLw}, s{s_rb}, 3072", f"s_lshl_b32 s{sLg}, s{s_rb}, 12" if OPT["gload"] else f"s_lshl_b32 s{sLg}, s{S_W}, 11")
    a(f"s_lshl_b32 s{s_head}, s60, 2", "s_bfe_u32 s62, s2, 0x20003", f"s_add_u32 s{s_head}, s{s_head}, s62", f"s_lshr_b32 s{s_qb}, s2, 5",
      f"s_lshl_b32 s{s_q}, s{s_head}, 6", f"s_lshl_b32 s62, s{s_qb}, 3", f"s_add_u32 s{s_q}, s{s_q}, s62",
      f"s_lshl_b32 s62, s{s_rb}, 1", f"s_add_u32 s{s_q}, s{s_q}, s62", f"s_add_u32 s{s_q}, s{s_q}, s{s_hf}", f"s_lshl_b32 s{s_q}, s{s_q}, 10",
      f"s_lshl_b32 s{s_src}, s{s_head}, 17", f"s_add_u32 s{s_src}, s{s_src}, {WS_KV:#x}", f"s_lshl_b32 s62, s{s_hf}, 16", f"s_add_u32 s{s_src}, s{s_src}, s62",
      f"s_lshl_b32 s62, s{s_rb}, 11", f"s_add_u32 s{s_src}, s{s_src}, s62",
      f"s_mul_i32 s{s_lkv}, s{s_hf}, {8*TS}", f"s_mul_i32 s62, s{s_rb}, {TS}", f"s_add_u32 s{s_lkv}, s{s_lkv}, s62", f"s_add_u32 s{s_lkv}, s{s_lkv}, {AB}")
    a("v_lshrrev_b32 v30, 3, v0", "v_and_b32 v31, 7, v0", "v_bfe_u32 v32, v0, 4, 2", "v_xor_b32 v32, v32, v31",
      "v_lshlrev_b32 v30, 10, v30", "v_lshl_add_u32 v11, v32, 4, v30", "v_xor_b32 v12, 64, v11")
    for i in range(3):
        a(f"v_add_u32 v30, {64*i}, v0", "v_mul_u32_u24 v31, 5462, v30", "v_lshrrev_b32 v31, 16, v31",
          "v_mul_u32_u24 v32, 12, v31", "v_sub_u32 v32, v30, v32", "v_mul_u32_u24 v31, 3072, v31", f"v_lshl_add_u32 v{13+i}, v32, 4, v31")
    a("v_lshrrev_b32 v30, 4, v0", "v_and_b32 v31, 15, v0", "v_lshlrev_b32 v32, 1, v30", "v_xor_b32 v31, v31, v32",
      "v_mul_u32_u24 v30, 3584, v30", "v_lshl_add_u32 v28, v31, 4, v30", "v_xor_b32 v31, 8, v31", "v_lshl_add_u32 v29, v31, 4, v30")
    a("s_waitcnt lgkmcnt(0)")
    srd(a, SA, S_X, 2048*1024); srd(a, SBd, S_WQKV, 512*3072)
    if OPT["spin"] and OPT["dbg"] == 7:
        srd(a, 72, S_DBG, 256)
        a("s_not_b32 s60, s100", "v_mov_b32 v30, s60", "v_mov_b32 v31, 8", "s_mov_b64 exec, 1",
          "buffer_atomic_umax v30, v31, s[72:75], 0 offen", "s_mov_b64 exec, -1", "s_waitcnt vmcnt(0)")
    L_attn = "ATTN"
    srd(a, SD, S_WU, 512*3584); srd(a, 72, S_GW, 1024)
    g0 = unit_groups(a, None, 0, 0, ("Q", 0)); g1 = unit_groups(a, None, 1, 0, ("Q", 0))
    g0[0](); g0[1]()
    a(f"s_cmp_eq_u32 s{s_hf}, 0", "s_cbranch_scc1 PRO0")
    g1[2](); g1[3]()
    a("s_branch PRO1")
    a.label("PRO0")
    g0[2]()
    a.label("PRO1")
    srd(a, SWS, S_WS, WS_SIZE); srd(a, SCd, S_WG, 512*3584)
    a(f"s_sub_u32 s60, 11, s{s_hf}", f"s_cmp_ge_u32 s{s_ct}, s60", "s_cselect_b32 s60, 2, 0", f"s_lshl_b32 s61, s{s_hf}, 2", "s_add_u32 s60, s60, s61",
      f"s_xor_b32 s61, s{s_up}, 1", "s_add_u32 s60, s60, s61")
    order = [4, 0, 6, 2, 5, 1, 7, 3]
    for c in order[1:]: a(f"s_cmp_eq_u32 s60, {c}", f"s_cbranch_scc1 CLS{c}")
    for c in order:
        a.label(f"CLS{c}")
        gemm_phase(a, c >> 2, bool(c & 2), not (c & 1), L_attn)
    a(".p2align 6")
    a.label(L_attn)
    attention_phase(a, end)
    a.label(end)
    if OPT["spin"]:
        if OPT["dbg"] == 7:
            srd(a, 72, S_DBG, 256)
            a("v_mov_b32 v31, 8", "buffer_load_dword v30, v31, s[72:75], 0 offen sc1", "s_waitcnt vmcnt(0)", "v_readfirstlane_b32 s100, v30", "s_nop 3", "s_not_b32 s100, s100")
        a.label("SPIN")
        a("s_memrealtime s[36:37]", "s_waitcnt lgkmcnt(0)", "s_sub_u32 s36, s36, s100", f"s_cmp_lt_u32 s36, {OPT['spin']}", "s_cbranch_scc1 SPIN")
    if prof:
        a("s_waitcnt vmcnt(0) lgkmcnt(0)", "s_memrealtime s[36:37]", "s_memtime s[38:39]",
          "s_getreg_b32 s40, hwreg(HW_REG_XCC_ID)",
          "s_mov_b32 s32, s24", "s_and_b32 s33, s25, 0xffff", "s_mov_b32 s34, 0x2000000", "s_mov_b32 s35, 0x00020000",
          "s_lshl_b32 s41, s2, 3", f"s_add_u32 s41, s41, s{S_W}", "s_lshl_b32 s41, s41, 6",
          f"s_add_u32 s41, s41, {WS_PROF:#x}",
          "s_waitcnt lgkmcnt(0)", "s_sub_u32 s38, s38, s76",
          "v_mov_b32 v4, s100", "v_mov_b32 v5, s36", "v_mov_b32 v6, s38", "v_mov_b32 v7, s40", "v_mov_b32 v8, 0",
          "s_mov_b64 exec, 1",
          "buffer_store_dwordx4 v[4:7], v8, s[32:35], s41 offen")
        for i in range(1, 12): a(f"s_sub_u32 s{76+2*i}, s{76+2*i}, s76", f"v_mov_b32 v{11+i}, s{76+2*i}")
        a("v_mov_b32 v23, 0")
        for q in range(3): a(f"buffer_store_dwordx4 v[{12+4*q}:{15+4*q}], v8, s[32:35], s41 offen offset:{16+16*q}")
    a.label(end + "_x")
    a("s_endpgm")
    desc = f""".section .rodata,"a"
.p2align 6
.amdhsa_kernel {NAME}
  .amdhsa_next_free_vgpr 256
  .amdhsa_next_free_sgpr 102
  .amdhsa_accum_offset 256
  .amdhsa_group_segment_fixed_size 0
  .amdhsa_kernarg_size 88
  .amdhsa_user_sgpr_count 2
  .amdhsa_user_sgpr_kernarg_segment_ptr 1
  .amdhsa_system_sgpr_workgroup_id_x 1
.end_amdhsa_kernel
"""
    k = f"kernel={NAME} " if as_list else ""
    return HEADER + f"; @launch {k}grid=(256,1,1) block=(512,1,1) lds={LDS_BYTES}\n" + a.text() + desc

if __name__ == "__main__":
    out = sys.argv[1]
    for x in sys.argv[2:]:
        if x.startswith("seq="): SEQ[0] = x[4:]
        elif x.startswith("plan="): PLAN[:] = x[5:].split(",")
        elif "=" in x:
            k, v = x.split("="); OPT[k] = int(v)
    open(out, "w").write(build(prof="--prof" in sys.argv, as_list="--list" in sys.argv))
```

```python
import sys
from asmlib import *

NAME = "gated_mix__softmax_full_mha__glu_gated_bilinear__prompt_kernel"
HEADER = open("gated_mix__softmax_full_mha__glu_gated_bilinear__prompt.s.ref").read().split("; Override launch")[0]

WS_QF = 0x000000
WS_KV = 0x200000
WS_OF = 0x600000
WS_HF = 0x800000
WS_GG = 0xF00000
WS_EP = 0xF04000
WS_FQ = 0xF10000
WS_FO = 0xF30000
WS_FH = 0xF70000
WS_SIZE = 0xFB0000
FS = 7
WS_PROF = 0x1800000
QSCALE = 0x3EB8AA3B
LOG2E = 0x3FB8AA3B
LDS_BYTES = 163840

S_X, S_WQKV, S_WO, S_WG, S_WU, S_WD, S_GW, S_OUT, S_DBG, S_WS = 4, 6, 8, 12, 14, 16, 18, 20, 22, 24
S_TAG, S_W = 26, 27
SWS, SA, SBd, SCd, SD = 28, 32, 36, 40, 44
SC = " sc1"
SEQ = ['QGQQQGQQQQGGGGGG']
DIST = ['2222222222222222']
OPT = dict(rg2=8, stp=0, qpipe=1, qord=0, rq1=4, rq0=0, xre=8, nt=0, early=0, rq=2, rg=8, st2=1, gload=0, qpo=3, qfirst=1, kvs=58, wstart=1, hpub=2, bal=2, dend=29, spin=0, gpf=3, map=0, tlb=0, glate=0, dq=2, dg=2, dswitch=7, qpub=10, rot=2, dbg=0, sleep=2, dstart=8, dback=2)

def srd(a, d, p, nbytes):
    a(f"s_mov_b32 s{d}, s{p}", f"s_and_b32 s{d+1}, s{p+1}, 0xffff",
      f"s_mov_b32 s{d+2}, {hex(nbytes)}", f"s_mov_b32 s{d+3}, 0x00020000")

def dma(a, voff, srd_, soff, pre, imm=0, flags=""):
    for l in pre: a(l)
    o = f" offset:{imm}" if imm else ""
    a(f"buffer_load_dwordx4 v{voff}, s[{srd_}:{srd_+3}], {soff} offen{o}{flags} lds")

def poll(a, s_base, voff, mask, vt, st, staged=True):
    a(f"s_mov_b32 s{st}, 0x80000")
    for stage in range(0 if staged else 1, 2):
        L = a.newlabel("POLL"); Ld = a.newlabel("POLLD")
        if stage == 0: a("s_mov_b64 exec, 1")
        elif mask == (1 << 64) - 1: a("s_mov_b64 exec, -1")
        else: a(f"s_mov_b32 exec_lo, {mask & 0xffffffff:#x}", f"s_mov_b32 exec_hi, {mask >> 32:#x}")
        a.label(L)
        a(f"buffer_load_dword v{vt}, v{voff}, s[{SWS}:{SWS+3}], s{s_base} offen sc1",
          "s_waitcnt vmcnt(0)",
          f"v_cmp_ne_u32 vcc, s{S_TAG}, v{vt}",
          f"s_cbranch_vccz {Ld}",
          "s_mov_b64 exec, vcc",
          f"s_sleep {OPT['sleep']}",
          f"s_sub_u32 s{st}, s{st}, 1",
          f"s_cbranch_scc0 {L}")
        a.label(Ld)
    a("s_mov_b64 exec, -1")

def set_flag(a, s_off, vt):
    a(f"v_mov_b32 v{vt}, 0", f"v_mov_b32 v{vt+1}, s{S_TAG}", "s_mov_b64 exec, 1",
      f"buffer_store_dword v{vt+1}, v{vt}, s[{SWS}:{SWS+3}], s{s_off} offen sc1", "s_mov_b64 exec, -1")

PLAN = ["issued", "qkv", "up", "loop", "loopend", "oflag", "prepoll", "polled", "outmf"]
class VM:
    def __init__(self): self.q = []
    def add(self, tag, n=1): self.q += [tag] * n
    def wait_for(self, pred):
        idx = [i for i, t in enumerate(self.q) if pred(t)]
        if not idx: return None
        n = len(self.q) - 1 - idx[-1]
        self.q = self.q[idx[-1]+1:]
        return n

def vw(a, vm, pred, extra=""):
    n = vm.wait_for(pred)
    if n is not None: a(f"s_waitcnt vmcnt({n}){extra}")
    elif extra: a(f"s_waitcnt{extra}")

SLOT = 32768
TS = 2080; CS = 16*TS; AB = 32768
ORDER = "e0 e1 N e2 e3 c0 e4 e5 W c1 S M e6 e7 c2 e8 e9 c3 e10 e11 c4 e12 P e13 c5 e14 e15 c6 c7"

s_rt, s_ct, s_ft, s_rb, s_hf, s_up = 48, 49, 50, 51, 52, 53
sX, sWq, sGU, sLx, sLw, sLg = 54, 55, 56, 57, 58, 59
T1, T2, T3, T4 = 60, 61, 62, 63
s_head, s_qb, s_src, s_lkv, s_q = 64, 65, 66, 67, 68
s_row, s_fq, sGo = 69, 70, 71
sQx, sQw, s_of = 15, 19, 18
sEX = 0
s_r64, s_c64, s_x0, s_wd, s_wo, s_lw, s_fh, s_i, s_kq = 4, 5, 6, 7, 10, 11, 12, 13, 14
s_qw, s_kh = s_rb, s_hf
WF, ACC, ACCQ, XR, STG = 32, 64, 128, 160, 240
NXR = 6
Q, K, S, O, WD, V, P, T0, C = 16, 24, 128, 160, 192, 208, 224, 232, 240
AD, XD = 64, 32
vL16, vKA, vVA, vVB, vWR, vWO, vWO2, vX2, vFO = 1, 2, 3, 4, 5, 11, 12, 13, 14
vX1, vXS, vXR = 7, 8, 9
vG1, vG2 = 28, 30
D = 4; NK = 14
HMASK = 0x1f1f

def late_scalars(a):
    a("s_and_b32 s60, s2, 7", "s_lshr_b32 s61, s2, 3", f"s_lshl_b32 s{s_r64}, s60, 2", "s_and_b32 s60, s61, 3", f"s_add_u32 s{s_r64}, s{s_r64}, s60",
      f"s_lshr_b32 s{s_c64}, s61, 2", f"s_mov_b32 s{sEX}, 0xffff", f"s_mov_b32 s{sEX+1}, 0xffff",
      f"s_and_b32 s{s_i}, s{S_W}, 1", f"s_lshr_b32 s{s_kq}, s{S_W}, 1")
    a(f"s_mul_i32 s60, s{s_r64}, 224", f"s_mul_i32 s61, s{S_W}, {NK}", "s_add_u32 s60, s60, s61",
      f"s_lshl_b32 s{s_x0}, s60, 10", f"s_add_u32 s{s_x0}, s{s_x0}, {WS_HF:#x}",
      f"s_lshl_b32 s{s_wd}, s61, 14", f"s_lshl_b32 s60, s{s_c64}, 7", f"s_add_u32 s{s_wd}, s{s_wd}, s60",
      f"s_lshl_b32 s{s_wo}, s{S_W}, 16", f"s_add_u32 s{s_wo}, s{s_wo}, s60",
      f"s_lshl_b32 s{s_lw}, s{s_qw}, 13", f"s_lshl_b32 s60, s{s_kh}, 17", f"s_add_u32 s{s_lw}, s{s_lw}, s60")
    a(f"s_lshl_b32 s60, s{s_rt}, 2", f"s_add_u32 s60, s60, s{s_rb}", "s_lshl_b32 s60, s60, 5", f"s_lshl_b32 s61, s{s_ft}, 1", "s_add_u32 s60, s60, s61",
      f"s_add_u32 s60, s60, s{s_hf}", f"s_lshl_b32 s60, s60, {FS}", f"s_add_u32 s{s_fh}, s60, {WS_FH:#x}")

    a(f"s_lshl_b32 s60, s{s_qb}, 3", f"s_lshl_b32 s61, s{s_qw}, 1", "s_add_u32 s60, s60, s61", f"s_add_u32 s60, s60, s{s_kh}",
      "s_lshl_b32 s60, s60, 5", f"s_add_u32 s60, s60, s{s_head}", f"s_lshl_b32 s{s_of}, s60, 10", f"s_add_u32 s{s_of}, s{s_of}, {WS_OF:#x}")

def attn_addr_setup(a):
    srd(a, SA, S_WD, 1792*1024); srd(a, SBd, S_WO, 512*1024)
    a(f"s_mul_i32 s60, s{s_kh}, {8*TS}", f"s_add_u32 s60, s60, {AB}", f"v_add_u32 v{vKA}, s60, v{vL16}",
      f"v_lshrrev_b32 v{T0+4}, 5, v0", f"v_lshlrev_b32 v{T0}, 8, v{T0+4}", f"v_and_b32 v{T0+1}, 15, v0", f"v_lshl_add_u32 v{T0}, v{T0+1}, 4, v{T0}",
      f"v_and_b32 v{T0+1}, 11, v0", f"v_cmp_eq_u32 vcc, 0, v{T0+1}", f"v_mov_b32 v{T0+2}, 16", "s_nop 0",
      f"v_cndmask_b32 v{T0+2}, v{T0+2}, 0, vcc",
      f"v_add_u32 v{T0+3}, 1024, v{T0+2}", f"v_add_u32 v{T0+2}, 512, v{T0+2}",
      f"v_cndmask_b32 v{vVA}, v{T0+3}, v{T0}, s[{sEX}:{sEX+1}]", f"v_cndmask_b32 v{vVB}, v{T0+2}, v{T0}, s[{sEX}:{sEX+1}]",
      f"v_add_u32 v{vVA}, s60, v{vVA}", f"v_add_u32 v{vVB}, s60, v{vVB}")
    a(f"v_lshrrev_b32 v{T0}, 3, v0", f"v_lshlrev_b32 v{T0}, 10, v{T0}", f"v_bfe_u32 v{T0+1}, v0, 4, 1", f"v_lshlrev_b32 v{T0+2}, 2, v{T0+1}",
      f"v_and_b32 v{T0+3}, 7, v0", f"v_xor_b32 v{T0+2}, v{T0+2}, v{T0+3}", f"v_lshl_add_u32 v{vWO}, v{T0+2}, 4, v{T0}",
      f"v_add_u32 v{vWO2}, {8192-1024}, v{vWO}", f"s_mul_i32 s60, s{s_i}, {112*1024}", f"v_add_u32 v{vX2}, s60, v{vL16}")
    a(f"v_bfe_u32 v{T0+2}, v0, 2, 2", f"v_lshl_add_u32 v{T0}, v{T0+4}, 2, v{T0+2}", f"v_lshlrev_b32 v{T0}, 7, v{T0}",
      f"v_lshrrev_b32 v{T0+2}, 1, v{T0+2}", f"v_lshl_add_u32 v{T0}, v{T0+2}, 6, v{T0}",
      f"v_lshl_add_u32 v{T0}, v{T0+1}, 5, v{T0}", f"v_and_b32 v{T0+2}, 3, v0", f"v_lshl_add_u32 v{T0}, v{T0+2}, 3, v{T0}",
      f"s_lshl_b32 s60, s{s_kq}, 5", f"v_xor_b32 v{T0}, s60, v{T0}",
      f"v_add_u32 v{vWR}, s{s_lw}, v{T0}", f"v_xor_b32 v{vWR+1}, 64, v{vWR}")
    a(f"s_mul_i32 s60, s{S_W}, 14", "s_add_u32 s61, s60, 13", "s_lshr_b32 s60, s60, 2", "s_lshr_b32 s61, s61, 2",
      f"v_and_b32 v{vFO}, 7, v0", f"v_add_u32 v{vFO}, s60, v{vFO}", f"v_min_u32 v{vFO}, s61, v{vFO}",
      f"v_bfe_u32 v{T0}, v0, 3, 1", f"s_lshl_b32 s60, s{s_r64}, 1", f"v_add_u32 v{T0}, s60, v{T0}",
      f"v_lshl_add_u32 v{vFO}, v{T0}, 5, v{vFO}", f"v_lshlrev_b32 v{vFO}, {FS}, v{vFO}")

def ones_init(a):
    a(f"v_and_b32 v{T0}, 31, v0", f"v_mul_u32_u24 v{T0}, {TS}, v{T0}", f"v_lshrrev_b32 v{T0+1}, 5, v0", f"v_lshl_add_u32 v{T0}, v{T0+1}, 4, v{T0}",
      f"v_cmp_eq_u32 vcc, 0, v{T0+1}", f"v_mov_b32 v{T0+4}, 0x3f803f80", "s_nop 0", f"v_cndmask_b32 v{T0+4}, 0, v{T0+4}, vcc",
      f"v_mov_b32 v{T0+5}, v{T0+4}", f"v_mov_b32 v{T0+6}, v{T0+4}", f"v_mov_b32 v{T0+7}, v{T0+4}",
      f"ds_write_b128 v{T0}, {vr(T0+4,4)} offset:{AB+2048}")

def rd(it, vbuf):
    off = ((it // 8) % 2) * CS + (it % 8) * TS
    return [f"ds_read_b128 {vr(K,4)}, v{vKA} offset:{off}",
            f"ds_read_b128 {vr(V+8*vbuf,4)}, v{vVA} offset:{off+1024}",
            f"ds_read_b128 {vr(V+8*vbuf+4,4)}, v{vVB} offset:{off+1536}"]

def standin(a, part):
    if part == 0:
        a(f"ds_read_b128 {vr(P,4)}, v{vL16} offset:{AB}", *rd(0, 0))
    elif part == 1:
        a(mfma(S, P, Q, "0"), mfma(S+16, P, Q+4, "0"))
    else:
        for t in range(2):
            b = S + 16*t; m = T0 + t
            a(f"v_max3_f32 v{m}, v{b}, v{b+1}, v{b+2}")
            for r in range(3, 15, 2): a(f"v_max3_f32 v{m}, v{m}, v{b+r}, v{b+r+1}")
            a(f"v_max_f32 v{m}, v{m}, v{b+15}")
            a(f"v_mov_b32 v{T0+2}, v{m}", "s_nop 1", f"v_permlane32_swap_b32 v{m}, v{T0+2}", "s_nop 1", f"v_max_f32 v{m}, v{m}, v{T0+2}")
        a(f"v_min_f32 v{T0}, v{T0}, v{T0+1}")
        for r in range(16): a(f"v_sub_f32 v{C+r}, 0, v{T0}")
        a("s_nop 1", mfma(S, K, Q, C))

def unit_groups(a, vm, hf, n, u):
    vXO, vWQ, vGO, vUO = 11, 13, 28, 29
    slot = (n % 5) * SLOT
    typ, k = u
    G = []
    def mk(voff, sr_, pre):
        def f():
            dma(a, voff, sr_, f"s{T1}", pre, flags=" nt" if (OPT["nt"] >> (0 if sr_ == SA else 1 if sr_ == SBd else 2)) & 1 else "")
            if vm: vm.add(("u", n))
        return f
    if typ == "Q":
        pre0 = [f"s_add_u32 s{sQw}, s3, {k}", f"s_and_b32 s{sQw}, s{sQw}, 7", f"s_lshl_b32 s{sQx}, s{sQw}, 7", f"s_add_u32 s{sQx}, s{sQx}, s{sX}",
                f"s_mul_i32 s{sQw}, s{sQw}, {64*3072}"]
        for jj in range(2):
            G.append(mk(vXO + jj, SA, (pre0 if jj == 0 else []) + [f"s_add_u32 m0, s{sLx}, {slot + jj*1024}", f"s_add_u32 s{T1}, s{sQx}, {jj*8192}"]))
        for i in ((0,) if hf == 0 else (1, 2)):
            G.append(mk(vWQ + i, SBd, [f"s_add_u32 m0, s{sLw}, {slot + 16384 + i*1024}", f"s_add_u32 s{T1}, s{sWq}, s{sQw}"]))
    else:
        pre0 = [f"s_add_u32 s{sGo}, s3, {k}", f"s_and_b32 s{sGo}, s{sGo}, 7", f"s_mul_i32 s{sGo}, s{sGo}, {64*3584}", f"s_add_u32 s{sGo}, s{sGo}, s{sGU}"]
        for h in range((4 if hf == 1 else 0) if OPT["gload"] else 2):
            G.append(mk(vGO, SCd, (pre0 if h == 0 else []) + [f"s_add_u32 m0, s{sLg}, {slot + h*1024}", f"s_add_u32 s{T1}, s{sGo}, {h*4*3584}"]))
            G.append(mk(vUO, SD, [f"s_add_u32 m0, s{sLg}, {slot + 16384 + h*1024}", f"s_add_u32 s{T1}, s{sGo}, {h*4*3584}"]))
    return G

def parse_seq(txt):
    seq = []; c = {"Q": 0, "G": 0}
    for ch in txt: seq.append((ch, c[ch])); c[ch] += 1
    return seq

def gemm_phase(a, hf, swap, up, L_attn):
    seq = parse_seq(SEQ[0] if up else "Q"*8)
    N = len(seq)
    vm = VM()
    vm.add(("u", 0), 3 + hf)
    vXA, vWA, vGA = 2, 6, 7
    vT = 24
    nb = 2 if hf == 0 else 1
    b0 = 0 if hf == 0 else 2
    lastQ = max(i for i, u in enumerate(seq) if u[0] == "Q")
    if up:
        for k in range(NXR, 8): assert seq.index(("G", k-NXR)) < seq.index(("Q", k))
        for k in range(8): assert seq.index(("Q", k)) < seq.index(("G", k))
        assert seq.index(("G", 4)) < N-2 and seq.index(("G", 5)) < N-1
    dist = OPT["dq"]
    fifo = [(n, f) for n in range(1, N) for f in unit_groups(a, vm, hf, n, seq[n])]
    def pump(n, cnt, upto=None):
        while fifo and fifo[0][0] <= n + 4 and (cnt > 0 or (upto is not None and fifo[0][0] <= upto)):
            fifo.pop(0)[1](); cnt -= 1
    pump(-1, 0, dist - 1)
    a.stamp("issued")
    a(f"v_mov_b32 v{vT}, 0", f"s_mov_b32 s{T1}, {WS_EP:#x}",
      f"buffer_load_dword v{vT+1}, v{vT}, s[{SWS}:{SWS+3}], s{T1} offen sc1")
    vm.add("E")
    a(f"s_lshl_b32 s{T1}, s{s_row}, 10",
      f"buffer_load_dwordx4 v[16:19], v{vL16}, s[72:75], 0 offen",
      f"buffer_load_dwordx4 v[20:23], v{vL16}, s[{SA}:{SA+3}], s{T1} offen")
    vm.add("G", 2)
    late_scalars(a)
    a("v_and_b32 v30, 31, v0", "v_lshrrev_b32 v31, 5, v0", "v_bfe_u32 v32, v0, 1, 3", "v_xor_b32 v32, v32, v31",
      f"s_lshl_b32 s{T1}, s{s_rb}, 12", "v_lshlrev_b32 v33, 7, v30", f"v_add_u32 v33, s{T1}, v33")
    for s in range(4): a(f"v_xor_b32 v34, {2*s}, v32", f"v_lshl_add_u32 v{vXA+s}, v34, 4, v33")
    a("v_bfe_u32 v32, v0, 2, 2", "v_lshl_add_u32 v33, v31, 3, v32", "v_mul_u32_u24 v34, 192, v33",
      "v_bfe_u32 v35, v0, 4, 1", "v_lshl_add_u32 v34, v35, 5, v34", "v_and_b32 v36, 3, v0", "v_lshl_add_u32 v34, v36, 3, v34",
      f"v_add_u32 v{vWA}, {16384 + b0*64}, v34")
    a("v_lshlrev_b32 v33, 8, v33", "v_lshl_add_u32 v33, v35, 14, v33", "v_lshl_add_u32 v33, v36, 3, v33", "v_bfe_u32 v32, v0, 2, 3")
    for f in range(4): a(f"v_xor_b32 v34, {4*hf+f}, v32", f"v_lshl_add_u32 v{vGA+f}, v34, 5, v33")
    cur = {"Q": 0, "G": 0}
    def rebase(n):
        typ = seq[n][0]; slot = n % 5
        if not (cur[typ] <= slot <= cur[typ] + 1):
            d = ((slot - cur[typ]) * SLOT) & 0xffffffff
            for r in (list(range(vXA, vXA+4)) + [vWA] if typ == "Q" else range(vGA, vGA+4)): a(f"v_add_u32 v{r}, {d:#x}, v{r}")
            cur[typ] = slot
        return (slot - cur[typ]) * SLOT
    def xreg(k, s): return XR + 16*(k % NXR) + 4*s
    def reads(n, s, off):
        typ, k = seq[n]; p = s % 2; R = []
        if typ == "Q":
            R.append(f"ds_read_b128 {vr(xreg(k,s),4)}, v{vXA+s} offset:{off}")
            for b in range(nb):
                for t in range(2):
                    R.append(f"ds_read_b64_tr_b16 {vr(WF+8*s+4*b+2*t,2)}, v{vWA} offset:{off+(16*s+4*t)*192+b*64}")
        else:
            for f in range(4):
                for t in range(2):
                    R.append(f"ds_read_b64_tr_b16 {vr(WF+16*p+4*f+2*t,2)}, v{vGA+f} offset:{off+(16*s+4*t)*256}")
        return R
    def mf(n, s):
        typ, k = seq[n]; p = s % 2; x = xreg(k, s); c = "0" if (k == 0 and s == 0) else None
        if typ == "Q":
            return [mfma(ACCQ+16*b, x, WF+8*s+4*b, c) if swap else mfma(ACCQ+16*b, WF+8*s+4*b, x, c) for b in range(nb)]
        return [mfma(ACC+16*f, WF+16*p+4*f, x, c) for f in range(4)]
    def qkv_epilogue():
        ST = []
        def mk(line):
            def f(): a(line); vm.add("Q")
            return f
        for b in range(nb):
            o1, o2 = 72 + 2*b, 73 + 2*b
            a(f"s_mul_i32 s{T1}, s{s_ct}, 3", f"s_add_u32 s{T1}, s{T1}, {b0+b}", f"s_and_b32 s{T2}, s{T1}, 15", f"s_lshl_b32 s{T2}, s{T2}, 7",
              f"s_lshl_b32 s{T3}, s{s_rt}, 2", f"s_add_u32 s{T3}, s{T3}, s{s_rb}", f"s_add_u32 s{T2}, s{T2}, s{T3}")
            A = ACCQ + 16*b; Dd = A
            if not swap:
                a(f"s_lshl_b32 s{T3}, s{T2}, 10", f"s_lshl_b32 s{T2}, s{T2}, 11", f"s_add_u32 s{T2}, s{T2}, {WS_KV:#x}",
                  f"s_cmp_lt_u32 s{T1}, 16", f"s_cselect_b32 s{o1}, s{T3}, s{T2}",
                  f"s_cselect_b32 s{T3}, 1, 2", f"s_cselect_b32 s{T4}, {QSCALE:#x}, 1.0",
                  f"s_lshl_b32 s{T3}, s{T3}, 16", f"s_add_u32 s{o2}, s{T3}, s{o1}")
                for r in range(16): a(f"v_mul_f32 v{A+r}, s{T4}, v{A+r}")
                va = vL16
            else:
                a(f"s_lshl_b32 s{T2}, s{T2}, 11", f"s_add_u32 s{o1}, s{T2}, {WS_KV+1024:#x}", f"s_add_u32 s{o2}, s{o1}, 512")
                if b == 0:
                    a("v_bfe_u32 v30, v0, 4, 1", "v_lshlrev_b32 v30, 17, v30", "v_lshrrev_b32 v31, 5, v0", "v_lshl_add_u32 v30, v31, 8, v30",
                      "v_and_b32 v31, 15, v0", "v_lshl_add_u32 v15, v31, 4, v30")
                va = 15
            for j in range(8): a(f"v_cvt_pk_bf16_f32 v{Dd+j}, v{A+2*j}, v{A+2*j+1}")
            ST.append(mk(f"buffer_store_dwordx4 {vr(Dd,4)}, v{va}, s[{SWS}:{SWS+3}], s{o1} offen{SC}"))
            ST.append(mk(f"buffer_store_dwordx4 {vr(Dd+4,4)}, v{va}, s[{SWS}:{SWS+3}], s{o2} offen{SC}"))
        return ST
    def gate_compute():
        acc = vT + 2
        a(f"s_mov_b32 s{T4}, 0xffff0000")
        for j in range(4):
            a(f"v_lshlrev_b32 v30, 16, v{16+j}", f"v_and_b32 v{16+j}, s{T4}, v{16+j}",
              f"v_lshlrev_b32 v31, 16, v{20+j}", f"v_and_b32 v{20+j}, s{T4}, v{20+j}",
              "v_mul_f32 v30, v30, v31", f"v_mul_f32 v31, v{16+j}, v{20+j}",
              "v_cvt_pk_bf16_f32 v30, v30, v31", f"v_and_b32 v31, s{T4}, v30", "v_lshlrev_b32 v30, 16, v30")
            if j == 0: a(f"v_add_f32 v{acc}, v30, v31")
            else: a(f"v_add_f32 v{acc}, v{acc}, v30", f"v_add_f32 v{acc}, v{acc}, v31")
        for sh in (8, 4, 2, 1):
            a("s_nop 1", f"v_add_f32_dpp v{acc}, v{acc}, v{acc} row_ror:{sh} row_mask:0xf bank_mask:0xf")
        a("s_nop 1")
        for q in range(4): a(f"v_readlane_b32 s{T1+q}, v{acc}, {16*q}")
        a("s_nop 1", f"v_mov_b32 v{acc}, s{T1}", f"v_add_f32 v{acc}, s{T2}, v{acc}", f"v_add_f32 v{acc}, s{T3}, v{acc}", f"v_add_f32 v{acc}, s{T4}, v{acc}")
        a(f"v_cvt_pk_bf16_f32 v{acc}, v{acc}, v{acc}", f"v_lshlrev_b32 v{acc}, 16, v{acc}",
          f"v_mul_f32 v{acc}, {(LOG2E | 0x80000000):#x}, v{acc}", f"v_exp_f32 v{acc}, v{acc}", "s_nop 0",
          f"v_add_f32 v{acc}, 1.0, v{acc}", f"v_rcp_f32 v{acc}, v{acc}", "s_nop 0",
          f"v_cvt_pk_bf16_f32 v{acc}, v{acc}, v{acc}", f"v_lshlrev_b32 v{acc}, 16, v{acc}")
    def tag_finish_and_gate_store():
        acc = vT + 2
        a(f"v_readfirstlane_b32 s{S_TAG}, v{vT+1}", f"v_readfirstlane_b32 s{T1}, v16", "s_nop 3",
          f"s_mul_i32 s{S_TAG}, s{S_TAG}, 1664525", f"s_add_u32 s{S_TAG}, s{S_TAG}, 1013904223", f"s_or_b32 s{S_TAG}, s{S_TAG}, 1",
          f"s_cmp_lg_u32 s{T1}, 0", f"s_cselect_b32 s{S_TAG}, s{T1}, s{S_TAG}",
          f"s_lshl_b32 s{T1}, s{s_row}, 3", f"s_add_u32 s{T1}, s{T1}, {WS_GG:#x}",
          f"v_mov_b32 v{acc+1}, s{S_TAG}", "s_mov_b64 exec, 1",
          f"buffer_store_dwordx2 v[{acc}:{acc+1}], v{vT}, s[{SWS}:{SWS+3}], s{T1} offen sc1", "s_mov_b64 exec, -1")
        vm.add("g")
        for j in range(4): a(f"v_mov_b32 v{20+j}, -1")
        a(f"buffer_store_dwordx4 v[20:23], v{vL16}, s[{SWS}:{SWS+3}], s{s_of} offen{SC}")
        vm.add("P")
    def publish_q():
        if hf == 0:
            Lf = a.newlabel("QF"); a(f"s_cmp_lg_u32 s{S_W}, 0", f"s_cbranch_scc1 {Lf}"); set_flag(a, s_fq, 30)
            a(f"s_lshl_b32 s{T1}, s2, {FS}", f"s_add_u32 s{T1}, s{T1}, {WS_FO:#x}"); set_flag(a, T1, 30)
            a.label(Lf)
    PM = []; ST = []
    gpos = [i for i, u in enumerate(seq) if u[0] == 'G'] if up else [1, 2]
    qpub = lastQ + OPT['qpo']
    for n in range(N):
        typ = seq[n][0]
        a.stamp(f"e{n}")
        vw(a, vm, lambda t: t == ("u", n) or (n == qpub and t == "Q") or (n == N-1 and up and OPT["early"] and t == ("c", 0)), " lgkmcnt(0)" if n else "")
        a.stamp(f"pre{n}")
        a("s_barrier")
        a.stamp(f"b{n}")
        off = rebase(n)
        for s in range(4):
            if typ == "Q":
                nr = 1 + 2*nb
                if s == 0:
                    M = PM; PM = []; hm = (len(M) + 1) // 2
                    if OPT["qord"] and hf == 1:
                        a(*M) if M else None
                        pump(n, OPT["rq1"]); M = []
                    a(*reads(n, 0, off)); a(*M[:hm]) if M else None
                    a(*reads(n, 1, off)); a(*M[hm:]) if len(M) > hm else None
                    if OPT["qord"] == 2 and hf == 0: pump(n, 1)
                    a(*reads(n, 2, off))
                    if 4*nr > 15: a(f"s_waitcnt lgkmcnt({15 - nr})")
                    a(*reads(n, 3, off))
                    a.stamp(f"r{n}")
                    if not OPT["qord"]: pump(n, OPT["rq"])
                    elif hf == 0: pump(n, OPT["rq0"])
                    a.stamp(f"p{n}")
                elif s == 3 and OPT["qpipe"]:
                    PM = mf(n, 2) + mf(n, 3)
                    pump(n, 0, n + int(DIST[0][n]))
                else:
                    a(f"s_waitcnt lgkmcnt({(4-s)*nr})"); a(*mf(n, s-1))
                    pump(n, 1 if OPT["qord"] and hf == 0 else 0, n + int(DIST[0][n]) if s == 3 else None)
                    if s == 3: PM = mf(n, 3)
            else:
                R = reads(n, s, off); M = PM
                if s > 0: a("s_waitcnt lgkmcnt(0)")
                rgt = OPT["rg"] if n < lastQ else OPT["rg2"]
                rg = rgt // 4 + (1 if s < rgt % 4 else 0)
                for j in range(max(len(M), 2)):
                    if j < len(M): a(M[j])
                    if j < 2: a(*R[4*j:4*j+4])
                    if j == 2:
                        g = 4*n + s - (4*lastQ + 6); sp = OPT["stp"]
                        if ST and (not sp or (g % sp == 0 if hf == 0 else g % (2*sp) == sp // 2)): ST.pop(0)()
                        pump(n, rg // 2)
                if ST and OPT["st2"] and not OPT["stp"]: ST.pop(0)()
                pump(n, rg - (rg // 2 if len(M) > 2 else 0), n + int(DIST[0][n]) if s == 3 else None)
                PM = mf(n, s)
            if n == lastQ + 1 and s == 1:
                a.stamp("qkv")
                ST = qkv_epilogue()
            if n == qpub and s == 0:
                assert not ST
                publish_q()
            if (n, s) == ((gpos[0], 1) if hf == 0 else (gpos[0], 3)):
                vw(a, vm, lambda t: t == "G"); gate_compute()
                srd(a, 72, S_DBG, 256)
                a(f"buffer_load_dword v16, v{vT}, s[72:75], 0 offen sc1"); vm.add("D")
            if s == 2 and n == 6:
                vw(a, vm, lambda t: t == "D"); tag_finish_and_gate_store()
                if hf == 0:
                    L = a.newlabel("NOUPD")
                    a(f"s_cmp_lg_u32 s{s_row}, 1", f"s_cbranch_scc1 {L}",
                      f"v_mov_b32 v30, s{S_TAG}", f"s_mov_b32 s{T1}, {WS_EP:#x}", "s_mov_b64 exec, 1",
                      f"buffer_store_dword v30, v{vT}, s[72:75], 0 offen sc1", "s_waitcnt vmcnt(0)",
                      f"buffer_store_dword v30, v{vT}, s[{SWS}:{SWS+3}], s{T1} offen sc1", "s_mov_b64 exec, -1", "s_waitcnt vmcnt(0)")
                    a.label(L)
            if up:
                kv = OPT["kvs"]
                if 4*n+s == kv - 3: qflag_load(a, vm)
                if 4*n+s == kv: attn_prefetch(a, vm, 0)
                if n == N-2 and s == 1: attn_addr_setup(a)
                if n == N-2 and s == 2: ones_init(a)
                if OPT["early"]:
                    if n == N-1 and s == 0: standin(a, 0); attn_prefetch(a, vm, 1)
                    if n == N-1 and s == 1: standin(a, 1)
                    if n == N-1 and s == 3: standin(a, 2)
    a("s_waitcnt lgkmcnt(0)"); a(*PM)
    if up:
        a.stamp("up")
        if OPT["bal"]: a("s_setprio 3")
        a(f"s_lshl_b32 s{T1}, s{s_rt}, 2", f"s_add_u32 s{T1}, s{T1}, s{s_rb}", f"s_mul_i32 s{T1}, s{T1}, 112",
          f"s_lshl_b32 s{T2}, s{s_ft}, 3", f"s_add_u32 s{T1}, s{T1}, s{T2}", f"s_lshl_b32 s{T1}, s{T1}, 10",
          f"s_add_u32 s{T1}, s{T1}, {WS_HF + hf*4096:#x}", "s_nop 4")
        if not OPT["early"]:
            vw(a, vm, lambda t: t == ("c", 0)); a("s_barrier")
            a.stamp("kv")
            standin(a, 0); attn_prefetch(a, vm, 1)
        for f in range(4):
            A = ACC + 16*f
            for j in range(0, 8, 2): a(f"v_pk_mul_f32 {vr(A+j,2)}, {vr(A+j,2)}, {vr(A+8+j,2)}")
            for j in range(4): a(f"v_cvt_pk_bf16_f32 v{A+8+j}, v{A+2*j}, v{A+2*j+1}")
            a(f"buffer_store_dwordx4 {vr(A+8,4)}, v{vL16}, s[{SWS}:{SWS+3}], s{T1} offen offset:{f*1024}{SC}")
            if not OPT["early"]:
                if f == 0: a("s_waitcnt lgkmcnt(0)"); standin(a, 1)
                if f == 2: standin(a, 2)
        if not OPT["early"]: a("s_nop 3")
        vm.add("h", 4)
        assert vm.q == [("c", 1)]*4 + ["h"]*4, vm.q
    else:
        a("s_nop 7", "s_nop 3")
        for f in qkv_epilogue(): f()
        a("s_waitcnt vmcnt(0)", "s_barrier")
        publish_q()
        vm = VM(); qflag_load(a, vm); attn_addr_setup(a); ones_init(a); attn_prefetch(a, vm, 0); attn_prefetch(a, vm, 1)
        a("s_waitcnt vmcnt(0) lgkmcnt(0)", "s_barrier")
        standin(a, 0); a("s_waitcnt lgkmcnt(0)"); standin(a, 1); a("s_nop 7", "s_nop 3"); standin(a, 2); a("s_nop 7", "s_nop 3")
    a(f"s_branch {L_attn}")

def issue_chunk(a, cslot):
    for h in range(2):
        a(f"s_add_u32 m0, s{s_lkv}, {cslot*CS + 4*h*TS}")
        if h == 0: a("s_nop 0")
        else: a(f"s_add_u32 s{s_src}, s{s_src}, 8192")
        a(f"buffer_load_dwordx4 v{vL16}, s[{SWS}:{SWS+3}], s{s_src} offen{SC} lds",
          f"buffer_load_dwordx4 v{vL16}, s[{SWS}:{SWS+3}], s{s_src} offen offset:1024{SC} lds")
    a(f"s_add_u32 s{s_src}, s{s_src}, 8192")

QMASK = (1 << 34) - 1
def qflag_load(a, vm):
    a(f"s_lshr_b32 s{T1}, s{s_head}, 1", "v_lshrrev_b32 v30, 4, v0", "v_add_u32 v30, 1, v30", "v_cmp_gt_u32 vcc, 3, v30", "s_nop 1",
      "v_cndmask_b32 v30, 0, v30, vcc", "v_lshlrev_b32 v30, 4, v30", f"v_add_u32 v30, s{T1}, v30",
      "v_mul_u32_u24 v30, 43691, v30", "v_lshrrev_b32 v30, 17, v30",
      "v_and_b32 v31, 15, v0", f"s_lshl_b32 s{T2}, s{s_qb}, 1", f"v_add_u32 v24, s{T2}, v31", "v_cndmask_b32 v31, v24, v31, vcc",
      "v_lshl_add_u32 v30, v30, 4, v31", f"v_lshlrev_b32 v30, {FS}, v30")
    flag_load(a, vm, WS_FQ, 30, QMASK, 31)

def flag_load(a, vm, base, voff, mask, vt):
    a(f"s_mov_b32 s{T1}, {base:#x}", f"s_mov_b32 exec_lo, {mask & 0xffffffff:#x}", f"s_mov_b32 exec_hi, {mask >> 32:#x}",
      f"buffer_load_dword v{vt}, v{voff}, s[{SWS}:{SWS+3}], s{T1} offen sc1", "s_mov_b64 exec, -1")
    vm.add("F")

def flag_check(a, vm, base, voff, mask, vt):
    L = a.newlabel("FOK")
    a(f"s_waitcnt vmcnt({vm.wait_for(lambda t: t == 'F')})",
      f"v_cmp_ne_u32 vcc, s{S_TAG}, v{vt}", f"s_and_b32 vcc_lo, vcc_lo, {mask & 0xffffffff:#x}", f"s_and_b32 vcc_hi, vcc_hi, {mask >> 32:#x}",
      f"s_or_b32 s{T1}, vcc_lo, vcc_hi", f"s_cbranch_scc0 {L}", f"s_mov_b32 s{T1}, {base:#x}")
    poll(a, T1, voff, mask, vt, T2, staged=False)
    a.label(L)

def attn_prefetch(a, vm, which):
    if which == 0:
        flag_check(a, vm, WS_FQ, 30, QMASK, 31)
        a(f"s_xor_b32 s{T1}, s{s_q}, 1024",
          f"buffer_load_dwordx4 {vr(Q,4)}, v{vL16}, s[{SWS}:{SWS+3}], s{T1} offen{SC}",
          f"buffer_load_dwordx4 {vr(Q+4,4)}, v{vL16}, s[{SWS}:{SWS+3}], s{s_q} offen{SC}")
        vm.add("q", 2)
    issue_chunk(a, which)
    vm.add(("c", which), 4)

def attention_phase(a, end_label):
    vm = VM(); vm.add(("c", 1), 4); vm.add("h", 4)
    def issue_w(n):
        slot = n % D
        sr_, base = (SA, s_wd) if n < NK else (SBd, s_wo)
        a(f"s_add_u32 m0, s{s_lw}, {slot*2048}")
        if n not in (0, NK): a(f"s_add_u32 s{base}, s{base}, 16384")
        else: a("s_nop 0")
        fl = " nt" if OPT["nt"] & 8 else ""
        dma(a, vWO, sr_, f"s{base}", [], flags=fl)
        dma(a, vWO2, sr_, f"s{base}", [], imm=1024, flags=fl)
        vm.add(("w", n), 2)
    def issue_x(n):
        slot = n % D
        if n and n % 4 == 0: a(f"s_add_u32 s{s_x0}, s{s_x0}, 4096")
        a(f"buffer_load_dwordx4 {vr(XD+8*slot,4)}, v{vX1}, s[{SWS}:{SWS+3}], s{s_x0} offen offset:{(n%4)*1024}{SC}",
          f"buffer_load_dwordx4 {vr(XD+8*slot+4,4)}, v{vX2}, s[{SWS}:{SWS+3}], s{s_x0} offen offset:{(n%4)*1024}{SC}")
        vm.add(("x", n), 2)
    a.stamp("loop")
    c0 = OPT["dstart"] + 2
    c = [c0 + (n * (OPT['dend'] - c0)) // (NK - 1) for n in range(NK)]
    assert len(set(c)) == NK and c[-1] <= 31
    done = {}
    xnext = [D]
    dq = []
    first_pv = [True, True]
    XO = AB + 2*CS; XDN = 32768
    def gate_check():
        Lgok = a.newlabel("GOK"); Lgr = a.newlabel("GRE")
        vw(a, vm, lambda t: t == "g")
        a("s_mov_b32 s62, 0x80000")
        a.label(Lgr)
        a(f"v_cmp_ne_u32 vcc, s{S_TAG}, v{vG1+1}", f"v_cmp_ne_u32 s[60:61], s{S_TAG}, v{vG2+1}", "s_or_b64 vcc, vcc, s[60:61]", f"s_cbranch_scc0 {Lgok}",
          f"v_and_b32 v{T0}, 31, v0", f"v_lshlrev_b32 v{T0}, 3, v{T0}",
          f"s_sub_u32 s60, s{s_of}, {WS_OF:#x}", "s_lshr_b32 s60, s60, 15", "s_lshl_b32 s60, s60, 8", f"s_add_u32 s60, s60, {WS_GG:#x}",
          f"s_lshl_b32 s61, s{s_r64}, 1", f"s_add_u32 s61, s61, s{s_i}", "s_lshl_b32 s61, s61, 8", f"s_add_u32 s61, s61, {WS_GG:#x}",
          f"buffer_load_dwordx2 v[{vG1}:{vG1+1}], v{T0}, s[{SWS}:{SWS+3}], s60 offen sc1",
          f"buffer_load_dwordx2 v[{vG2}:{vG2+1}], v{T0}, s[{SWS}:{SWS+3}], s61 offen sc1",
          "s_waitcnt vmcnt(0)", "s_sub_u32 s62, s62, 1", f"s_cbranch_scc0 {Lgr}")
        a.label(Lgok)
        a(f"v_sub_f32 v{vG2}, 1.0, v{vG2}", f"v_cvt_pk_bf16_f32 v{vG2}, v{vG2}, v{vG2}", f"v_lshlrev_b32 v{vG2}, 16, v{vG2}")
    last = [False]
    def phase(t, vb, smf, mid, pend, wait):
        Sb = S + 16*t; Ob = O + 16*t
        for tok in ORDER.split():
            if tok[0] == 'e': r = int(tok[1:]); a(f"v_exp_f32 v{Sb+r}, v{Sb+r}")
            elif tok[0] == 'c':
                k = int(tok[1:]); a(f"v_cvt_pk_bf16_f32 v{P+k}, v{Sb+2*k}, v{Sb+2*k+1}")
                if last[0] and k == 4:
                    a(f"ds_write_b128 v{vXS}, {vr(O,4)}", f"ds_write_b128 v{vXS}, {vr(O+4,4)} offset:1024",
                      f"v_lshrrev_b32 v{T0}, 2, v{vL16}", f"v_sub_u32 v{T0+1}, v{vXS}, v{vL16}", f"v_add_u32 v{T0+1}, v{T0+1}, v{T0}",
                      f"ds_write_b32 v{T0+1}, v{O+8} offset:2048",
                      f"v_sub_u32 v{T0+2}, v{vXR}, v{vL16}", f"v_add_u32 v{T0+2}, v{T0+2}, v{T0}")
                ready = [d for d in dq if d[0] <= 0]
                if ready and (k == 3 or (k == 6 and len(ready) > OPT["dback"])):
                    d = dq.pop(0); a(d[1])
                    if not any(e[2] == d[2] for e in dq): done[d[2]] = True
            elif tok == 'W':
                if wait: a("s_waitcnt lgkmcnt(0)")
            elif tok == 'S':
                if smf: a(smf)
            elif tok == 'N':
                if pend: a(pend)
            elif tok == 'P':
                a(mfma(Ob, V+8*vb, P, "0" if first_pv[t] else None)); first_pv[t] = False
            elif tok == 'M': mid()
        for d in dq: d[0] -= 1
        return mfma(Ob, V+8*vb+4, P+4)
    pend = None
    for it in range(32):
        vb = it % 2
        def midA():
            if it % 8 == 7 and it < 31:
                ch = it // 8 + 1
                vw(a, vm, lambda t: t == ('c', ch)); a("s_barrier")
                if ch + 1 < 4:
                    issue_chunk(a, (ch + 1) % 2); vm.add(("c", ch + 1), 4)
            if it < 31: a(*rd(it + 1, 1 - vb))
            if it in c:
                n = c.index(it); slot = n % D; p = n % 2
                assert n < 2 or done.get(n - 2), (n, it)
                vw(a, vm, lambda t: t in (('x', n), ('w', n)))
                for cb in range(2):
                    for t in range(2):
                        a(f"ds_read_b64_tr_b16 {vr(WD+8*p+4*cb+2*t,2)}, v{vWR+cb} offset:{slot*2048+t*1024}")
                for i in range(2):
                    for cb in range(2):
                        dq.append([1, mfma(AD+16*(2*i+cb), WD+8*p+4*cb, XD+8*slot+4*i, "0" if n == 0 else None), n])
        def midB():
            if OPT["wstart"] <= it < OPT["wstart"] + D:
                if it == OPT["wstart"] and OPT["early"]: a("s_barrier")
                issue_w(it - OPT["wstart"])
            if it == OPT["hpub"]:
                L = a.newlabel("NOH")
                a(f"s_waitcnt vmcnt({vm.wait_for(lambda t: t == 'h')})", f"s_cmp_eq_u32 s{s_up}, 0", f"s_cbranch_scc1 {L}")
                set_flag(a, s_fh, T0)
                a.label(L)
            if it == OPT["dstart"] - 1: flag_load(a, vm, WS_FH, vFO, HMASK, vFO+1)
            if it == OPT["dstart"]:
                flag_check(a, vm, WS_FH, vFO, HMASK, vFO+1)
                for n in range(D): issue_x(n)
            if it in c and c.index(it) + D < NK + 4: issue_w(c.index(it) + D)
            if xnext[0] < NK and done.get(xnext[0] - D): issue_x(xnext[0]); xnext[0] += 1
            if it == 0:
                a(f"s_xor_b32 s60, s{s_i}, 1", f"s_mul_i32 s60, s60, {112*1024}", f"v_add_u32 v{vX1}, s60, v{vL16}",
                  f"s_mul_i32 s60, s{S_W}, 2560", f"s_add_u32 s60, s60, {XO}", f"v_add_u32 v{vXS}, s60, v{vL16}",
                  f"s_xor_b32 s60, s{S_W}, 4", "s_mul_i32 s60, s60, 2560", f"s_add_u32 s60, s60, {XO}", f"v_add_u32 v{vXR}, s60, v{vL16}")
            if it == 30:
                assert c[-1] < 30
                srd(a, SCd, S_OUT, 2048*1024)
                a(f"s_lshl_b32 s60, s{s_i}, 13", f"v_subrev_u32 v{vWR}, s60, v{vWR}", f"v_xor_b32 v{vWR+1}, 64, v{vWR}")
                a(f"s_lshl_b32 s60, s{s_r64}, 1", f"s_add_u32 s60, s60, s{s_i}",
                  "s_lshl_b32 s61, s60, 5", f"s_lshl_b32 s62, s{s_kq}, 3", "s_add_u32 s61, s61, s62",
                  "s_lshl_b32 s54, s61, 10", f"s_add_u32 s54, s54, {WS_OF:#x}", "s_add_u32 s55, s54, 4096",
                  "s_lshl_b32 s56, s60, 15", f"s_lshl_b32 s62, s{s_c64}, 7", "s_add_u32 s56, s56, s62", f"s_lshl_b32 s62, s{s_kq}, 5", "s_add_u32 s56, s56, s62")
            if it == 22:
                a(f"s_lshl_b32 s60, s{s_kq}, 1", f"s_lshr_b32 s61, s{s_r64}, 2", "s_lshl_b32 s61, s61, 5", "s_add_u32 s60, s60, s61",
                  f"v_bfe_u32 v{vFO}, v0, 2, 1", f"v_and_b32 v{T0}, 3, v0", f"v_lshl_add_u32 v{vFO}, v{T0}, 3, v{vFO}", f"v_add_u32 v{vFO}, s60, v{vFO}",
                  f"v_lshlrev_b32 v{vFO}, {FS}, v{vFO}")
                flag_load(a, vm, WS_FO, vFO, 0xff, vFO+1)
            if it == 24: flag_check(a, vm, WS_FO, vFO, 0xff, vFO+1); gate_check()
            if it == 20:
                a(f"v_and_b32 v{T0}, 31, v0", f"v_lshlrev_b32 v{T0}, 3, v{T0}",
                  f"s_lshl_b32 s60, s{s_qb}, 3", f"s_lshl_b32 s61, s{s_qw}, 1", "s_add_u32 s60, s60, s61", f"s_add_u32 s60, s60, s{s_kh}",
                  "s_lshl_b32 s60, s60, 8", f"s_add_u32 s60, s60, {WS_GG:#x}",
                  f"s_lshl_b32 s61, s{s_r64}, 1", f"s_add_u32 s61, s61, s{s_i}", "s_lshl_b32 s61, s61, 8", f"s_add_u32 s61, s61, {WS_GG:#x}",
                  f"buffer_load_dwordx2 v[{vG1}:{vG1+1}], v{T0}, s[{SWS}:{SWS+3}], s60 offen sc1",
                  f"buffer_load_dwordx2 v[{vG2}:{vG2+1}], v{T0}, s[{SWS}:{SWS+3}], s61 offen sc1")
                vm.add("g", 2)
        a.stamp(f"it{it}")
        if OPT["bal"] == 1: a(f"s_setprio {3 - it % 4}")
        if OPT["bal"] == 2:
            if it < 8:
                if it in (0, 2, 5): a(f"s_setprio {2 - (0, 2, 5).index(it)}")
            elif it % 2 == 0: a(f"s_setprio {3 - (it % 8) // 2}")
        pend = phase(0, vb, mfma(S+16, K, Q+4, C), midA, pend, False)
        last[0] = it == 31
        pend = phase(1, vb, mfma(S, K, Q, C) if it < 31 else None, midB, pend, True)
    a("s_nop 1", pend)
    for d in dq: a(d[1])
    a.stamp("loopend")
    OK_ = O + 16; QK_ = Q + 4
    a("s_waitcnt vmcnt(0) lgkmcnt(0)", "s_barrier")
    a(f"ds_read_b128 {vr(S,4)}, v{vXR}", f"ds_read_b128 {vr(S+4,4)}, v{vXR} offset:1024", f"ds_read_b32 v{S+8}, v{T0+2} offset:2048")
    a(f"s_lshl_b32 s60, s{S_W}, 13", f"s_add_u32 s60, s60, {XDN}", f"v_add_u32 v{vKA}, s60, v{vL16}", f"v_xor_b32 v{vVB}, 0x2000, v{vKA}",
      "s_mov_b32 s62, 0x5d800000", "s_mov_b32 s63, 0x7e800000", "s_nop 1")
    a("s_waitcnt lgkmcnt(0)")
    for j in range(9): a(f"v_add_f32 v{OK_+j}, v{OK_+j}, v{S+j}")
    Lfb = a.newlabel("ATT_fallback"); Lfin = a.newlabel("ATT_fin")
    a(f"v_add_f32 v{T0}, |v{OK_}|, |v{OK_+1}|", f"v_add_f32 v{T0+1}, |v{OK_+2}|, |v{OK_+3}|",
      f"v_add_f32 v{T0+2}, |v{OK_+4}|, |v{OK_+5}|", f"v_add_f32 v{T0+3}, |v{OK_+6}|, |v{OK_+7}|",
      f"v_add_f32 v{T0}, v{T0}, v{T0+1}", f"v_add_f32 v{T0+2}, v{T0+2}, v{T0+3}", f"v_cmp_nlt_f32 vcc, v{OK_+8}, s62",
      f"v_add_f32 v{T0}, v{T0}, v{T0+2}",
      f"v_cmp_nlt_f32 s[60:61], v{T0}, s63",
      "s_or_b64 vcc, vcc, s[60:61]",
      f"s_cbranch_scc1 {Lfb}")
    a.label(Lfin)
    a(f"v_rcp_f32 v{T0}, v{OK_+8}", "s_nop 0", f"v_mul_f32 v{T0}, v{T0}, v{vG1}")
    for j in range(8): a(f"v_mul_f32 v{OK_+j}, v{OK_+j}, v{T0}")
    for j in range(4): a(f"v_cvt_pk_bf16_f32 v{P+j}, v{OK_+2*j}, v{OK_+2*j+1}")
    for j in range(4): a(f"v_min_u32 v{P+j}, -2, v{P+j}")
    a(f"buffer_store_dwordx4 {vr(P,4)}, v{vL16}, s[{SWS}:{SWS+3}], s{s_of} offen{SC}")
    a.stamp("oflag")
    AK = AD + 32
    WO = 128; XF = 32
    def xload(st): return f"buffer_load_dwordx4 {vr(XF+4*st,4)}, v{vL16}, s[{SWS}:{SWS+3}], s{54 if st<4 else 55} offen offset:{(st%4)*1024}{SC}"
    for st in range(8):
        a(f"ds_write_b128 v{vKA}, {vr(AD+4*st,4)} offset:{1024*st}")
    for st in range(8):
        if st % 2 == 0: a("s_waitcnt lgkmcnt(6)")
        for cb in range(2):
            for t in range(2):
                a(f"ds_read_b64_tr_b16 {vr(WO+8*st+4*cb+2*t,2)}, v{vWR+cb} offset:{(st//4)*8192+((NK+st%4)%D)*2048+t*1024}")
        for j in range(4*st, 4*st+4): a(f"v_mul_f32 v{AK+j}, v{AK+j}, v{vG2}")
    a(f"v_and_b32 v{T0}, 31, v0", f"v_lshlrev_b32 v{T0}, 10, v{T0}", f"v_lshrrev_b32 v{T0+1}, 5, v0", f"v_lshl_add_u32 v{vVA}, v{T0+1}, 4, v{T0}",
      f"s_lshl_b32 s60, s{s_i}, 17")
    for j in range(4):
        a(f"s_xor_b32 s61, s{s_kq}, {j}", f"s_mul_i32 s61, s61, {3*2048}", "s_add_u32 s61, s61, s60", f"v_add_u32 v{T0+4+j}, s61, v{vL16}")
    a("s_mov_b32 s62, 0x80000", "s_waitcnt lgkmcnt(0)", "s_barrier")
    for j in range(8): a(f"ds_read_b128 {vr(AD+4*j,4)}, v{vVB} offset:{1024*j}")
    for st in range(8): a(xload(st))
    for j in range(8):
        a(f"s_waitcnt lgkmcnt({7-j})")
        for r in range(4*j, 4*j+4): a(f"v_fma_f32 v{AK+r}, v{AD+r}, v{vG2}, v{AK+r}")
    a.stamp("prepoll")
    for st in range(8):
        Lr = a.newlabel("XR"); Lo = a.newlabel("XO")
        x = XF + 4*st
        a(f"s_waitcnt vmcnt({7-st})")
        a.label(Lr)
        a(f"v_max3_u32 v{T0}, v{x}, v{x+1}, v{x+2}", f"v_max_u32 v{T0}, v{T0}, v{x+3}", f"v_cmp_eq_u32 vcc, -1, v{T0}",
          f"s_cbranch_vccz {Lo}",
          f"s_sleep {OPT['sleep']}", *[xload(q) for q in range(st, min(8, st + OPT["xre"]))], "s_waitcnt vmcnt(0)", "s_sub_u32 s62, s62, 1", f"s_cbranch_scc0 {Lr}")
        a.label(Lo)
        for cb in range(2): a(mfma(AK+16*cb, WO+8*st+4*cb, x))
    a.stamp("outmf")
    a("s_nop 7", "s_nop 1")
    for j in (1, 2, 3):
        for h in range(2): a(f"ds_write_b128 v{T0+4+j}, {vr(AK+8*j+4*h,4)} offset:{(j-1)*2048+h*1024}")
    a("s_waitcnt lgkmcnt(0)", "s_barrier")
    for r in range(3):
        for h in range(2): a(f"ds_read_b128 {vr(XF+8*r+4*h,4)}, v{T0+4} offset:{r*2048+h*1024}")
    for r in range(3):
        a(f"s_waitcnt lgkmcnt({4-2*r})")
        for j in range(8): a(f"v_add_f32 v{AK+j}, v{AK+j}, v{XF+8*r+j}")
    for j in range(4): a(f"v_cvt_pk_bf16_f32 v{24+j}, v{AK+2*j}, v{AK+2*j+1}")
    a("s_nop 1", "v_permlane32_swap_b32 v24, v26", "v_permlane32_swap_b32 v25, v27",
      f"buffer_store_dwordx4 v[24:27], v{vVA}, s[{SCd}:{SCd+3}], s56 offen")
    a(f"s_branch {end_label}")
    a.label(Lfb)
    L1 = a.newlabel("ATT_fb1"); L2 = a.newlabel("ATT_fb2")
    a(f"s_lshl_b32 s63, s{s_head}, 17", f"s_add_u32 s63, s63, {WS_KV:#x}")
    a(f"v_mov_b32 v{T0}, 0xff800000", "s_mov_b32 s60, s63", "s_mov_b32 s61, 0")
    a.label(L1)
    a(f"buffer_load_dwordx4 {vr(K,4)}, v{vL16}, s[{SWS}:{SWS+3}], s60 offen{SC}", "s_waitcnt vmcnt(0)",
      mfma(S, K, QK_, "0"), "s_nop 7", "s_nop 7")
    for r in range(0, 16, 2): a(f"v_max3_f32 v{T0}, v{T0}, v{S+r}, v{S+r+1}")
    a("s_add_u32 s60, s60, 2048", "s_add_u32 s61, s61, 1", "s_cmp_lt_u32 s61, 64", f"s_cbranch_scc1 {L1}")
    a(f"v_mov_b32 v{T0+2}, v{T0}", "s_nop 1", f"v_permlane32_swap_b32 v{T0}, v{T0+2}", "s_nop 1", f"v_max_f32 v{T0}, v{T0}, v{T0+2}")
    for r in range(16): a(f"v_sub_f32 v{C+r}, 0, v{T0}", f"v_mov_b32 v{OK_+r}, 0")
    a(f"v_lshrrev_b32 v{T0}, 5, v0", f"v_lshlrev_b32 v{T0}, 8, v{T0}", f"v_and_b32 v{T0+1}, 15, v0",
      f"v_lshl_add_u32 v{vVA}, v{T0+1}, 4, v{T0}")
    a("s_mov_b32 s60, s63", "s_mov_b32 s61, 0")
    a.label(L2)
    a(f"buffer_load_dwordx4 {vr(K,4)}, v{vL16}, s[{SWS}:{SWS+3}], s60 offen{SC}",
      f"s_mov_b64 exec, s[{sEX}:{sEX+1}]",
      f"buffer_load_dwordx4 {vr(V,4)}, v{vVA}, s[{SWS}:{SWS+3}], s60 offen offset:1024{SC}",
      f"buffer_load_dwordx4 {vr(V+4,4)}, v{vVA}, s[{SWS}:{SWS+3}], s60 offen offset:1536{SC}",
      "s_mov_b64 exec, -1", "s_waitcnt vmcnt(0)",
      mfma(S, K, QK_, C), "s_nop 7", "s_nop 7")
    for r in range(16): a(f"v_exp_f32 v{S+r}, v{S+r}")
    a("s_nop 0")
    for k in range(8): a(f"v_cvt_pk_bf16_f32 v{P+k}, v{S+2*k}, v{S+2*k+1}")
    a("s_nop 1", mfma(OK_, V, P), mfma(OK_, V+4, P+4), "s_nop 7", "s_nop 7")
    a("s_add_u32 s60, s60, 2048", "s_add_u32 s61, s61, 1", "s_cmp_lt_u32 s61, 64", f"s_cbranch_scc1 {L2}")
    a(f"s_branch {Lfin}")

def rot_code():
    m = OPT["rot"]
    if m == 0: return ["s_mov_b32 s3, 0"]
    if OPT["map"] == 1:
        base = ["s_and_b32 s3, s60, 6", "s_and_b32 s63, s60, 1", "s_lshl_b32 s63, s63, 2", "s_add_u32 s3, s3, s63"]
        if m == 2: return base
        if m == 1: return ["s_lshl_b32 s3, s61, 1", f"s_add_u32 s3, s3, s{s_rt}"]
        if m == 4: return base + [f"s_add_u32 s63, s61, s{s_rt}", "s_and_b32 s63, s63, 1", "s_lshl_b32 s63, s63, 2", "s_add_u32 s3, s3, s63"]
        if m == 5: return [f"s_add_u32 s63, s61, s{s_rt}", "s_and_b32 s63, s63, 3", "s_lshl_b32 s3, s63, 1", "s_and_b32 s63, s60, 1", "s_add_u32 s3, s3, s63"]
    if m == 1: return [f"s_lshl_b32 s3, s{s_rt}, 1", "s_add_u32 s3, s3, s61", "s_and_b32 s63, s60, 1", "s_add_u32 s3, s3, s63"]
    base = ["s_lshl_b32 s3, s60, 1", "s_and_b32 s63, s60, 4", "s_add_u32 s3, s3, s63"]
    if m == 2: return base
    if m == 3: return base + [f"s_add_u32 s63, s61, s{s_rt}", "s_and_b32 s63, s63, 1", "s_add_u32 s3, s3, s63"]
    if m == 4: return base + [f"s_add_u32 s63, s61, s{s_rt}", "s_and_b32 s63, s63, 1", "s_lshl_b32 s63, s63, 2", "s_add_u32 s3, s3, s63"]

def build(prof=False, as_list=False):
    a = Asm(); a.prof = prof; a.sb = 76
    a('.amdgcn_target "amdgcn-amd-amdhsa--gfx950"')
    a(".text", f".globl {NAME}", ".p2align 8", f".type {NAME},@function")
    a.label(NAME)
    end = "K_end"
    if prof:
        a.plan = PLAN
        a("s_memrealtime s[100:101]", "s_memtime s[76:77]" if prof != 2 else "s_memrealtime s[76:77]")
        for i in range(1, 12): a(f"s_mov_b32 s{76+2*i}, 0")
    if OPT["spin"]: a("s_memrealtime s[100:101]")
    a("s_cmp_ge_u32 s2, 256", f"s_cbranch_scc1 {end}_x")
    a("s_load_dwordx16 s[4:19], s[0:1], 0", "s_load_dwordx4 s[20:23], s[0:1], 64", "s_load_dwordx2 s[24:25], s[0:1], 80")
    a("v_lshrrev_b32 v1, 6, v0", "s_and_b32 s60, s2, 7", f"v_readfirstlane_b32 s{S_W}, v1", "v_and_b32 v0, 63, v0", f"v_lshlrev_b32 v{vL16}, 4, v0")
    if OPT["map"] == 0:
        a("s_lshr_b32 s61, s2, 3", f"s_and_b32 s{s_rt}, s60, 3", f"s_lshl_b32 s{s_rt}, s{s_rt}, 2", "s_and_b32 s62, s61, 3", f"s_add_u32 s{s_rt}, s{s_rt}, s62",
          "s_lshr_b32 s61, s61, 2", "s_lshr_b32 s62, s60, 2", f"s_lshl_b32 s{s_ct}, s62, 3", f"s_add_u32 s{s_ct}, s{s_ct}, s61",
          f"s_mul_i32 s{s_ft}, s62, 7", "s_min_u32 s63, s61, 6", f"s_add_u32 s{s_ft}, s{s_ft}, s63",
          "s_cmp_lt_u32 s61, 7", f"s_cselect_b32 s{s_up}, 1, 0")
    else:
        a("s_lshr_b32 s61, s2, 3", f"s_and_b32 s{s_rt}, s60, 1", f"s_lshl_b32 s{s_rt}, s{s_rt}, 3", "s_and_b32 s62, s61, 7", f"s_add_u32 s{s_rt}, s{s_rt}, s62",
          "s_lshr_b32 s61, s61, 3", "s_lshr_b32 s62, s60, 1", f"s_lshl_b32 s{s_ct}, s62, 2", f"s_add_u32 s{s_ct}, s{s_ct}, s61",
          f"s_cmp_ge_u32 s{s_ct}, 11", "s_cselect_b32 s63, 1, 0", f"s_sub_u32 s{s_ft}, s{s_ct}, s63", f"s_min_u32 s{s_ft}, s{s_ft}, 13",
          f"s_and_b32 s63, s{s_ct}, 11", "s_cmp_lg_u32 s63, 11", f"s_cselect_b32 s{s_up}, 1, 0")
    a(*rot_code(),
      f"s_and_b32 s{s_rb}, s{S_W}, 3", f"s_lshr_b32 s{s_hf}, s{S_W}, 2",
      f"s_lshl_b32 s{s_row}, s2, 3", f"s_add_u32 s{s_row}, s{s_row}, s{S_W}",
      f"s_lshl_b32 s{s_fq}, s{s_ct}, 4", f"s_add_u32 s{s_fq}, s{s_fq}, s{s_rt}", f"s_lshl_b32 s{s_fq}, s{s_fq}, {FS}", f"s_add_u32 s{s_fq}, s{s_fq}, {WS_FQ:#x}")
    a(f"s_lshl_b32 s{sX}, s{s_rt}, 17", f"s_lshl_b32 s62, s{S_W}, 14", f"s_add_u32 s{sX}, s{sX}, s62",
      f"s_mul_i32 s{sWq}, s{s_rb}, {16*3072}", f"s_mul_i32 s62, s{s_ct}, 192", f"s_add_u32 s{sWq}, s{sWq}, s62",
      f"s_mul_i32 s{sGU}, s{s_rb}, {16*3584}" if OPT["gload"] else f"s_mul_i32 s{sGU}, s{S_W}, {8*3584}", f"s_lshl_b32 s62, s{s_ft}, 8", f"s_add_u32 s{sGU}, s{sGU}, s62",
      f"s_lshl_b32 s{sLx}, s{S_W}, 11", f"s_mul_i32 s{sLw}, s{s_rb}, 3072", f"s_lshl_b32 s{sLg}, s{s_rb}, 12" if OPT["gload"] else f"s_lshl_b32 s{sLg}, s{S_W}, 11")
    a(f"s_lshl_b32 s{s_head}, s60, 2", "s_bfe_u32 s62, s2, 0x20003", f"s_add_u32 s{s_head}, s{s_head}, s62", f"s_lshr_b32 s{s_qb}, s2, 5",
      f"s_lshl_b32 s{s_q}, s{s_head}, 6", f"s_lshl_b32 s62, s{s_qb}, 3", f"s_add_u32 s{s_q}, s{s_q}, s62",
      f"s_lshl_b32 s62, s{s_rb}, 1", f"s_add_u32 s{s_q}, s{s_q}, s62", f"s_add_u32 s{s_q}, s{s_q}, s{s_hf}", f"s_lshl_b32 s{s_q}, s{s_q}, 10",
      f"s_lshl_b32 s{s_src}, s{s_head}, 17", f"s_add_u32 s{s_src}, s{s_src}, {WS_KV:#x}", f"s_lshl_b32 s62, s{s_hf}, 16", f"s_add_u32 s{s_src}, s{s_src}, s62",
      f"s_lshl_b32 s62, s{s_rb}, 11", f"s_add_u32 s{s_src}, s{s_src}, s62",
      f"s_mul_i32 s{s_lkv}, s{s_hf}, {8*TS}", f"s_mul_i32 s62, s{s_rb}, {TS}", f"s_add_u32 s{s_lkv}, s{s_lkv}, s62", f"s_add_u32 s{s_lkv}, s{s_lkv}, {AB}")
    a("v_lshrrev_b32 v30, 3, v0", "v_and_b32 v31, 7, v0", "v_bfe_u32 v32, v0, 4, 2", "v_xor_b32 v32, v32, v31",
      "v_lshlrev_b32 v30, 10, v30", "v_lshl_add_u32 v11, v32, 4, v30", "v_xor_b32 v12, 64, v11")
    for i in range(3):
        a(f"v_add_u32 v30, {64*i}, v0", "v_mul_u32_u24 v31, 5462, v30", "v_lshrrev_b32 v31, 16, v31",
          "v_mul_u32_u24 v32, 12, v31", "v_sub_u32 v32, v30, v32", "v_mul_u32_u24 v31, 3072, v31", f"v_lshl_add_u32 v{13+i}, v32, 4, v31")
    a("v_lshrrev_b32 v30, 4, v0", "v_and_b32 v31, 15, v0", "v_lshlrev_b32 v32, 1, v30", "v_xor_b32 v31, v31, v32",
      "v_mul_u32_u24 v30, 3584, v30", "v_lshl_add_u32 v28, v31, 4, v30", "v_xor_b32 v31, 8, v31", "v_lshl_add_u32 v29, v31, 4, v30")
    a("s_waitcnt lgkmcnt(0)")
    srd(a, SA, S_X, 2048*1024); srd(a, SBd, S_WQKV, 512*3072)
    if OPT["spin"] and OPT["dbg"] == 7:
        srd(a, 72, S_DBG, 256)
        a("s_not_b32 s60, s100", "v_mov_b32 v30, s60", "v_mov_b32 v31, 8", "s_mov_b64 exec, 1",
          "buffer_atomic_umax v30, v31, s[72:75], 0 offen", "s_mov_b64 exec, -1", "s_waitcnt vmcnt(0)")
    L_attn = "ATTN"
    srd(a, SD, S_WU, 512*3584); srd(a, 72, S_GW, 1024)
    g0 = unit_groups(a, None, 0, 0, ("Q", 0)); g1 = unit_groups(a, None, 1, 0, ("Q", 0))
    g0[0](); g0[1]()
    a(f"s_cmp_eq_u32 s{s_hf}, 0", "s_cbranch_scc1 PRO0")
    g1[2](); g1[3]()
    a("s_branch PRO1")
    a.label("PRO0")
    g0[2]()
    a.label("PRO1")
    srd(a, SWS, S_WS, WS_SIZE); srd(a, SCd, S_WG, 512*3584)
    a(f"s_sub_u32 s60, 11, s{s_hf}", f"s_cmp_ge_u32 s{s_ct}, s60", "s_cselect_b32 s60, 2, 0", f"s_lshl_b32 s61, s{s_hf}, 2", "s_add_u32 s60, s60, s61",
      f"s_xor_b32 s61, s{s_up}, 1", "s_add_u32 s60, s60, s61")
    order = [4, 0, 6, 2, 5, 1, 7, 3]
    for c in order[1:]: a(f"s_cmp_eq_u32 s60, {c}", f"s_cbranch_scc1 CLS{c}")
    for c in order:
        a.label(f"CLS{c}")
        gemm_phase(a, c >> 2, bool(c & 2), not (c & 1), L_attn)
    a(".p2align 6")
    a.label(L_attn)
    attention_phase(a, end)
    a.label(end)
    if OPT["spin"]:
        if OPT["dbg"] == 7:
            srd(a, 72, S_DBG, 256)
            a("v_mov_b32 v31, 8", "buffer_load_dword v30, v31, s[72:75], 0 offen sc1", "s_waitcnt vmcnt(0)", "v_readfirstlane_b32 s100, v30", "s_nop 3", "s_not_b32 s100, s100")
        a.label("SPIN")
        a("s_memrealtime s[36:37]", "s_waitcnt lgkmcnt(0)", "s_sub_u32 s36, s36, s100", f"s_cmp_lt_u32 s36, {OPT['spin']}", "s_cbranch_scc1 SPIN")
    if prof:
        a("s_waitcnt vmcnt(0) lgkmcnt(0)", "s_memrealtime s[36:37]", "s_memtime s[38:39]",
          "s_getreg_b32 s40, hwreg(HW_REG_XCC_ID)",
          "s_mov_b32 s32, s24", "s_and_b32 s33, s25, 0xffff", "s_mov_b32 s34, 0x2000000", "s_mov_b32 s35, 0x00020000",
          "s_lshl_b32 s41, s2, 3", f"s_add_u32 s41, s41, s{S_W}", "s_lshl_b32 s41, s41, 6",
          f"s_add_u32 s41, s41, {WS_PROF:#x}",
          "s_waitcnt lgkmcnt(0)", "s_sub_u32 s38, s38, s76",
          "v_mov_b32 v4, s100", "v_mov_b32 v5, s36", "v_mov_b32 v6, s38", "v_mov_b32 v7, s40", "v_mov_b32 v8, 0",
          "s_mov_b64 exec, 1",
          "buffer_store_dwordx4 v[4:7], v8, s[32:35], s41 offen")
        for i in range(1, 12): a(f"s_sub_u32 s{76+2*i}, s{76+2*i}, s76", f"v_mov_b32 v{11+i}, s{76+2*i}")
        a("v_mov_b32 v23, 0")
        for q in range(3): a(f"buffer_store_dwordx4 v[{12+4*q}:{15+4*q}], v8, s[32:35], s41 offen offset:{16+16*q}")
    a.label(end + "_x")
    a("s_endpgm")
    desc = f""".section .rodata,"a"
.p2align 6
.amdhsa_kernel {NAME}
  .amdhsa_next_free_vgpr 256
  .amdhsa_next_free_sgpr 102
  .amdhsa_accum_offset 256
  .amdhsa_group_segment_fixed_size 0
  .amdhsa_kernarg_size 88
  .amdhsa_user_sgpr_count 2
  .amdhsa_user_sgpr_kernarg_segment_ptr 1
  .amdhsa_system_sgpr_workgroup_id_x 1
.end_amdhsa_kernel
"""
    k = f"kernel={NAME} " if as_list else ""
    return HEADER + f"; @launch {k}grid=(256,1,1) block=(512,1,1) lds={LDS_BYTES}\n" + a.text() + desc

if __name__ == "__main__":
    out = sys.argv[1]
    for x in sys.argv[2:]:
        if x.startswith("seq="): SEQ[0] = x[4:]
        elif x.startswith("dist="): DIST[0] = x[5:]
        elif x.startswith("plan="): PLAN[:] = x[5:].split(",")
        elif "=" in x:
            k, v = x.split("="); OPT[k] = int(v)
    open(out, "w").write(build(prof=2 if "--prof2" in sys.argv else "--prof" in sys.argv, as_list="--list" in sys.argv))
```

```python
import sys
from asmlib import *

NAME = "gated_mix__softmax_full_mha__glu_gated_bilinear__prompt_kernel"
HEADER = open("gated_mix__softmax_full_mha__glu_gated_bilinear__prompt.s.ref").read().split("; Override launch")[0]

WS_QF = 0x000000
WS_KV = 0x200000
WS_OF = 0x600000
WS_HF = 0x800000
WS_GG = 0xF00000
WS_EP = 0xF04000
WS_FQ = 0xF10000
WS_FO = 0xF30000
WS_FH = 0xF70000
WS_DUM = 0xFB0000
WS_SIZE = 0x17B0000
FS = 7
WS_PROF = 0x1800000
QSCALE = 0x3EB8AA3B
LOG2E = 0x3FB8AA3B
LDS_BYTES = 163840

S_X, S_WQKV, S_WO, S_WG, S_WU, S_WD, S_GW, S_OUT, S_DBG, S_WS = 4, 6, 8, 12, 14, 16, 18, 20, 22, 24
S_TAG, S_W = 26, 27
SWS, SA, SBd, SCd, SD = 28, 32, 36, 40, 44
SC = " sc1"
SEQ = ['QGQQQGQQQQGGGGGG']
DIST = ['2222222222222222']
OPT = dict(v2=1, hst=4, c1it=-2, fil=2, rg2=4, stp=1, qpipe=1, qord=0, rq1=4, rq0=0, xre=8, nt=0, early=0, rq=2, rg=8, st2=1, gload=0, qpo=4, qfirst=1, kvs=60, wstart=1, hpub=2, bal=2, dend=29, spin=0, gpf=3, map=0, tlb=0, glate=0, dq=2, dg=2, dswitch=7, qpub=10, rot=3, dbg=0, sleep=2, dstart=8, dback=2)

def srd(a, d, p, nbytes):
    a(f"s_mov_b32 s{d}, s{p}", f"s_and_b32 s{d+1}, s{p+1}, 0xffff",
      f"s_mov_b32 s{d+2}, {hex(nbytes)}", f"s_mov_b32 s{d+3}, 0x00020000")

def dma(a, voff, srd_, soff, pre, imm=0, flags=""):
    for l in pre: a(l)
    o = f" offset:{imm}" if imm else ""
    a(f"buffer_load_dwordx4 v{voff}, s[{srd_}:{srd_+3}], {soff} offen{o}{flags} lds")

def poll(a, s_base, voff, mask, vt, st, staged=True):
    a(f"s_mov_b32 s{st}, 0x80000")
    for stage in range(0 if staged else 1, 2):
        L = a.newlabel("POLL"); Ld = a.newlabel("POLLD")
        if stage == 0: a("s_mov_b64 exec, 1")
        elif mask == (1 << 64) - 1: a("s_mov_b64 exec, -1")
        else: a(f"s_mov_b32 exec_lo, {mask & 0xffffffff:#x}", f"s_mov_b32 exec_hi, {mask >> 32:#x}")
        a.label(L)
        a(f"buffer_load_dword v{vt}, v{voff}, s[{SWS}:{SWS+3}], s{s_base} offen sc1",
          "s_waitcnt vmcnt(0)",
          f"v_cmp_ne_u32 vcc, s{S_TAG}, v{vt}",
          f"s_cbranch_vccz {Ld}",
          "s_mov_b64 exec, vcc",
          f"s_sleep {OPT['sleep']}",
          f"s_sub_u32 s{st}, s{st}, 1",
          f"s_cbranch_scc0 {L}")
        a.label(Ld)
    a("s_mov_b64 exec, -1")

def set_flag(a, s_off, vt):
    a(f"v_mov_b32 v{vt}, 0", f"v_mov_b32 v{vt+1}, s{S_TAG}", "s_mov_b64 exec, 1",
      f"buffer_store_dword v{vt+1}, v{vt}, s[{SWS}:{SWS+3}], s{s_off} offen sc1", "s_mov_b64 exec, -1")

PLAN = ["issued", "qkv", "up", "loop", "loopend", "oflag", "prepoll", "polled", "outmf"]
class VM:
    def __init__(self): self.q = []
    def add(self, tag, n=1): self.q += [tag] * n
    def wait_for(self, pred):
        idx = [i for i, t in enumerate(self.q) if pred(t)]
        if not idx: return None
        n = len(self.q) - 1 - idx[-1]
        self.q = self.q[idx[-1]+1:]
        return n

def vw(a, vm, pred, extra=""):
    n = vm.wait_for(pred)
    if n is not None: a(f"s_waitcnt vmcnt({n}){extra}")
    elif extra: a(f"s_waitcnt{extra}")

SLOT = 32768
TS = 2080; CS = 16*TS; AB = 32768
ORDER = "e0 e1 N e2 e3 c0 e4 e5 W c1 S M e6 e7 c2 e8 e9 c3 e10 e11 c4 e12 P e13 c5 e14 e15 c6 c7"

s_rt, s_ct, s_ft, s_rb, s_hf, s_up = 48, 49, 50, 51, 52, 53
sX, sWq, sGU, sLx, sLw, sLg = 54, 55, 56, 57, 58, 59
T1, T2, T3, T4 = 60, 61, 62, 63
s_head, s_qb, s_src, s_lkv, s_q = 64, 65, 66, 67, 68
s_row, s_fq, sGo = 69, 70, 71
s_ho = 57
sQx, sQw, s_of = 15, 19, 18
sEX = 0
s_r64, s_c64, s_x0, s_wd, s_wo, s_lw, s_fh, s_i, s_kq = 4, 5, 6, 7, 10, 11, 12, 13, 14
s_qw, s_kh = s_rb, s_hf
WF, ACC, ACCQ, XR, STG = 32, 64, 128, 160, 240
NXR = 6
Q, K, S, O, WD, V, P, T0, C = 16, 24, 128, 160, 192, 208, 224, 232, 240
AD, XD = 64, 32
vL16, vKA, vVA, vVB, vWR, vWO, vWO2, vX2, vFO = 1, 2, 3, 4, 5, 11, 12, 13, 14
vX1, vXS, vXR = 7, 8, 9
vG1, vG2 = 28, 30
D = 4; NK = 14
HMASK = 0x1f1f

def late_scalars(a):
    a("s_and_b32 s60, s2, 7", "s_lshr_b32 s61, s2, 3", f"s_lshl_b32 s{s_r64}, s60, 2", "s_and_b32 s60, s61, 3", f"s_add_u32 s{s_r64}, s{s_r64}, s60",
      f"s_lshr_b32 s{s_c64}, s61, 2", f"s_mov_b32 s{sEX}, 0xffff", f"s_mov_b32 s{sEX+1}, 0xffff",
      f"s_and_b32 s{s_i}, s{S_W}, 1", f"s_lshr_b32 s{s_kq}, s{S_W}, 1")
    a(f"s_mul_i32 s60, s{s_r64}, 224", f"s_mul_i32 s61, s{S_W}, {NK}", "s_add_u32 s60, s60, s61",
      f"s_lshl_b32 s{s_x0}, s60, 10", f"s_add_u32 s{s_x0}, s{s_x0}, {WS_HF:#x}",
      f"s_lshl_b32 s{s_wd}, s61, 14", f"s_lshl_b32 s60, s{s_c64}, 7", f"s_add_u32 s{s_wd}, s{s_wd}, s60",
      f"s_lshl_b32 s{s_wo}, s{S_W}, 16", f"s_add_u32 s{s_wo}, s{s_wo}, s60",
      f"s_lshl_b32 s{s_lw}, s{s_qw}, 13", f"s_lshl_b32 s60, s{s_kh}, 17", f"s_add_u32 s{s_lw}, s{s_lw}, s60")
    a(f"s_lshl_b32 s60, s{s_rt}, 2", f"s_add_u32 s60, s60, s{s_rb}", "s_lshl_b32 s60, s60, 5", f"s_lshl_b32 s61, s{s_ft}, 1", "s_add_u32 s60, s60, s61",
      f"s_add_u32 s60, s60, s{s_hf}", f"s_lshl_b32 s60, s60, {FS}", f"s_add_u32 s{s_fh}, s60, {WS_FH:#x}")

    a(f"s_lshl_b32 s60, s{s_qb}, 3", f"s_lshl_b32 s61, s{s_qw}, 1", "s_add_u32 s60, s60, s61", f"s_add_u32 s60, s60, s{s_kh}",
      "s_lshl_b32 s60, s60, 5", f"s_add_u32 s60, s60, s{s_head}", f"s_lshl_b32 s{s_of}, s60, 10", f"s_add_u32 s{s_of}, s{s_of}, {WS_OF:#x}")

def attn_addr_setup(a):
    srd(a, SA, S_WD, 1792*1024); srd(a, SBd, S_WO, 512*1024)
    a(f"s_mul_i32 s54, s{s_kh}, {8*TS}", f"s_add_u32 s54, s54, {AB}", f"v_add_u32 v{vKA}, s54, v{vL16}",
      f"v_lshrrev_b32 v{T0+4}, 5, v0", f"v_lshlrev_b32 v{T0}, 8, v{T0+4}", f"v_and_b32 v{T0+1}, 15, v0", f"v_lshl_add_u32 v{T0}, v{T0+1}, 4, v{T0}",
      f"v_and_b32 v{T0+1}, 11, v0", f"v_cmp_eq_u32 vcc, 0, v{T0+1}", f"v_mov_b32 v{T0+2}, 16", "s_nop 0",
      f"v_cndmask_b32 v{T0+2}, v{T0+2}, 0, vcc",
      f"v_add_u32 v{T0+3}, 1024, v{T0+2}", f"v_add_u32 v{T0+2}, 512, v{T0+2}",
      f"v_cndmask_b32 v{vVA}, v{T0+3}, v{T0}, s[{sEX}:{sEX+1}]", f"v_cndmask_b32 v{vVB}, v{T0+2}, v{T0}, s[{sEX}:{sEX+1}]",
      f"v_add_u32 v{vVA}, s54, v{vVA}", f"v_add_u32 v{vVB}, s54, v{vVB}")
    a(f"v_lshrrev_b32 v{T0}, 3, v0", f"v_lshlrev_b32 v{T0}, 10, v{T0}", f"v_bfe_u32 v{T0+1}, v0, 4, 1", f"v_lshlrev_b32 v{T0+2}, 2, v{T0+1}",
      f"v_and_b32 v{T0+3}, 7, v0", f"v_xor_b32 v{T0+2}, v{T0+2}, v{T0+3}", f"v_lshl_add_u32 v{vWO}, v{T0+2}, 4, v{T0}",
      f"v_add_u32 v{vWO2}, {8192-1024}, v{vWO}", f"s_mul_i32 s54, s{s_i}, {112*1024}", f"v_add_u32 v{vX2}, s54, v{vL16}")
    a(f"v_bfe_u32 v{T0+2}, v0, 2, 2", f"v_lshl_add_u32 v{T0}, v{T0+4}, 2, v{T0+2}", f"v_lshlrev_b32 v{T0}, 7, v{T0}",
      f"v_lshrrev_b32 v{T0+2}, 1, v{T0+2}", f"v_lshl_add_u32 v{T0}, v{T0+2}, 6, v{T0}",
      f"v_lshl_add_u32 v{T0}, v{T0+1}, 5, v{T0}", f"v_and_b32 v{T0+2}, 3, v0", f"v_lshl_add_u32 v{T0}, v{T0+2}, 3, v{T0}",
      f"s_lshl_b32 s54, s{s_kq}, 5", f"v_xor_b32 v{T0}, s54, v{T0}",
      f"v_add_u32 v{vWR}, s{s_lw}, v{T0}", f"v_xor_b32 v{vWR+1}, 64, v{vWR}")
    a(f"s_mul_i32 s54, s{S_W}, 14", "s_add_u32 s55, s54, 13", "s_lshr_b32 s54, s54, 2", "s_lshr_b32 s55, s55, 2",
      f"v_and_b32 v{vFO}, 7, v0", f"v_add_u32 v{vFO}, s54, v{vFO}", f"v_min_u32 v{vFO}, s55, v{vFO}",
      f"v_bfe_u32 v{T0}, v0, 3, 1", f"s_lshl_b32 s54, s{s_r64}, 1", f"v_add_u32 v{T0}, s54, v{T0}",
      f"v_lshl_add_u32 v{vFO}, v{T0}, 5, v{vFO}", f"v_lshlrev_b32 v{vFO}, {FS}, v{vFO}")

def ones_init(a):
    a(f"v_and_b32 v{T0}, 31, v0", f"v_mul_u32_u24 v{T0}, {TS}, v{T0}", f"v_lshrrev_b32 v{T0+1}, 5, v0", f"v_lshl_add_u32 v{T0}, v{T0+1}, 4, v{T0}",
      f"v_cmp_eq_u32 vcc, 0, v{T0+1}", f"v_mov_b32 v{T0+4}, 0x3f803f80", "s_nop 0", f"v_cndmask_b32 v{T0+4}, 0, v{T0+4}, vcc",
      f"v_mov_b32 v{T0+5}, v{T0+4}", f"v_mov_b32 v{T0+6}, v{T0+4}", f"v_mov_b32 v{T0+7}, v{T0+4}",
      f"ds_write_b128 v{T0}, {vr(T0+4,4)} offset:{AB+2048}")

def rd(it, vbuf):
    off = ((it // 8) % 2) * CS + (it % 8) * TS
    return [f"ds_read_b128 {vr(K,4)}, v{vKA} offset:{off}",
            f"ds_read_b128 {vr(V+8*vbuf,4)}, v{vVA} offset:{off+1024}",
            f"ds_read_b128 {vr(V+8*vbuf+4,4)}, v{vVB} offset:{off+1536}"]

def standin(a, part):
    if part == 0:
        if not OPT["v2"]: a(f"ds_read_b128 {vr(P,4)}, v{vL16} offset:{AB}")
        a(*rd(0, 0))
    elif part == 1:
        a(mfma(S, P, Q, "0"), mfma(S+16, P, Q+4, "0"))
    else:
        for t in range(2):
            b = S + 16*t; m = T0 + t
            a(f"v_max3_f32 v{m}, v{b}, v{b+1}, v{b+2}")
            for r in range(3, 15, 2): a(f"v_max3_f32 v{m}, v{m}, v{b+r}, v{b+r+1}")
            a(f"v_max_f32 v{m}, v{m}, v{b+15}")
            a(f"v_mov_b32 v{T0+2}, v{m}", "s_nop 1", f"v_permlane32_swap_b32 v{m}, v{T0+2}", "s_nop 1", f"v_max_f32 v{m}, v{m}, v{T0+2}")
        a(f"v_min_f32 v{T0}, v{T0}, v{T0+1}")
        for r in range(16): a(f"v_sub_f32 v{C+r}, 0, v{T0}")
        if not OPT["v2"]: a("s_nop 1", mfma(S, K, Q, C))

def unit_groups(a, vm, hf, n, u):
    vXO, vWQ, vGO, vUO = 11, 13, 28, 29
    slot = (n % 5) * SLOT
    typ, k = u
    G = []
    def mk(voff, sr_, pre):
        def f():
            dma(a, voff, sr_, f"s{T1}", pre, flags=" nt" if (OPT["nt"] >> (0 if sr_ == SA else 1 if sr_ == SBd else 2)) & 1 else "")
            if vm: vm.add(("u", n))
        return f
    if typ == "Q":
        pre0 = [f"s_add_u32 s{sQw}, s3, {k}", f"s_and_b32 s{sQw}, s{sQw}, 7", f"s_lshl_b32 s{sQx}, s{sQw}, 7", f"s_add_u32 s{sQx}, s{sQx}, s{sX}",
                f"s_mul_i32 s{sQw}, s{sQw}, {64*3072}"]
        for jj in range(2):
            G.append(mk(vXO + jj, SA, (pre0 if jj == 0 else []) + [f"s_add_u32 m0, s{sLx}, {slot + jj*1024}", f"s_add_u32 s{T1}, s{sQx}, {jj*8192}"]))
        for i in ((0,) if hf == 0 else (1, 2)):
            G.append(mk(vWQ + i, SBd, [f"s_add_u32 m0, s{sLw}, {slot + 16384 + i*1024}", f"s_add_u32 s{T1}, s{sWq}, s{sQw}"]))
    else:
        pre0 = [f"s_add_u32 s{sGo}, s3, {k}", f"s_and_b32 s{sGo}, s{sGo}, 7", f"s_mul_i32 s{sGo}, s{sGo}, {64*3584}", f"s_add_u32 s{sGo}, s{sGo}, s{sGU}"]
        for h in range((4 if hf == 1 else 0) if OPT["gload"] else 2):
            G.append(mk(vGO, SCd, (pre0 if h == 0 else []) + [f"s_add_u32 m0, s{sLg}, {slot + h*1024}", f"s_add_u32 s{T1}, s{sGo}, {h*4*3584}"]))
            G.append(mk(vUO, SD, [f"s_add_u32 m0, s{sLg}, {slot + 16384 + h*1024}", f"s_add_u32 s{T1}, s{sGo}, {h*4*3584}"]))
    return G

def parse_seq(txt):
    seq = []; c = {"Q": 0, "G": 0}
    for ch in txt: seq.append((ch, c[ch])); c[ch] += 1
    return seq

def gemm_phase(a, hf, swap, up, L_attn):
    seq = parse_seq(SEQ[0] if up else "Q"*8)
    N = len(seq)
    vm = VM()
    vm.add(("u", 0), 3 + hf)
    vXA, vWA, vGA = 2, 6, 7
    vT = 24
    nb = 2 if hf == 0 else 1
    b0 = 0 if hf == 0 else 2
    lastQ = max(i for i, u in enumerate(seq) if u[0] == "Q")
    if up:
        for k in range(NXR, 8): assert seq.index(("G", k-NXR)) < seq.index(("Q", k))
        for k in range(8): assert seq.index(("Q", k)) < seq.index(("G", k))
        assert seq.index(("G", 4)) < N-2 and seq.index(("G", 5)) < N-1
    dist = OPT["dq"]
    fifo = [(n, f) for n in range(1, N) for f in unit_groups(a, vm, hf, n, seq[n])]
    def pump(n, cnt, upto=None):
        while fifo and fifo[0][0] <= n + 4 and (cnt > 0 or (upto is not None and fifo[0][0] <= upto)):
            fifo.pop(0)[1](); cnt -= 1
    pump(-1, 0, dist - 1)
    a.stamp("issued")
    a(f"v_mov_b32 v{vT}, 0", f"s_mov_b32 s{T1}, {WS_EP:#x}",
      f"buffer_load_dword v{vT+1}, v{vT}, s[{SWS}:{SWS+3}], s{T1} offen sc1")
    vm.add("E")
    a(f"s_lshl_b32 s{T1}, s{s_row}, 10",
      f"buffer_load_dwordx4 v[16:19], v{vL16}, s[72:75], 0 offen",
      f"buffer_load_dwordx4 v[20:23], v{vL16}, s[{SA}:{SA+3}], s{T1} offen")
    vm.add("G", 2)
    late_scalars(a)
    a("v_and_b32 v30, 31, v0", "v_lshrrev_b32 v31, 5, v0", "v_bfe_u32 v32, v0, 1, 3", "v_xor_b32 v32, v32, v31",
      f"s_lshl_b32 s{T1}, s{s_rb}, 12", "v_lshlrev_b32 v33, 7, v30", f"v_add_u32 v33, s{T1}, v33")
    for s in range(4): a(f"v_xor_b32 v34, {2*s}, v32", f"v_lshl_add_u32 v{vXA+s}, v34, 4, v33")
    a("v_bfe_u32 v32, v0, 2, 2", "v_lshl_add_u32 v33, v31, 3, v32", "v_mul_u32_u24 v34, 192, v33",
      "v_bfe_u32 v35, v0, 4, 1", "v_lshl_add_u32 v34, v35, 5, v34", "v_and_b32 v36, 3, v0", "v_lshl_add_u32 v34, v36, 3, v34",
      f"v_add_u32 v{vWA}, {16384 + b0*64}, v34")
    a("v_lshlrev_b32 v33, 8, v33", "v_lshl_add_u32 v33, v35, 14, v33", "v_lshl_add_u32 v33, v36, 3, v33", "v_bfe_u32 v32, v0, 2, 3")
    for f in range(4): a(f"v_xor_b32 v34, {4*hf+f}, v32", f"v_lshl_add_u32 v{vGA+f}, v34, 5, v33")
    cur = {"Q": 0, "G": 0}
    def rebase(n):
        typ = seq[n][0]; slot = n % 5
        if not (cur[typ] <= slot <= cur[typ] + 1):
            d = ((slot - cur[typ]) * SLOT) & 0xffffffff
            for r in (list(range(vXA, vXA+4)) + [vWA] if typ == "Q" else range(vGA, vGA+4)): a(f"v_add_u32 v{r}, {d:#x}, v{r}")
            cur[typ] = slot
        return (slot - cur[typ]) * SLOT
    def xreg(k, s): return XR + 16*(k % NXR) + 4*s
    def reads(n, s, off):
        typ, k = seq[n]; p = s % 2; R = []
        if typ == "Q":
            R.append(f"ds_read_b128 {vr(xreg(k,s),4)}, v{vXA+s} offset:{off}")
            for b in range(nb):
                for t in range(2):
                    R.append(f"ds_read_b64_tr_b16 {vr(WF+8*s+4*b+2*t,2)}, v{vWA} offset:{off+(16*s+4*t)*192+b*64}")
        else:
            for f in range(4):
                for t in range(2):
                    R.append(f"ds_read_b64_tr_b16 {vr(WF+16*p+4*f+2*t,2)}, v{vGA+f} offset:{off+(16*s+4*t)*256}")
        return R
    def mf(n, s):
        typ, k = seq[n]; p = s % 2; x = xreg(k, s); c = "0" if (k == 0 and s == 0) else None
        if typ == "Q":
            return [mfma(ACCQ+16*b, x, WF+8*s+4*b, c) if swap else mfma(ACCQ+16*b, WF+8*s+4*b, x, c) for b in range(nb)]
        return [mfma(ACC+16*f, WF+16*p+4*f, x, c) for f in range(4)]
    def qkv_epilogue():
        ST = []
        def mk(line):
            def f(): a(line); vm.add("Q")
            return f
        for b in range(nb):
            o1, o2 = 72 + 2*b, 73 + 2*b
            a(f"s_mul_i32 s{T1}, s{s_ct}, 3", f"s_add_u32 s{T1}, s{T1}, {b0+b}", f"s_and_b32 s{T2}, s{T1}, 15", f"s_lshl_b32 s{T2}, s{T2}, 7",
              f"s_lshl_b32 s{T3}, s{s_rt}, 2", f"s_add_u32 s{T3}, s{T3}, s{s_rb}", f"s_add_u32 s{T2}, s{T2}, s{T3}")
            A = ACCQ + 16*b; Dd = A
            if not swap:
                a(f"s_lshl_b32 s{T3}, s{T2}, 10", f"s_lshl_b32 s{T2}, s{T2}, 11", f"s_add_u32 s{T2}, s{T2}, {WS_KV:#x}",
                  f"s_cmp_lt_u32 s{T1}, 16", f"s_cselect_b32 s{o1}, s{T3}, s{T2}",
                  f"s_cselect_b32 s{T3}, 1, 2", f"s_cselect_b32 s{T4}, {QSCALE:#x}, 1.0",
                  f"s_lshl_b32 s{T3}, s{T3}, 16", f"s_add_u32 s{o2}, s{T3}, s{o1}")
                for r in range(16): a(f"v_mul_f32 v{A+r}, s{T4}, v{A+r}")
                va = vL16
            else:
                a(f"s_lshl_b32 s{T2}, s{T2}, 11", f"s_add_u32 s{o1}, s{T2}, {WS_KV+1024:#x}", f"s_add_u32 s{o2}, s{o1}, 512")
                if b == 0:
                    a("v_bfe_u32 v30, v0, 4, 1", "v_lshlrev_b32 v30, 17, v30", "v_lshrrev_b32 v31, 5, v0", "v_lshl_add_u32 v30, v31, 8, v30",
                      "v_and_b32 v31, 15, v0", "v_lshl_add_u32 v15, v31, 4, v30")
                va = 15
            for j in range(8): a(f"v_cvt_pk_bf16_f32 v{Dd+j}, v{A+2*j}, v{A+2*j+1}")
            ST.append(mk(f"buffer_store_dwordx4 {vr(Dd,4)}, v{va}, s[{SWS}:{SWS+3}], s{o1} offen{SC}"))
            ST.append(mk(f"buffer_store_dwordx4 {vr(Dd+4,4)}, v{va}, s[{SWS}:{SWS+3}], s{o2} offen{SC}"))
        return ST
    def gate_compute():
        acc = vT + 2
        a(f"s_mov_b32 s{T4}, 0xffff0000")
        for j in range(4):
            a(f"v_lshlrev_b32 v30, 16, v{16+j}", f"v_and_b32 v{16+j}, s{T4}, v{16+j}",
              f"v_lshlrev_b32 v31, 16, v{20+j}", f"v_and_b32 v{20+j}, s{T4}, v{20+j}",
              "v_mul_f32 v30, v30, v31", f"v_mul_f32 v31, v{16+j}, v{20+j}",
              "v_cvt_pk_bf16_f32 v30, v30, v31", f"v_and_b32 v31, s{T4}, v30", "v_lshlrev_b32 v30, 16, v30")
            if j == 0: a(f"v_add_f32 v{acc}, v30, v31")
            else: a(f"v_add_f32 v{acc}, v{acc}, v30", f"v_add_f32 v{acc}, v{acc}, v31")
        for sh in (8, 4, 2, 1):
            a("s_nop 1", f"v_add_f32_dpp v{acc}, v{acc}, v{acc} row_ror:{sh} row_mask:0xf bank_mask:0xf")
        a("s_nop 1")
        for q in range(4): a(f"v_readlane_b32 s{T1+q}, v{acc}, {16*q}")
        a("s_nop 1", f"v_mov_b32 v{acc}, s{T1}", f"v_add_f32 v{acc}, s{T2}, v{acc}", f"v_add_f32 v{acc}, s{T3}, v{acc}", f"v_add_f32 v{acc}, s{T4}, v{acc}")
        a(f"v_cvt_pk_bf16_f32 v{acc}, v{acc}, v{acc}", f"v_lshlrev_b32 v{acc}, 16, v{acc}",
          f"v_mul_f32 v{acc}, {(LOG2E | 0x80000000):#x}, v{acc}", f"v_exp_f32 v{acc}, v{acc}", "s_nop 0",
          f"v_add_f32 v{acc}, 1.0, v{acc}", f"v_rcp_f32 v{acc}, v{acc}", "s_nop 0",
          f"v_cvt_pk_bf16_f32 v{acc}, v{acc}, v{acc}", f"v_lshlrev_b32 v{acc}, 16, v{acc}")
    def tag_finish_and_gate_store():
        acc = vT + 2
        a(f"v_readfirstlane_b32 s{S_TAG}, v{vT+1}", f"v_readfirstlane_b32 s{T1}, v16", "s_nop 3",
          f"s_mul_i32 s{S_TAG}, s{S_TAG}, 1664525", f"s_add_u32 s{S_TAG}, s{S_TAG}, 1013904223", f"s_or_b32 s{S_TAG}, s{S_TAG}, 1",
          f"s_cmp_lg_u32 s{T1}, 0", f"s_cselect_b32 s{S_TAG}, s{T1}, s{S_TAG}",
          f"s_lshl_b32 s{T1}, s{s_row}, 3", f"s_add_u32 s{T1}, s{T1}, {WS_GG:#x}",
          f"v_mov_b32 v{acc+1}, s{S_TAG}", "s_mov_b64 exec, 1",
          f"buffer_store_dwordx2 v[{acc}:{acc+1}], v{vT}, s[{SWS}:{SWS+3}], s{T1} offen sc1", "s_mov_b64 exec, -1")
        vm.add("g")
        for j in range(4): a(f"v_mov_b32 v{20+j}, -1")
        a(f"buffer_store_dwordx4 v[20:23], v{vL16}, s[{SWS}:{SWS+3}], s{s_of} offen{SC}")
        vm.add("P")
    def publish_q():
        if hf == 0:
            Lf = a.newlabel("QF"); a(f"s_cmp_lg_u32 s{S_W}, 0", f"s_cbranch_scc1 {Lf}"); set_flag(a, s_fq, 30)
            a(f"s_lshl_b32 s{T1}, s2, {FS}", f"s_add_u32 s{T1}, s{T1}, {WS_FO:#x}"); set_flag(a, T1, 30)
            a.label(Lf)
    PM = []; ST = []; FIL = []
    def fill(k):
        for _ in range(min(k, len(FIL))): a(FIL.pop(0))
    def capture(fn):
        b = Asm(); fn(b); return [l.strip() for l in b.lines]
    gpos = [i for i, u in enumerate(seq) if u[0] == 'G'] if up else [1, 2]
    qpub = lastQ + OPT['qpo']
    for n in range(N):
        typ = seq[n][0]
        a.stamp(f"e{n}")
        vw(a, vm, lambda t: t == ("u", n) or (n == qpub and t == "Q") or (n == N-1 and up and OPT["early"] and t == ("c", 0)), " lgkmcnt(0)" if n else "")
        a.stamp(f"pre{n}")
        a("s_barrier")
        a.stamp(f"b{n}")
        off = rebase(n)
        for s in range(4):
            if typ == "Q":
                nr = 1 + 2*nb
                if s == 0:
                    M = PM; PM = []; hm = (len(M) + 1) // 2
                    if OPT["qord"] and hf == 1:
                        a(*M) if M else None
                        pump(n, OPT["rq1"]); M = []
                    a(*reads(n, 0, off)); a(*M[:hm]) if M else None
                    a(*reads(n, 1, off)); a(*M[hm:]) if len(M) > hm else None
                    if OPT["qord"] == 2 and hf == 0: pump(n, 1)
                    a(*reads(n, 2, off))
                    if 4*nr > 15: a(f"s_waitcnt lgkmcnt({15 - nr})")
                    a(*reads(n, 3, off))
                    a.stamp(f"r{n}")
                    if not OPT["qord"]: pump(n, OPT["rq"])
                    elif hf == 0: pump(n, OPT["rq0"])
                    a.stamp(f"p{n}")
                elif s == 3 and OPT["qpipe"]:
                    PM = mf(n, 2) + mf(n, 3)
                    pump(n, 0, n + int(DIST[0][n]))
                else:
                    a(f"s_waitcnt lgkmcnt({(4-s)*nr})"); a(*mf(n, s-1))
                    pump(n, 1 if OPT["qord"] and hf == 0 else 0, n + int(DIST[0][n]) if s == 3 else None)
                    if s == 3: PM = mf(n, 3)
            else:
                R = reads(n, s, off); M = PM
                if s > 0: a("s_waitcnt lgkmcnt(0)")
                rgt = OPT["rg"] if n < lastQ else OPT["rg2"]
                rg = rgt // 4 + (1 if s < rgt % 4 else 0)
                for j in range(max(len(M), 2)):
                    if j < len(M): a(M[j])
                    if j < 2: a(*R[4*j:4*j+4])
                    fill(OPT["fil"] if j < 2 else OPT["fil"] + 2)
                    if j == 2:
                        g = 4*n + s - (4*lastQ + 6); sp = OPT["stp"]
                        if ST and (not sp or (g % sp == 0 if hf == 0 else g % (2*sp) == sp // 2)): ST.pop(0)()
                        pump(n, rg // 2)
                if ST and OPT["st2"] and not OPT["stp"]: ST.pop(0)()
                pump(n, rg - (rg // 2 if len(M) > 2 else 0), n + int(DIST[0][n]) if s == 3 else None)
                PM = mf(n, s)
            if n == lastQ + 1 and s == 1:
                a.stamp("qkv")
                ST = qkv_epilogue()
            if n == qpub and s == 0:
                assert not ST
                publish_q()
            if (n, s) == ((gpos[0], 1) if hf == 0 else (gpos[0], 3)):
                vw(a, vm, lambda t: t == "G"); gate_compute()
                srd(a, 72, S_DBG, 256)
                a(f"buffer_load_dword v16, v{vT}, s[72:75], 0 offen sc1"); vm.add("D")
            if s == 2 and n == 6:
                vw(a, vm, lambda t: t == "D"); tag_finish_and_gate_store()
                if hf == 0:
                    L = a.newlabel("NOUPD")
                    a(f"s_cmp_lg_u32 s{s_row}, 1", f"s_cbranch_scc1 {L}",
                      f"v_mov_b32 v30, s{S_TAG}", f"s_mov_b32 s{T1}, {WS_EP:#x}", "s_mov_b64 exec, 1",
                      f"buffer_store_dword v30, v{vT}, s[72:75], 0 offen sc1", "s_waitcnt vmcnt(0)",
                      f"buffer_store_dword v30, v{vT}, s[{SWS}:{SWS+3}], s{T1} offen sc1", "s_mov_b64 exec, -1", "s_waitcnt vmcnt(0)")
                    a.label(L)
            if up:
                kv = OPT["kvs"]
                if 4*n+s == kv - 3: qflag_load(a, vm)
                if 4*n+s == kv: attn_prefetch(a, vm, 0)
                if OPT["fil"]:
                    if n == N-3 and s == 0: FIL += capture(attn_addr_setup)
                    if n == N-2 and s == 0: FIL += capture(ones_init)
                    if 4*n+s == kv - 4: fill(len(FIL))
                else:
                    if n == N-2 and s == 1: attn_addr_setup(a)
                    if n == N-2 and s == 2: ones_init(a)
                if OPT["early"]:
                    if n == N-1 and s == 0: standin(a, 0); attn_prefetch(a, vm, 1)
                    if n == N-1 and s == 1: standin(a, 1)
                    if n == N-1 and s == 3: standin(a, 2)
    a("s_waitcnt lgkmcnt(0)"); a(*PM)
    if up:
        a.stamp("up")
        if OPT["bal"]: a("s_setprio 3")
        a(f"s_lshl_b32 s{T1}, s{s_rt}, 2", f"s_add_u32 s{T1}, s{T1}, s{s_rb}", f"s_mul_i32 s{T1}, s{T1}, 112",
          f"s_lshl_b32 s{T2}, s{s_ft}, 3", f"s_add_u32 s{T1}, s{T1}, s{T2}", f"s_lshl_b32 s{T1}, s{T1}, 10",
          f"s_add_u32 s{s_ho}, s{T1}, {WS_HF + hf*4096:#x}", "s_nop 4")
        def hepi(f):
            A = ACC + 16*f
            for j in range(0, 8, 2): a(f"v_pk_mul_f32 {vr(A+j,2)}, {vr(A+j,2)}, {vr(A+8+j,2)}")
            for j in range(4): a(f"v_cvt_pk_bf16_f32 v{A+8+j}, v{A+2*j}, v{A+2*j+1}")
        assert not FIL
        if OPT["c1it"] == -3: attn_prefetch(a, vm, 1)
        hepi(0); hepi(1)
        if OPT["c1it"] == -3: hstore(a, vm, 0); hstore(a, vm, 1)
        vw(a, vm, lambda t: t == "q"); standin(a, 1)
        hepi(2); hepi(3); a("s_nop 3")
        if OPT["c1it"] == -3: hstore(a, vm, 2); hstore(a, vm, 3)
        standin(a, 2)
        if OPT["c1it"] == -2: attn_prefetch(a, vm, 1)
        if OPT["c1it"] != -3:
            for f in range(OPT["hst"]): hstore(a, vm, f)
        vw(a, vm, lambda t: t == ("c", 0)); a("s_barrier")
        a.stamp("kv")
        assert vm.q == [("c", 1)]*(4 if OPT["c1it"] <= -2 else 0) + ["h"]*OPT["hst"], vm.q
    else:
        a("s_nop 7", "s_nop 3")
        for f in qkv_epilogue(): f()
        a("s_waitcnt vmcnt(0)", "s_barrier")
        publish_q()
        a(f"s_lshl_b32 s{s_ho}, s{s_row}, 12", f"s_add_u32 s{s_ho}, s{s_ho}, {WS_DUM:#x}")
        vm = VM(); qflag_load(a, vm); attn_addr_setup(a); ones_init(a); attn_prefetch(a, vm, 0)
        a("s_waitcnt vmcnt(0) lgkmcnt(0)", "s_barrier")
        standin(a, 1); a("s_nop 7", "s_nop 7"); standin(a, 2)
        if OPT["c1it"] <= -2: attn_prefetch(a, vm, 1); a("s_waitcnt vmcnt(0)")
        else:
            for f in range(OPT["hst"]): hstore(a, vm, f)
    a(f"s_branch {L_attn}")

def hstore(a, vm, f):
    a(f"buffer_store_dwordx4 {vr(ACC+16*f+8,4)}, v{vL16}, s[{SWS}:{SWS+3}], s{s_ho} offen offset:{f*1024}{SC}")
    vm.add("h")

def issue_chunk(a, cslot):
    for h in range(2):
        a(f"s_add_u32 m0, s{s_lkv}, {cslot*CS + 4*h*TS}")
        if h == 0: a("s_nop 0")
        else: a(f"s_add_u32 s{s_src}, s{s_src}, 8192")
        a(f"buffer_load_dwordx4 v{vL16}, s[{SWS}:{SWS+3}], s{s_src} offen{SC} lds",
          f"buffer_load_dwordx4 v{vL16}, s[{SWS}:{SWS+3}], s{s_src} offen offset:1024{SC} lds")
    a(f"s_add_u32 s{s_src}, s{s_src}, 8192")

QMASK = (1 << 34) - 1
def qflag_load(a, vm):
    a(f"s_lshr_b32 s{T1}, s{s_head}, 1", "v_lshrrev_b32 v30, 4, v0", "v_add_u32 v30, 1, v30", "v_cmp_gt_u32 vcc, 3, v30", "s_nop 1",
      "v_cndmask_b32 v30, 0, v30, vcc", "v_lshlrev_b32 v30, 4, v30", f"v_add_u32 v30, s{T1}, v30",
      "v_mul_u32_u24 v30, 43691, v30", "v_lshrrev_b32 v30, 17, v30",
      "v_and_b32 v31, 15, v0", f"s_lshl_b32 s{T2}, s{s_qb}, 1", f"v_add_u32 v24, s{T2}, v31", "v_cndmask_b32 v31, v24, v31, vcc",
      "v_lshl_add_u32 v30, v30, 4, v31", f"v_lshlrev_b32 v30, {FS}, v30")
    flag_load(a, vm, WS_FQ, 30, QMASK, 31)

def flag_load(a, vm, base, voff, mask, vt):
    a(f"s_mov_b32 s{T1}, {base:#x}", f"s_mov_b32 exec_lo, {mask & 0xffffffff:#x}", f"s_mov_b32 exec_hi, {mask >> 32:#x}",
      f"buffer_load_dword v{vt}, v{voff}, s[{SWS}:{SWS+3}], s{T1} offen sc1", "s_mov_b64 exec, -1")
    vm.add("F")

def flag_check(a, vm, base, voff, mask, vt):
    L = a.newlabel("FOK")
    a(f"s_waitcnt vmcnt({vm.wait_for(lambda t: t == 'F')})",
      f"v_cmp_ne_u32 vcc, s{S_TAG}, v{vt}", f"s_and_b32 vcc_lo, vcc_lo, {mask & 0xffffffff:#x}", f"s_and_b32 vcc_hi, vcc_hi, {mask >> 32:#x}",
      f"s_or_b32 s{T1}, vcc_lo, vcc_hi", f"s_cbranch_scc0 {L}", f"s_mov_b32 s{T1}, {base:#x}")
    poll(a, T1, voff, mask, vt, T2, staged=False)
    a.label(L)

def attn_prefetch(a, vm, which):
    if which == 0:
        flag_check(a, vm, WS_FQ, 30, QMASK, 31)
        a(f"s_xor_b32 s{T1}, s{s_q}, 1024",
          f"buffer_load_dwordx4 {vr(Q,4)}, v{vL16}, s[{SWS}:{SWS+3}], s{T1} offen{SC}",
          f"buffer_load_dwordx4 {vr(Q+4,4)}, v{vL16}, s[{SWS}:{SWS+3}], s{s_q} offen{SC}")
        vm.add("q", 2)
        if OPT["v2"]:
            a(f"s_lshl_b32 s{T1}, s{s_head}, 17", f"s_add_u32 s{T1}, s{T1}, {WS_KV:#x}",
              f"buffer_load_dwordx4 {vr(P,4)}, v{vL16}, s[{SWS}:{SWS+3}], s{T1} offen{SC}")
            vm.add("q")
    issue_chunk(a, which)
    vm.add(("c", which), 4)

def attention_phase(a, end_label):
    vm = VM()
    if OPT["c1it"] <= -2: vm.add(("c", 1), 4)
    vm.add("h", OPT["hst"])
    standin(a, 0); a("s_waitcnt lgkmcnt(2)", mfma(S, K, Q, C), "s_waitcnt lgkmcnt(0)")
    if OPT["c1it"] == -1: issue_chunk(a, 1); vm.add(("c", 1), 4); a("s_nop 3")
    else: a("s_nop 7", "s_nop 5")
    def issue_w(n):
        slot = n % D
        sr_, base = (SA, s_wd) if n < NK else (SBd, s_wo)
        a(f"s_add_u32 m0, s{s_lw}, {slot*2048}")
        if n not in (0, NK): a(f"s_add_u32 s{base}, s{base}, 16384")
        else: a("s_nop 0")
        fl = " nt" if OPT["nt"] & 8 else ""
        dma(a, vWO, sr_, f"s{base}", [], flags=fl)
        dma(a, vWO2, sr_, f"s{base}", [], imm=1024, flags=fl)
        vm.add(("w", n), 2)
    def issue_x(n):
        slot = n % D
        if n and n % 4 == 0: a(f"s_add_u32 s{s_x0}, s{s_x0}, 4096")
        a(f"buffer_load_dwordx4 {vr(XD+8*slot,4)}, v{vX1}, s[{SWS}:{SWS+3}], s{s_x0} offen offset:{(n%4)*1024}{SC}",
          f"buffer_load_dwordx4 {vr(XD+8*slot+4,4)}, v{vX2}, s[{SWS}:{SWS+3}], s{s_x0} offen offset:{(n%4)*1024}{SC}")
        vm.add(("x", n), 2)
    a.stamp("loop")
    c0 = OPT["dstart"] + 2
    c = [c0 + (n * (OPT['dend'] - c0)) // (NK - 1) for n in range(NK)]
    assert len(set(c)) == NK and c[-1] <= 31
    done = {}
    xnext = [D]
    dq = []
    first_pv = [True, True]
    XO = AB + 2*CS; XDN = 32768
    def gate_check():
        Lgok = a.newlabel("GOK"); Lgr = a.newlabel("GRE")
        vw(a, vm, lambda t: t == "g")
        a("s_mov_b32 s62, 0x80000")
        a.label(Lgr)
        a(f"v_cmp_ne_u32 vcc, s{S_TAG}, v{vG1+1}", f"v_cmp_ne_u32 s[60:61], s{S_TAG}, v{vG2+1}", "s_or_b64 vcc, vcc, s[60:61]", f"s_cbranch_scc0 {Lgok}",
          f"v_and_b32 v{T0}, 31, v0", f"v_lshlrev_b32 v{T0}, 3, v{T0}",
          f"s_sub_u32 s60, s{s_of}, {WS_OF:#x}", "s_lshr_b32 s60, s60, 15", "s_lshl_b32 s60, s60, 8", f"s_add_u32 s60, s60, {WS_GG:#x}",
          f"s_lshl_b32 s61, s{s_r64}, 1", f"s_add_u32 s61, s61, s{s_i}", "s_lshl_b32 s61, s61, 8", f"s_add_u32 s61, s61, {WS_GG:#x}",
          f"buffer_load_dwordx2 v[{vG1}:{vG1+1}], v{T0}, s[{SWS}:{SWS+3}], s60 offen sc1",
          f"buffer_load_dwordx2 v[{vG2}:{vG2+1}], v{T0}, s[{SWS}:{SWS+3}], s61 offen sc1",
          "s_waitcnt vmcnt(0)", "s_sub_u32 s62, s62, 1", f"s_cbranch_scc0 {Lgr}")
        a.label(Lgok)
        a(f"v_sub_f32 v{vG2}, 1.0, v{vG2}", f"v_cvt_pk_bf16_f32 v{vG2}, v{vG2}, v{vG2}", f"v_lshlrev_b32 v{vG2}, 16, v{vG2}")
    last = [False]
    def phase(t, vb, smf, mid, pend, wait):
        Sb = S + 16*t; Ob = O + 16*t
        for tok in ORDER.split():
            if tok[0] == 'e': r = int(tok[1:]); a(f"v_exp_f32 v{Sb+r}, v{Sb+r}")
            elif tok[0] == 'c':
                k = int(tok[1:]); a(f"v_cvt_pk_bf16_f32 v{P+k}, v{Sb+2*k}, v{Sb+2*k+1}")
                if last[0] and k == 4:
                    a(f"ds_write_b128 v{vXS}, {vr(O,4)}", f"ds_write_b128 v{vXS}, {vr(O+4,4)} offset:1024",
                      f"v_lshrrev_b32 v{T0}, 2, v{vL16}", f"v_sub_u32 v{T0+1}, v{vXS}, v{vL16}", f"v_add_u32 v{T0+1}, v{T0+1}, v{T0}",
                      f"ds_write_b32 v{T0+1}, v{O+8} offset:2048",
                      f"v_sub_u32 v{T0+2}, v{vXR}, v{vL16}", f"v_add_u32 v{T0+2}, v{T0+2}, v{T0}")
                ready = [d for d in dq if d[0] <= 0]
                if ready and (k == 3 or (k == 6 and len(ready) > OPT["dback"])):
                    d = dq.pop(0); a(d[1])
                    if not any(e[2] == d[2] for e in dq): done[d[2]] = True
            elif tok == 'W':
                if wait: a("s_waitcnt lgkmcnt(0)")
            elif tok == 'S':
                if smf: a(smf)
            elif tok == 'N':
                if pend: a(pend)
            elif tok == 'P':
                a(mfma(Ob, V+8*vb, P, "0" if first_pv[t] else None)); first_pv[t] = False
            elif tok == 'M': mid()
        for d in dq: d[0] -= 1
        return mfma(Ob, V+8*vb+4, P+4)
    pend = None
    for it in range(32):
        vb = it % 2
        def midA():
            if it % 8 == 7 and it < 31:
                ch = it // 8 + 1
                vw(a, vm, lambda t: t == ('c', ch)); a("s_barrier")
                if ch + 1 < 4:
                    issue_chunk(a, (ch + 1) % 2); vm.add(("c", ch + 1), 4)
            if it < 31: a(*rd(it + 1, 1 - vb))
            if it == OPT["c1it"]: issue_chunk(a, 1); vm.add(("c", 1), 4)
            if it in c:
                n = c.index(it); slot = n % D; p = n % 2
                assert n < 2 or done.get(n - 2), (n, it)
                vw(a, vm, lambda t: t in (('x', n), ('w', n)))
                for cb in range(2):
                    for t in range(2):
                        a(f"ds_read_b64_tr_b16 {vr(WD+8*p+4*cb+2*t,2)}, v{vWR+cb} offset:{slot*2048+t*1024}")
                for i in range(2):
                    for cb in range(2):
                        dq.append([1, mfma(AD+16*(2*i+cb), WD+8*p+4*cb, XD+8*slot+4*i, "0" if n == 0 else None), n])
        def midB():
            if it < 4 - OPT["hst"]: hstore(a, vm, OPT["hst"] + it)
            if OPT["wstart"] <= it < OPT["wstart"] + D:
                if it == OPT["wstart"] and OPT["early"]: a("s_barrier")
                issue_w(it - OPT["wstart"])
            if it == OPT["hpub"]:
                L = a.newlabel("NOH")
                a(f"s_waitcnt vmcnt({vm.wait_for(lambda t: t == 'h')})", f"s_cmp_eq_u32 s{s_up}, 0", f"s_cbranch_scc1 {L}")
                set_flag(a, s_fh, T0)
                a.label(L)
            if it == OPT["dstart"] - 1: flag_load(a, vm, WS_FH, vFO, HMASK, vFO+1)
            if it == OPT["dstart"]:
                flag_check(a, vm, WS_FH, vFO, HMASK, vFO+1)
                for n in range(D): issue_x(n)
            if it in c and c.index(it) + D < NK + 4: issue_w(c.index(it) + D)
            if xnext[0] < NK and done.get(xnext[0] - D): issue_x(xnext[0]); xnext[0] += 1
            if it == 0:
                a(f"s_xor_b32 s60, s{s_i}, 1", f"s_mul_i32 s60, s60, {112*1024}", f"v_add_u32 v{vX1}, s60, v{vL16}",
                  f"s_mul_i32 s60, s{S_W}, 2560", f"s_add_u32 s60, s60, {XO}", f"v_add_u32 v{vXS}, s60, v{vL16}",
                  f"s_xor_b32 s60, s{S_W}, 4", "s_mul_i32 s60, s60, 2560", f"s_add_u32 s60, s60, {XO}", f"v_add_u32 v{vXR}, s60, v{vL16}")
            if it == 30:
                assert c[-1] < 30
                srd(a, SCd, S_OUT, 2048*1024)
                a(f"s_lshl_b32 s60, s{s_i}, 13", f"v_subrev_u32 v{vWR}, s60, v{vWR}", f"v_xor_b32 v{vWR+1}, 64, v{vWR}")
                a(f"s_lshl_b32 s60, s{s_r64}, 1", f"s_add_u32 s60, s60, s{s_i}",
                  "s_lshl_b32 s61, s60, 5", f"s_lshl_b32 s62, s{s_kq}, 3", "s_add_u32 s61, s61, s62",
                  "s_lshl_b32 s54, s61, 10", f"s_add_u32 s54, s54, {WS_OF:#x}", "s_add_u32 s55, s54, 4096",
                  "s_lshl_b32 s56, s60, 15", f"s_lshl_b32 s62, s{s_c64}, 7", "s_add_u32 s56, s56, s62", f"s_lshl_b32 s62, s{s_kq}, 5", "s_add_u32 s56, s56, s62")
            if it == 22:
                a(f"s_lshl_b32 s60, s{s_kq}, 1", f"s_lshr_b32 s61, s{s_r64}, 2", "s_lshl_b32 s61, s61, 5", "s_add_u32 s60, s60, s61",
                  f"v_bfe_u32 v{vFO}, v0, 2, 1", f"v_and_b32 v{T0}, 3, v0", f"v_lshl_add_u32 v{vFO}, v{T0}, 3, v{vFO}", f"v_add_u32 v{vFO}, s60, v{vFO}",
                  f"v_lshlrev_b32 v{vFO}, {FS}, v{vFO}")
                flag_load(a, vm, WS_FO, vFO, 0xff, vFO+1)
            if it == 24: flag_check(a, vm, WS_FO, vFO, 0xff, vFO+1); gate_check()
            if it == 20:
                a(f"v_and_b32 v{T0}, 31, v0", f"v_lshlrev_b32 v{T0}, 3, v{T0}",
                  f"s_lshl_b32 s60, s{s_qb}, 3", f"s_lshl_b32 s61, s{s_qw}, 1", "s_add_u32 s60, s60, s61", f"s_add_u32 s60, s60, s{s_kh}",
                  "s_lshl_b32 s60, s60, 8", f"s_add_u32 s60, s60, {WS_GG:#x}",
                  f"s_lshl_b32 s61, s{s_r64}, 1", f"s_add_u32 s61, s61, s{s_i}", "s_lshl_b32 s61, s61, 8", f"s_add_u32 s61, s61, {WS_GG:#x}",
                  f"buffer_load_dwordx2 v[{vG1}:{vG1+1}], v{T0}, s[{SWS}:{SWS+3}], s60 offen sc1",
                  f"buffer_load_dwordx2 v[{vG2}:{vG2+1}], v{T0}, s[{SWS}:{SWS+3}], s61 offen sc1")
                vm.add("g", 2)
        a.stamp(f"it{it}")
        if OPT["bal"] == 1: a(f"s_setprio {3 - it % 4}")
        if OPT["bal"] == 2:
            if it < 8:
                if it in (0, 2, 5): a(f"s_setprio {2 - (0, 2, 5).index(it)}")
            elif it % 2 == 0: a(f"s_setprio {3 - (it % 8) // 2}")
        pend = phase(0, vb, mfma(S+16, K, Q+4, C), midA, pend, False)
        last[0] = it == 31
        pend = phase(1, vb, mfma(S, K, Q, C) if it < 31 else None, midB, pend, True)
    a("s_nop 1", pend)
    for d in dq: a(d[1])
    a.stamp("loopend")
    OK_ = O + 16; QK_ = Q + 4
    a("s_waitcnt vmcnt(0) lgkmcnt(0)", "s_barrier")
    a(f"ds_read_b128 {vr(S,4)}, v{vXR}", f"ds_read_b128 {vr(S+4,4)}, v{vXR} offset:1024", f"ds_read_b32 v{S+8}, v{T0+2} offset:2048")
    a(f"s_lshl_b32 s60, s{S_W}, 13", f"s_add_u32 s60, s60, {XDN}", f"v_add_u32 v{vKA}, s60, v{vL16}", f"v_xor_b32 v{vVB}, 0x2000, v{vKA}",
      "s_mov_b32 s62, 0x5d800000", "s_mov_b32 s63, 0x7e800000", "s_nop 1")
    a("s_waitcnt lgkmcnt(0)")
    for j in range(9): a(f"v_add_f32 v{OK_+j}, v{OK_+j}, v{S+j}")
    Lfb = a.newlabel("ATT_fallback"); Lfin = a.newlabel("ATT_fin")
    a(f"v_add_f32 v{T0}, |v{OK_}|, |v{OK_+1}|", f"v_add_f32 v{T0+1}, |v{OK_+2}|, |v{OK_+3}|",
      f"v_add_f32 v{T0+2}, |v{OK_+4}|, |v{OK_+5}|", f"v_add_f32 v{T0+3}, |v{OK_+6}|, |v{OK_+7}|",
      f"v_add_f32 v{T0}, v{T0}, v{T0+1}", f"v_add_f32 v{T0+2}, v{T0+2}, v{T0+3}", f"v_cmp_nlt_f32 vcc, v{OK_+8}, s62",
      f"v_add_f32 v{T0}, v{T0}, v{T0+2}",
      f"v_cmp_nlt_f32 s[60:61], v{T0}, s63",
      "s_or_b64 vcc, vcc, s[60:61]",
      f"s_cbranch_scc1 {Lfb}")
    a.label(Lfin)
    a(f"v_rcp_f32 v{T0}, v{OK_+8}", "s_nop 0", f"v_mul_f32 v{T0}, v{T0}, v{vG1}")
    for j in range(8): a(f"v_mul_f32 v{OK_+j}, v{OK_+j}, v{T0}")
    for j in range(4): a(f"v_cvt_pk_bf16_f32 v{P+j}, v{OK_+2*j}, v{OK_+2*j+1}")
    for j in range(4): a(f"v_min_u32 v{P+j}, -2, v{P+j}")
    a(f"buffer_store_dwordx4 {vr(P,4)}, v{vL16}, s[{SWS}:{SWS+3}], s{s_of} offen{SC}")
    a.stamp("oflag")
    AK = AD + 32
    WO = 128; XF = 32
    def xload(st): return f"buffer_load_dwordx4 {vr(XF+4*st,4)}, v{vL16}, s[{SWS}:{SWS+3}], s{54 if st<4 else 55} offen offset:{(st%4)*1024}{SC}"
    for st in range(8):
        a(f"ds_write_b128 v{vKA}, {vr(AD+4*st,4)} offset:{1024*st}")
    for st in range(8):
        if st % 2 == 0: a("s_waitcnt lgkmcnt(6)")
        for cb in range(2):
            for t in range(2):
                a(f"ds_read_b64_tr_b16 {vr(WO+8*st+4*cb+2*t,2)}, v{vWR+cb} offset:{(st//4)*8192+((NK+st%4)%D)*2048+t*1024}")
        for j in range(4*st, 4*st+4): a(f"v_mul_f32 v{AK+j}, v{AK+j}, v{vG2}")
    a(f"v_and_b32 v{T0}, 31, v0", f"v_lshlrev_b32 v{T0}, 10, v{T0}", f"v_lshrrev_b32 v{T0+1}, 5, v0", f"v_lshl_add_u32 v{vVA}, v{T0+1}, 4, v{T0}",
      f"s_lshl_b32 s60, s{s_i}, 17")
    for j in range(4):
        a(f"s_xor_b32 s61, s{s_kq}, {j}", f"s_mul_i32 s61, s61, {3*2048}", "s_add_u32 s61, s61, s60", f"v_add_u32 v{T0+4+j}, s61, v{vL16}")
    a("s_mov_b32 s62, 0x80000", "s_waitcnt lgkmcnt(0)", "s_barrier")
    for j in range(8): a(f"ds_read_b128 {vr(AD+4*j,4)}, v{vVB} offset:{1024*j}")
    for st in range(8): a(xload(st))
    for j in range(8):
        a(f"s_waitcnt lgkmcnt({7-j})")
        for r in range(4*j, 4*j+4): a(f"v_fma_f32 v{AK+r}, v{AD+r}, v{vG2}, v{AK+r}")
    a.stamp("prepoll")
    for st in range(8):
        Lr = a.newlabel("XR"); Lo = a.newlabel("XO")
        x = XF + 4*st
        a(f"s_waitcnt vmcnt({7-st})")
        a.label(Lr)
        a(f"v_max3_u32 v{T0}, v{x}, v{x+1}, v{x+2}", f"v_max_u32 v{T0}, v{T0}, v{x+3}", f"v_cmp_eq_u32 vcc, -1, v{T0}",
          f"s_cbranch_vccz {Lo}",
          f"s_sleep {OPT['sleep']}", *[xload(q) for q in range(st, min(8, st + OPT["xre"]))], "s_waitcnt vmcnt(0)", "s_sub_u32 s62, s62, 1", f"s_cbranch_scc0 {Lr}")
        a.label(Lo)
        for cb in range(2): a(mfma(AK+16*cb, WO+8*st+4*cb, x))
    a.stamp("outmf")
    a("s_nop 7", "s_nop 1")
    for j in (1, 2, 3):
        for h in range(2): a(f"ds_write_b128 v{T0+4+j}, {vr(AK+8*j+4*h,4)} offset:{(j-1)*2048+h*1024}")
    a("s_waitcnt lgkmcnt(0)", "s_barrier")
    for r in range(3):
        for h in range(2): a(f"ds_read_b128 {vr(XF+8*r+4*h,4)}, v{T0+4} offset:{r*2048+h*1024}")
    for r in range(3):
        a(f"s_waitcnt lgkmcnt({4-2*r})")
        for j in range(8): a(f"v_add_f32 v{AK+j}, v{AK+j}, v{XF+8*r+j}")
    for j in range(4): a(f"v_cvt_pk_bf16_f32 v{24+j}, v{AK+2*j}, v{AK+2*j+1}")
    a("s_nop 1", "v_permlane32_swap_b32 v24, v26", "v_permlane32_swap_b32 v25, v27",
      f"buffer_store_dwordx4 v[24:27], v{vVA}, s[{SCd}:{SCd+3}], s56 offen")
    a(f"s_branch {end_label}")
    a.label(Lfb)
    L1 = a.newlabel("ATT_fb1"); L2 = a.newlabel("ATT_fb2")
    a(f"s_lshl_b32 s63, s{s_head}, 17", f"s_add_u32 s63, s63, {WS_KV:#x}")
    a(f"v_mov_b32 v{T0}, 0xff800000", "s_mov_b32 s60, s63", "s_mov_b32 s61, 0")
    a.label(L1)
    a(f"buffer_load_dwordx4 {vr(K,4)}, v{vL16}, s[{SWS}:{SWS+3}], s60 offen{SC}", "s_waitcnt vmcnt(0)",
      mfma(S, K, QK_, "0"), "s_nop 7", "s_nop 7")
    for r in range(0, 16, 2): a(f"v_max3_f32 v{T0}, v{T0}, v{S+r}, v{S+r+1}")
    a("s_add_u32 s60, s60, 2048", "s_add_u32 s61, s61, 1", "s_cmp_lt_u32 s61, 64", f"s_cbranch_scc1 {L1}")
    a(f"v_mov_b32 v{T0+2}, v{T0}", "s_nop 1", f"v_permlane32_swap_b32 v{T0}, v{T0+2}", "s_nop 1", f"v_max_f32 v{T0}, v{T0}, v{T0+2}")
    for r in range(16): a(f"v_sub_f32 v{C+r}, 0, v{T0}", f"v_mov_b32 v{OK_+r}, 0")
    a(f"v_lshrrev_b32 v{T0}, 5, v0", f"v_lshlrev_b32 v{T0}, 8, v{T0}", f"v_and_b32 v{T0+1}, 15, v0",
      f"v_lshl_add_u32 v{vVA}, v{T0+1}, 4, v{T0}")
    a("s_mov_b32 s60, s63", "s_mov_b32 s61, 0")
    a.label(L2)
    a(f"buffer_load_dwordx4 {vr(K,4)}, v{vL16}, s[{SWS}:{SWS+3}], s60 offen{SC}",
      f"s_mov_b64 exec, s[{sEX}:{sEX+1}]",
      f"buffer_load_dwordx4 {vr(V,4)}, v{vVA}, s[{SWS}:{SWS+3}], s60 offen offset:1024{SC}",
      f"buffer_load_dwordx4 {vr(V+4,4)}, v{vVA}, s[{SWS}:{SWS+3}], s60 offen offset:1536{SC}",
      "s_mov_b64 exec, -1", "s_waitcnt vmcnt(0)",
      mfma(S, K, QK_, C), "s_nop 7", "s_nop 7")
    for r in range(16): a(f"v_exp_f32 v{S+r}, v{S+r}")
    a("s_nop 0")
    for k in range(8): a(f"v_cvt_pk_bf16_f32 v{P+k}, v{S+2*k}, v{S+2*k+1}")
    a("s_nop 1", mfma(OK_, V, P), mfma(OK_, V+4, P+4), "s_nop 7", "s_nop 7")
    a("s_add_u32 s60, s60, 2048", "s_add_u32 s61, s61, 1", "s_cmp_lt_u32 s61, 64", f"s_cbranch_scc1 {L2}")
    a(f"s_branch {Lfin}")

def rot_code():
    m = OPT["rot"]
    if m == 0: return ["s_mov_b32 s3, 0"]
    if OPT["map"] == 1:
        base = ["s_and_b32 s3, s60, 6", "s_and_b32 s63, s60, 1", "s_lshl_b32 s63, s63, 2", "s_add_u32 s3, s3, s63"]
        if m == 2: return base
        if m == 1: return ["s_lshl_b32 s3, s61, 1", f"s_add_u32 s3, s3, s{s_rt}"]
        if m == 4: return base + [f"s_add_u32 s63, s61, s{s_rt}", "s_and_b32 s63, s63, 1", "s_lshl_b32 s63, s63, 2", "s_add_u32 s3, s3, s63"]
        if m == 5: return [f"s_add_u32 s63, s61, s{s_rt}", "s_and_b32 s63, s63, 3", "s_lshl_b32 s3, s63, 1", "s_and_b32 s63, s60, 1", "s_add_u32 s3, s3, s63"]
    if m == 1: return [f"s_lshl_b32 s3, s{s_rt}, 1", "s_add_u32 s3, s3, s61", "s_and_b32 s63, s60, 1", "s_add_u32 s3, s3, s63"]
    base = ["s_lshl_b32 s3, s60, 1", "s_and_b32 s63, s60, 4", "s_add_u32 s3, s3, s63"]
    if m == 2: return base
    if m == 3: return base + [f"s_add_u32 s63, s61, s{s_rt}", "s_and_b32 s63, s63, 1", "s_add_u32 s3, s3, s63"]
    if m == 4: return base + [f"s_add_u32 s63, s61, s{s_rt}", "s_and_b32 s63, s63, 1", "s_lshl_b32 s63, s63, 2", "s_add_u32 s3, s3, s63"]

def build(prof=False, as_list=False):
    a = Asm(); a.prof = prof; a.sb = 76
    a('.amdgcn_target "amdgcn-amd-amdhsa--gfx950"')
    a(".text", f".globl {NAME}", ".p2align 8", f".type {NAME},@function")
    a.label(NAME)
    end = "K_end"
    if prof:
        a.plan = PLAN
        a("s_memrealtime s[100:101]", "s_memtime s[76:77]" if prof != 2 else "s_memrealtime s[76:77]")
        for i in range(1, 12): a(f"s_mov_b32 s{76+2*i}, 0")
    if OPT["spin"]: a("s_memrealtime s[100:101]")
    a("s_cmp_ge_u32 s2, 256", f"s_cbranch_scc1 {end}_x")
    a("s_load_dwordx16 s[4:19], s[0:1], 0", "s_load_dwordx4 s[20:23], s[0:1], 64", "s_load_dwordx2 s[24:25], s[0:1], 80")
    a("v_lshrrev_b32 v1, 6, v0", "s_and_b32 s60, s2, 7", f"v_readfirstlane_b32 s{S_W}, v1", "v_and_b32 v0, 63, v0", f"v_lshlrev_b32 v{vL16}, 4, v0")
    if OPT["map"] == 0:
        a("s_lshr_b32 s61, s2, 3", f"s_and_b32 s{s_rt}, s60, 3", f"s_lshl_b32 s{s_rt}, s{s_rt}, 2", "s_and_b32 s62, s61, 3", f"s_add_u32 s{s_rt}, s{s_rt}, s62",
          "s_lshr_b32 s61, s61, 2", "s_lshr_b32 s62, s60, 2", f"s_lshl_b32 s{s_ct}, s62, 3", f"s_add_u32 s{s_ct}, s{s_ct}, s61",
          f"s_mul_i32 s{s_ft}, s62, 7", "s_min_u32 s63, s61, 6", f"s_add_u32 s{s_ft}, s{s_ft}, s63",
          "s_cmp_lt_u32 s61, 7", f"s_cselect_b32 s{s_up}, 1, 0")
    else:
        a("s_lshr_b32 s61, s2, 3", f"s_and_b32 s{s_rt}, s60, 1", f"s_lshl_b32 s{s_rt}, s{s_rt}, 3", "s_and_b32 s62, s61, 7", f"s_add_u32 s{s_rt}, s{s_rt}, s62",
          "s_lshr_b32 s61, s61, 3", "s_lshr_b32 s62, s60, 1", f"s_lshl_b32 s{s_ct}, s62, 2", f"s_add_u32 s{s_ct}, s{s_ct}, s61",
          f"s_cmp_ge_u32 s{s_ct}, 11", "s_cselect_b32 s63, 1, 0", f"s_sub_u32 s{s_ft}, s{s_ct}, s63", f"s_min_u32 s{s_ft}, s{s_ft}, 13",
          f"s_and_b32 s63, s{s_ct}, 11", "s_cmp_lg_u32 s63, 11", f"s_cselect_b32 s{s_up}, 1, 0")
    a(*rot_code(),
      f"s_and_b32 s{s_rb}, s{S_W}, 3", f"s_lshr_b32 s{s_hf}, s{S_W}, 2",
      f"s_lshl_b32 s{s_row}, s2, 3", f"s_add_u32 s{s_row}, s{s_row}, s{S_W}",
      f"s_lshl_b32 s{s_fq}, s{s_ct}, 4", f"s_add_u32 s{s_fq}, s{s_fq}, s{s_rt}", f"s_lshl_b32 s{s_fq}, s{s_fq}, {FS}", f"s_add_u32 s{s_fq}, s{s_fq}, {WS_FQ:#x}")
    a(f"s_lshl_b32 s{sX}, s{s_rt}, 17", f"s_lshl_b32 s62, s{S_W}, 14", f"s_add_u32 s{sX}, s{sX}, s62",
      f"s_mul_i32 s{sWq}, s{s_rb}, {16*3072}", f"s_mul_i32 s62, s{s_ct}, 192", f"s_add_u32 s{sWq}, s{sWq}, s62",
      f"s_mul_i32 s{sGU}, s{s_rb}, {16*3584}" if OPT["gload"] else f"s_mul_i32 s{sGU}, s{S_W}, {8*3584}", f"s_lshl_b32 s62, s{s_ft}, 8", f"s_add_u32 s{sGU}, s{sGU}, s62",
      f"s_lshl_b32 s{sLx}, s{S_W}, 11", f"s_mul_i32 s{sLw}, s{s_rb}, 3072", f"s_lshl_b32 s{sLg}, s{s_rb}, 12" if OPT["gload"] else f"s_lshl_b32 s{sLg}, s{S_W}, 11")
    a(f"s_lshl_b32 s{s_head}, s60, 2", "s_bfe_u32 s62, s2, 0x20003", f"s_add_u32 s{s_head}, s{s_head}, s62", f"s_lshr_b32 s{s_qb}, s2, 5",
      f"s_lshl_b32 s{s_q}, s{s_head}, 6", f"s_lshl_b32 s62, s{s_qb}, 3", f"s_add_u32 s{s_q}, s{s_q}, s62",
      f"s_lshl_b32 s62, s{s_rb}, 1", f"s_add_u32 s{s_q}, s{s_q}, s62", f"s_add_u32 s{s_q}, s{s_q}, s{s_hf}", f"s_lshl_b32 s{s_q}, s{s_q}, 10",
      f"s_lshl_b32 s{s_src}, s{s_head}, 17", f"s_add_u32 s{s_src}, s{s_src}, {WS_KV:#x}", f"s_lshl_b32 s62, s{s_hf}, 16", f"s_add_u32 s{s_src}, s{s_src}, s62",
      f"s_lshl_b32 s62, s{s_rb}, 11", f"s_add_u32 s{s_src}, s{s_src}, s62",
      f"s_mul_i32 s{s_lkv}, s{s_hf}, {8*TS}", f"s_mul_i32 s62, s{s_rb}, {TS}", f"s_add_u32 s{s_lkv}, s{s_lkv}, s62", f"s_add_u32 s{s_lkv}, s{s_lkv}, {AB}")
    a("v_lshrrev_b32 v30, 3, v0", "v_and_b32 v31, 7, v0", "v_bfe_u32 v32, v0, 4, 2", "v_xor_b32 v32, v32, v31",
      "v_lshlrev_b32 v30, 10, v30", "v_lshl_add_u32 v11, v32, 4, v30", "v_xor_b32 v12, 64, v11")
    for i in range(3):
        a(f"v_add_u32 v30, {64*i}, v0", "v_mul_u32_u24 v31, 5462, v30", "v_lshrrev_b32 v31, 16, v31",
          "v_mul_u32_u24 v32, 12, v31", "v_sub_u32 v32, v30, v32", "v_mul_u32_u24 v31, 3072, v31", f"v_lshl_add_u32 v{13+i}, v32, 4, v31")
    a("v_lshrrev_b32 v30, 4, v0", "v_and_b32 v31, 15, v0", "v_lshlrev_b32 v32, 1, v30", "v_xor_b32 v31, v31, v32",
      "v_mul_u32_u24 v30, 3584, v30", "v_lshl_add_u32 v28, v31, 4, v30", "v_xor_b32 v31, 8, v31", "v_lshl_add_u32 v29, v31, 4, v30")
    a("s_waitcnt lgkmcnt(0)")
    srd(a, SA, S_X, 2048*1024); srd(a, SBd, S_WQKV, 512*3072)
    if OPT["spin"] and OPT["dbg"] == 7:
        srd(a, 72, S_DBG, 256)
        a("s_not_b32 s60, s100", "v_mov_b32 v30, s60", "v_mov_b32 v31, 8", "s_mov_b64 exec, 1",
          "buffer_atomic_umax v30, v31, s[72:75], 0 offen", "s_mov_b64 exec, -1", "s_waitcnt vmcnt(0)")
    L_attn = "ATTN"
    srd(a, SD, S_WU, 512*3584); srd(a, 72, S_GW, 1024)
    g0 = unit_groups(a, None, 0, 0, ("Q", 0)); g1 = unit_groups(a, None, 1, 0, ("Q", 0))
    g0[0](); g0[1]()
    a(f"s_cmp_eq_u32 s{s_hf}, 0", "s_cbranch_scc1 PRO0")
    g1[2](); g1[3]()
    a("s_branch PRO1")
    a.label("PRO0")
    g0[2]()
    a.label("PRO1")
    srd(a, SWS, S_WS, WS_SIZE); srd(a, SCd, S_WG, 512*3584)
    a(f"s_sub_u32 s60, 11, s{s_hf}", f"s_cmp_ge_u32 s{s_ct}, s60", "s_cselect_b32 s60, 2, 0", f"s_lshl_b32 s61, s{s_hf}, 2", "s_add_u32 s60, s60, s61",
      f"s_xor_b32 s61, s{s_up}, 1", "s_add_u32 s60, s60, s61")
    order = [4, 0, 6, 2, 5, 1, 7, 3]
    for c in order[1:]: a(f"s_cmp_eq_u32 s60, {c}", f"s_cbranch_scc1 CLS{c}")
    for c in order:
        a.label(f"CLS{c}")
        gemm_phase(a, c >> 2, bool(c & 2), not (c & 1), L_attn)
    a(".p2align 6")
    a.label(L_attn)
    attention_phase(a, end)
    a.label(end)
    if OPT["spin"]:
        if OPT["dbg"] == 7:
            srd(a, 72, S_DBG, 256)
            a("v_mov_b32 v31, 8", "buffer_load_dword v30, v31, s[72:75], 0 offen sc1", "s_waitcnt vmcnt(0)", "v_readfirstlane_b32 s100, v30", "s_nop 3", "s_not_b32 s100, s100")
        a.label("SPIN")
        a("s_memrealtime s[36:37]", "s_waitcnt lgkmcnt(0)", "s_sub_u32 s36, s36, s100", f"s_cmp_lt_u32 s36, {OPT['spin']}", "s_cbranch_scc1 SPIN")
    if prof:
        a("s_waitcnt vmcnt(0) lgkmcnt(0)", "s_memrealtime s[36:37]", "s_memtime s[38:39]",
          "s_getreg_b32 s40, hwreg(HW_REG_XCC_ID)",
          "s_mov_b32 s32, s24", "s_and_b32 s33, s25, 0xffff", "s_mov_b32 s34, 0x2000000", "s_mov_b32 s35, 0x00020000",
          "s_lshl_b32 s41, s2, 3", f"s_add_u32 s41, s41, s{S_W}", "s_lshl_b32 s41, s41, 6",
          f"s_add_u32 s41, s41, {WS_PROF:#x}",
          "s_waitcnt lgkmcnt(0)", "s_sub_u32 s38, s38, s76",
          "v_mov_b32 v4, s100", "v_mov_b32 v5, s36", "v_mov_b32 v6, s38", "v_mov_b32 v7, s40", "v_mov_b32 v8, 0",
          "s_mov_b64 exec, 1",
          "buffer_store_dwordx4 v[4:7], v8, s[32:35], s41 offen")
        for i in range(1, 12): a(f"s_sub_u32 s{76+2*i}, s{76+2*i}, s76", f"v_mov_b32 v{11+i}, s{76+2*i}")
        a("v_mov_b32 v23, 0")
        for q in range(3): a(f"buffer_store_dwordx4 v[{12+4*q}:{15+4*q}], v8, s[32:35], s41 offen offset:{16+16*q}")
    a.label(end + "_x")
    a("s_endpgm")
    desc = f""".section .rodata,"a"
.p2align 6
.amdhsa_kernel {NAME}
  .amdhsa_next_free_vgpr 256
  .amdhsa_next_free_sgpr 102
  .amdhsa_accum_offset 256
  .amdhsa_group_segment_fixed_size 0
  .amdhsa_kernarg_size 88
  .amdhsa_user_sgpr_count 2
  .amdhsa_user_sgpr_kernarg_segment_ptr 1
  .amdhsa_system_sgpr_workgroup_id_x 1
.end_amdhsa_kernel
"""
    k = f"kernel={NAME} " if as_list else ""
    return HEADER + f"; @launch {k}grid=(256,1,1) block=(512,1,1) lds={LDS_BYTES}\n" + a.text() + desc

if __name__ == "__main__":
    out = sys.argv[1]
    for x in sys.argv[2:]:
        if x.startswith("seq="): SEQ[0] = x[4:]
        elif x.startswith("dist="): DIST[0] = x[5:]
        elif x.startswith("plan="): PLAN[:] = x[5:].split(",")
        elif "=" in x:
            k, v = x.split("="); OPT[k] = int(v)
    open(out, "w").write(build(prof=2 if "--prof2" in sys.argv else "--prof" in sys.argv, as_list="--list" in sys.argv))
```
